```python
import torch

def _softmax(x, axis=-1):
    return torch.softmax(x, dim=axis)
def _gelu(x):
    return torch.nn.functional.gelu(x, approximate="tanh")
def _silu(x):
    return torch.nn.functional.silu(x)
def _sigmoid(x):
    return torch.sigmoid(x)
def _layernorm(x, axis=-1, eps=1e-5):
    m = x.mean(dim=axis, keepdim=True)
    v = x.var(dim=axis, keepdim=True, unbiased=False)
    return (x - m) / torch.sqrt(v + eps)
def _scatter_add(tgt, idx, src, axis=0):
    return tgt.clone().index_add_(axis, idx, src)
def _segment_sum(src, seg, n):
    out = torch.zeros((n,) + src.shape[1:], dtype=src.dtype)
    return out.index_add_(0, seg, src)
def _pad(x, pw):
    flat = tuple(v for pair in reversed(pw) for v in pair)
    return torch.nn.functional.pad(x, flat)

kernel_name = 'standalone__gqa_softmax__sampling'

def setup_inputs():

    _w = (lambda a: (lambda t: t.to(torch.bfloat16) if t.is_floating_point() else t)(torch.as_tensor(a)))
    B, Hq, Hkv, Sq, Sk, D = 16, 32, 8, 16, 4096, 128
    return {
        "q": _w((lambda *s: torch.randn(*s, dtype=torch.bfloat16) * 0.8)(B, Hq, Sq, D)),
        "k": _w((lambda *s: torch.randn(*s, dtype=torch.bfloat16) * 0.8)(B, Hkv, Sk, D)),
        "v": _w((lambda *s: torch.randn(*s, dtype=torch.bfloat16) * 0.05)(B, Hkv, Sk, D)),
    }

def reference(q, k, v):
    B, Hq, Sq, D = q.shape
    Hkv = k.shape[1]
    rep = Hq // Hkv
    k = (lambda x, n, axis: torch.repeat_interleave(x, n, dim=axis))(k, rep, axis=1)
    v = (lambda x, n, axis: torch.repeat_interleave(x, n, dim=axis))(v, rep, axis=1)
    scale = D ** -0.5
    scores = torch.einsum("bhqd,bhkd->bhqk", q, k) * scale
    p = _softmax(scores, axis=-1)
    return torch.einsum("bhqk,bhkd->bhqd", p, v)
```

```python
import argparse
import math

NAME = "standalone__gqa_softmax__sampling"

HEADER = """; Kernarg layout for this problem (48 bytes, ptrs only, base s[0:1]):
"""


class Asm:
    def __init__(self):
        self.lines = []

    def __call__(self, s):
        for ln in s.strip("\n").split("\n"):
            self.lines.append(ln)

    def text(self):
        return "\n".join(self.lines) + "\n"


def vr(a, n=1):
    return f"v{a}" if n == 1 else f"v[{a}:{a + n - 1}]"


def f32hex(x):
    import struct
    return "0x%08x" % struct.unpack("<I", struct.pack("<f", x))[0]


VQ = 4
VO = 20
VS = 52
VP = 68
VK = 76
VV = 140
VKB = 204
VVB = 208
VKA = 216
VVA = 220
VDK = 228
VDV = 232
VM = 234
VL = 235
VT = 236
VLANE = 248
NVGPR = 252

SK = 4
SV = 8
SQ = 12
SW = 16
S_WAVE = 20
S_I = 21
S_OFFK = 22
S_OFFV = 23
S_WR = 24
S_RD = 25
S_C = 26
S_PAIR = 27
S_ARG = 28
S_HALF = 40
S_T = 41
S_TS = 48

TILE = 16384
UNIT = 32768


def dma_unit(a, o, k=True, v=True):
    aux = o.aux
    if k:
        a(f"  s_mov_b32 m0, s{S_WR}")
        a("  s_nop 0")
        for p in range(4):
            a(f"  buffer_load_dwordx4 v{VDK + p}, s[{SK}:{SK + 3}], s{S_OFFK} offen offset:{1024 * p}{aux} lds")
    if v:
        a(f"  s_add_u32 m0, s{S_WR}, {TILE}")
        a("  s_nop 0")
        for p in range(4):
            a(f"  buffer_load_dwordx4 v{VDV + (p & 1)}, s[{SV}:{SV + 3}], s{S_OFFV} offen offset:{1024 * p}{aux} lds")


def advance_wr(a, o):
    a(f"  s_add_u32 s{S_OFFK}, s{S_OFFK}, {TILE}")
    a(f"  s_add_u32 s{S_OFFV}, s{S_OFFV}, {TILE}")
    a(f"  s_add_u32 s{S_WR}, s{S_WR}, {UNIT}")
    a(f"  s_cmp_ge_u32 s{S_WR}, {UNIT * o.ns}")
    a(f"  s_cselect_b32 s{S_T}, {UNIT * o.ns}, 0")
    a(f"  s_sub_u32 s{S_WR}, s{S_WR}, s{S_T}")


def advance_rd(a, o):
    a(f"  s_add_u32 s{S_RD}, s{S_RD}, {UNIT}")
    a(f"  s_cmp_ge_u32 s{S_RD}, {UNIT * o.ns}")
    a(f"  s_cselect_b32 s{S_RD}, 0, s{S_RD}")


def v_reads(a, kb):
    for j in range(8):
        for t in range(2):
            dst = VV + (kb * 8 + j) * 4 + 2 * t
            a(f"  ds_read_b64_tr_b16 {vr(dst, 2)}, v{VVA + j} offset:{TILE + 4096 * (2 * kb + t)}")


def pv_mfma(a, kb, j):
    a(f"  v_mfma_f32_16x16x32_bf16 {vr(VO + 4 * j, 4)}, {vr(VV + (kb * 8 + j) * 4, 4)}, {vr(VP + 4 * kb, 4)}, {vr(VO + 4 * j, 4)}")


def stamp(a, o, idx):
    if o.stamp:
        a(f"  s_memrealtime s[{S_TS + 2 * idx}:{S_TS + 2 * idx + 1}]")


def xlane_reduce(a, op, reg, t0, t1):
    a(f"  v_mov_b32 v{t0}, v{reg}")
    a(f"  v_mov_b32 v{t1}, v{reg}")
    a("  s_nop 1")
    a(f"  v_permlane32_swap_b32 v{t0}, v{t1}")
    a(f"  {op} v{t0}, v{t0}, v{t1}")
    a(f"  v_mov_b32 v{t1}, v{t0}")
    a("  s_nop 1")
    a(f"  v_permlane16_swap_b32 v{t0}, v{t1}")
    a(f"  {op} v{reg}, v{t0}, v{t1}")


def main_kernel(a, o, label):
    ns = o.ns
    c = (128 ** -0.5) * math.log2(math.e)
    a(f"""
.globl {label}
.p2align 8
.type {label},@function
{label}:
  s_cmp_ge_u32 s2, 256
  s_cbranch_scc1 L_end_main
  s_load_dwordx8 s[{S_ARG}:{S_ARG + 7}], s[0:1], 0
  s_load_dwordx4 s[{S_ARG + 8}:{S_ARG + 11}], s[0:1], 32
""")
    stamp(a, o, 0)
    a(f"""
  v_lshrrev_b32 v1, 6, v0
  v_and_b32 v{VLANE}, 63, v0
  v_readfirstlane_b32 s{S_WAVE}, v1
  s_and_b32 s{S_T}, s2, 7
  s_lshr_b32 s{S_T + 1}, s2, 4
  s_lshl_b32 s{S_T + 1}, s{S_T + 1}, 3
  s_or_b32 s{S_PAIR}, s{S_T}, s{S_T + 1}
  s_bfe_u32 s{S_HALF}, s2, 0x10003
  s_lshl_b32 s{S_T}, s{S_PAIR}, 20
  s_lshl_b32 s{S_T + 1}, s{S_HALF}, 19
  s_or_b32 s{S_T}, s{S_T}, s{S_T + 1}
  v_and_b32 v2, 15, v0
  v_bfe_u32 v3, v0, 4, 2
  v_lshrrev_b32 v1, 6, v0
  v_lshlrev_b32 v1, 12, v1
  v_lshl_add_u32 v1, v3, 8, v1
  v_xor_b32 v{VT}, v2, v3
""")
    for p in range(4):
        a(f"  v_xor_b32 v{VT + 1}, {4 * p}, v{VT}")
        a(f"  v_lshl_add_u32 v{VDK + p}, v{VT + 1}, 4, v1")
    a(f"  v_lshlrev_b32 v{VT}, 1, v3")
    a(f"  v_xor_b32 v{VT}, v2, v{VT}")
    for p in range(2):
        a(f"  v_xor_b32 v{VT + 1}, {8 * p}, v{VT}")
        a(f"  v_lshl_add_u32 v{VDV + p}, v{VT + 1}, 4, v1")
    a(f"""
  s_mov_b32 s{SK + 2}, 0x80000
  s_mov_b32 s{SK + 3}, 0x20000
  s_mov_b32 s{SV + 2}, 0x80000
  s_mov_b32 s{SV + 3}, 0x20000
  s_mov_b32 s{SQ + 2}, 0x200000
  s_mov_b32 s{SQ + 3}, 0x20000
  s_lshl_b32 s{S_WR}, s{S_WAVE}, 12
  s_mov_b32 s{S_OFFK}, 0
  s_mov_b32 s{S_OFFV}, 0x80000
  s_lshl_b32 s{S_T + 2}, s{S_PAIR}, 2
  s_add_u32 s{S_T + 2}, s{S_T + 2}, s{S_WAVE}
  s_lshl_b32 s{S_T + 2}, s{S_T + 2}, 12
  v_lshlrev_b32 v{VT + 2}, 8, v2
  v_lshl_add_u32 v{VT + 2}, v3, 4, v{VT + 2}
  s_waitcnt lgkmcnt(0)
  s_add_u32 s{SK}, s{S_ARG + 2}, s{S_T}
  s_addc_u32 s{SK + 1}, s{S_ARG + 3}, 0
  s_add_u32 s{SV}, s{S_ARG + 4}, s{S_T}
  s_addc_u32 s{SV + 1}, s{S_ARG + 5}, 0
  s_mov_b32 s{SQ}, s{S_ARG}
  s_mov_b32 s{SQ + 1}, s{S_ARG + 1}
""")
    dma_unit(a, o, k=True, v=False)
    for s in range(4):
        a(f"  buffer_load_dwordx4 {vr(VQ + 4 * s, 4)}, v{VT + 2}, s[{SQ}:{SQ + 3}], s{S_T + 2} offen offset:{64 * s}")
    dma_unit(a, o, k=False, v=True)
    advance_wr(a, o)
    a(f"  s_mov_b32 s{S_OFFV}, 0")
    for u in range(1, ns - 1):
        dma_unit(a, o)
        advance_wr(a, o)
    a(f"  v_lshlrev_b32 v{VT}, 8, v2")
    a(f"  v_xor_b32 v{VT + 1}, v2, v3")
    for s in range(4):
        a(f"  v_xor_b32 v{VT + 3}, {4 * s}, v{VT + 1}")
        a(f"  v_lshl_add_u32 v{VKB + s}, v{VT + 3}, 4, v{VT}")
    a(f"""
  v_bfe_u32 v{VT}, v0, 2, 4
  v_and_b32 v{VT + 1}, 7, v{VT}
  v_lshlrev_b32 v{VT + 1}, 1, v{VT + 1}
  v_lshlrev_b32 v{VT}, 8, v{VT}
  v_and_b32 v{VT + 3}, 3, v0
  v_lshl_add_u32 v{VT}, v{VT + 3}, 3, v{VT}
""")
    for j in range(8):
        a(f"  v_xor_b32 v{VT + 3}, {2 * j}, v{VT + 1}")
        a(f"  v_lshl_add_u32 v{VVB + j}, v{VT + 3}, 4, v{VT}")
    for r in range(32):
        a(f"  v_mov_b32 v{VO + r}, 0")
    for r in range(8):
        a(f"  v_mov_b32 v{VP + r}, 0")
    a(f"""
  v_mov_b32 v{VM}, 0xff800000
  v_mov_b32 v{VL}, 0
  s_mov_b32 s{S_C}, {f32hex(c)}
  s_mov_b32 s{S_RD}, 0
  s_mov_b32 s{S_I}, 0
L_loop:
  s_waitcnt vmcnt({8 * (ns - 2)})
  s_barrier
""")
    for s in range(4):
        a(f"  v_add_u32 v{VKA + s}, s{S_RD}, v{VKB + s}")
    for t in range(4):
        for s in range(4):
            a(f"  ds_read_b128 {vr(VK + (t * 4 + s) * 4, 4)}, v{VKA + s} offset:{4096 * t}")
    for j in range(8):
        a(f"  v_add_u32 v{VVA + j}, s{S_RD}, v{VVB + j}")
    dma_unit(a, o)
    advance_wr(a, o)
    advance_rd(a, o)
    a("  s_waitcnt lgkmcnt(0)")
    vlist = []
    for kb in range(2):
        for j in range(8):
            for t in range(2):
                dst = VV + (kb * 8 + j) * 4 + 2 * t
                vlist.append(f"  ds_read_b64_tr_b16 {vr(dst, 2)}, v{VVA + j} offset:{TILE + 4096 * (2 * kb + t)}")
    n = 0
    for s in range(4):
        for t in range(4):
            cin = "0" if s == 0 else vr(VS + 4 * t, 4)
            a(f"  v_mfma_f32_16x16x32_bf16 {vr(VS + 4 * t, 4)}, {vr(VK + (t * 4 + s) * 4, 4)}, {vr(VQ + 4 * s, 4)}, {cin}")
            a(vlist[n]); a(vlist[n + 1]); n += 2
    a("  s_waitcnt lgkmcnt(0)")
    for kb in range(2):
        for j in range(8):
            pv_mfma(a, kb, j)
    t0, t1, mx, al = VT, VT + 1, VT + 2, VT + 3
    a(f"  v_max3_f32 v{mx}, v{VS}, v{VS + 1}, v{VS + 2}")
    for r in range(3, 15, 2):
        a(f"  v_max3_f32 v{mx}, v{mx}, v{VS + r}, v{VS + r + 1}")
    a(f"  v_max_f32 v{mx}, v{mx}, v{VS + 15}")
    xlane_reduce(a, "v_max_f32", mx, t0, t1)
    a(f"""
  v_mul_f32 v{mx}, s{S_C}, v{mx}
  v_max_f32 v{mx}, v{mx}, v{VM}
  v_sub_f32 v{al}, v{VM}, v{mx}
  v_exp_f32 v{al}, v{al}
  v_mov_b32 v{VM}, v{mx}
""")
    for r in range(16):
        a(f"  v_fma_f32 v{VS + r}, v{VS + r}, s{S_C}, -v{VM}")
    for r in range(16):
        a(f"  v_exp_f32 v{VS + r}, v{VS + r}")
    a(f"  v_mul_f32 v{VL}, v{VL}, v{al}")
    for r in range(32):
        a(f"  v_mul_f32 v{VO + r}, v{VO + r}, v{al}")
    for r in range(8):
        a(f"  v_cvt_pk_bf16_f32 v{VP + r}, v{VS + 2 * r}, v{VS + 2 * r + 1}")
    for r in range(0, 16, 2):
        a(f"  v_add_f32 v{VS + r}, v{VS + r}, v{VS + r + 1}")
    for r in range(0, 16, 4):
        a(f"  v_add_f32 v{VS + r}, v{VS + r}, v{VS + r + 2}")
    a(f"""
  v_add_f32 v{VS}, v{VS}, v{VS + 4}
  v_add_f32 v{VS + 8}, v{VS + 8}, v{VS + 12}
  v_add_f32 v{VS}, v{VS}, v{VS + 8}
  v_add_f32 v{VL}, v{VL}, v{VS}
  s_add_u32 s{S_I}, s{S_I}, 1
  s_cmp_lt_u32 s{S_I}, 32
  s_cbranch_scc1 L_loop
""")
    xlane_reduce(a, "v_add_f32", VL, t0, t1)
    for j in range(8):
        a(f"  v_add_u32 v{VVA + j}, s{S_RD}, v{VVB + j}")
    a(f"""
  s_mov_b32 s{SW}, s{S_ARG + 10}
  s_mov_b32 s{SW + 1}, s{S_ARG + 11}
  s_mov_b32 s{SW + 2}, 0x1000000
  s_mov_b32 s{SW + 3}, 0x20000
  s_lshl_b32 s{S_T}, s{S_PAIR}, 1
  s_add_u32 s{S_T}, s{S_T}, s{S_HALF}
  s_lshl_b32 s{S_T}, s{S_T}, 2
  s_add_u32 s{S_T}, s{S_T}, s{S_WAVE}
  s_lshl_b32 s{S_T + 1}, s{S_T}, 13
  s_lshl_b32 s{S_T + 2}, s{S_T}, 9
  s_add_u32 s{S_T + 2}, s{S_T + 2}, 0x800000
  s_add_u32 s{S_T + 3}, s{S_T + 1}, 4096
  v_lshlrev_b32 v{VT + 4}, 4, v{VLANE}
  v_lshlrev_b32 v{VT + 5}, 3, v{VLANE}
  s_waitcnt vmcnt({8 * (ns - 2)})
  s_barrier
""")
    stamp(a, o, 1)
    v_reads(a, 0)
    a("  s_waitcnt lgkmcnt(0)")
    v_reads(a, 1)
    for j in range(8):
        pv_mfma(a, 0, j)
    a("  s_waitcnt lgkmcnt(0)")
    for j in range(8):
        pv_mfma(a, 1, j)
    a(f"  buffer_store_dwordx2 {vr(VM, 2)}, v{VT + 5}, s[{SW}:{SW + 3}], s{S_T + 2} offen{o.staux}")
    a("  s_nop 1")
    for j in range(8):
        so = S_T + 1 if j < 4 else S_T + 3
        a(f"  buffer_store_dwordx4 {vr(VO + 4 * j, 4)}, v{VT + 4}, s[{SW}:{SW + 3}], s{so} offen offset:{1024 * (j & 3)}{o.staux}")
    if o.stamp:
        a("  s_waitcnt vmcnt(0)")
        stamp(a, o, 2)
        a(f"""
  s_waitcnt lgkmcnt(0)
  s_lshl_b32 s{S_T}, s2, 2
  s_add_u32 s{S_T}, s{S_T}, s{S_WAVE}
  s_lshl_b32 s{S_T}, s{S_T}, 5
  s_add_u32 s{S_T}, s{S_T}, 0xc00000
  v_mov_b32 v4, s{S_TS}
  v_mov_b32 v5, s{S_TS + 2}
  v_mov_b32 v6, s{S_TS + 4}
  s_getreg_b32 s{S_T + 1}, hwreg(HW_REG_XCC_ID)
  v_mov_b32 v7, s{S_T + 1}
  v_mov_b32 v8, 0
  buffer_store_dwordx4 v[4:7], v8, s[{SW}:{SW + 3}], s{S_T} offen
""")
    a("""
L_end_main:
  s_endpgm
""")


def combine_kernel(a, o, label):
    a(f"""
.globl {label}
.p2align 8
.type {label},@function
{label}:
  s_cmp_ge_u32 s2, 256
  s_cbranch_scc1 L_end_comb
  s_load_dwordx2 s[4:5], s[0:1], 40
  s_load_dwordx2 s[8:9], s[0:1], 24
  v_lshrrev_b32 v1, 6, v0
  v_and_b32 v2, 63, v0
  v_readfirstlane_b32 s20, v1
  s_and_b32 s21, s2, 7
  s_lshr_b32 s22, s2, 4
  s_lshl_b32 s22, s22, 3
  s_or_b32 s21, s21, s22
  s_bfe_u32 s22, s2, 0x10003
  s_mov_b32 s6, 0x1000000
  s_mov_b32 s7, 0x20000
  s_mov_b32 s10, 0x200000
  s_mov_b32 s11, 0x20000
  s_lshl_b32 s23, s21, 3
  s_add_u32 s23, s23, s20
  s_lshl_b32 s24, s23, 13
  s_lshl_b32 s25, s22, 12
  s_add_u32 s24, s24, s25
  s_add_u32 s25, s24, 32768
  s_lshl_b32 s26, s23, 9
  s_add_u32 s26, s26, 0x800000
  v_lshlrev_b32 v3, 4, v2
  v_lshlrev_b32 v4, 3, v2
  s_waitcnt lgkmcnt(0)
  buffer_load_dwordx2 v[6:7], v4, s[4:7], s26 offen
  buffer_load_dwordx2 v[8:9], v4, s[4:7], s26 offen offset:2048
""")
    for j in range(4):
        a(f"  buffer_load_dwordx4 {vr(12 + 4 * j, 4)}, v3, s[4:7], s24 offen offset:{1024 * j}")
        a(f"  buffer_load_dwordx4 {vr(28 + 4 * j, 4)}, v3, s[4:7], s25 offen offset:{1024 * j}")
    a(f"""
  s_lshl_b32 s27, s21, 2
  s_add_u32 s27, s27, s20
  s_lshl_b32 s27, s27, 12
  s_lshl_b32 s28, s22, 7
  s_add_u32 s27, s27, s28
  v_and_b32 v5, 15, v2
  v_lshlrev_b32 v5, 8, v5
  v_lshrrev_b32 v10, 4, v2
  v_lshl_add_u32 v5, v10, 3, v5
  s_waitcnt vmcnt(8)
  v_max_f32 v10, v6, v8
  v_sub_f32 v6, v6, v10
  v_sub_f32 v8, v8, v10
  v_exp_f32 v6, v6
  v_exp_f32 v8, v8
  s_nop 0
  v_mul_f32 v7, v7, v6
  v_fma_f32 v7, v9, v8, v7
  v_rcp_f32 v7, v7
  s_nop 0
  v_mul_f32 v6, v6, v7
  v_mul_f32 v8, v8, v7
""")
    for j in range(4):
        a(f"  s_waitcnt vmcnt({6 - 2 * j + j})")
        for r in range(4):
            a(f"  v_mul_f32 v{12 + 4 * j + r}, v{12 + 4 * j + r}, v6")
            a(f"  v_fma_f32 v{12 + 4 * j + r}, v{28 + 4 * j + r}, v8, v{12 + 4 * j + r}")
        a(f"  v_cvt_pk_bf16_f32 v{44 + 2 * j}, v{12 + 4 * j}, v{13 + 4 * j}")
        a(f"  v_cvt_pk_bf16_f32 v{45 + 2 * j}, v{14 + 4 * j}, v{15 + 4 * j}")
        a(f"  buffer_store_dwordx2 {vr(44 + 2 * j, 2)}, v5, s[8:11], s27 offen offset:{32 * j}")
    a("""
L_end_comb:
  s_endpgm
""")


def descriptor(a, label, nv, ns_):
    acc = (nv + 3) // 4 * 4
    a(f"""
.p2align 6
.amdhsa_kernel {label}
  .amdhsa_next_free_vgpr {nv}
  .amdhsa_next_free_sgpr {ns_}
  .amdhsa_accum_offset {acc}
  .amdhsa_group_segment_fixed_size 0
  .amdhsa_kernarg_size 48
  .amdhsa_user_sgpr_count 2
  .amdhsa_user_sgpr_kernarg_segment_ptr 1
  .amdhsa_system_sgpr_workgroup_id_x 1
.end_amdhsa_kernel
""")


def build(o):
    a = Asm()
    a(HEADER)
    main = f"{NAME}_kernel"
    comb = "gqa_combine_kernel"
    a(f"; @launch kernel={main} grid=(256,1,1) block=(256,1,1) lds={UNIT * o.ns}")
    a(f"; @launch kernel={comb} grid=(256,1,1) block=(256,1,1) lds=0")
    a('.amdgcn_target "amdgcn-amd-amdhsa--gfx950"')
    a(".text")
    main_kernel(a, o, main)
    combine_kernel(a, o, comb)
    a('.section .rodata,"a"')
    descriptor(a, main, NVGPR, 64)
    descriptor(a, comb, 56, 32)
    return a.text()


if __name__ == "__main__":
    ap = argparse.ArgumentParser()
    ap.add_argument("-o", default="cdna_kernels/" + NAME + ".s")
    ap.add_argument("--ns", type=int, default=4)
    ap.add_argument("--aux", default="nt")
    ap.add_argument("--staux", default="")
    ap.add_argument("--stamp", action="store_true")
    o = ap.parse_args()
    o.aux = (" " + o.aux.replace(",", " ")) if o.aux else ""
    o.staux = (" " + o.staux.replace(",", " ")) if o.staux else ""
    open(o.o, "w").write(build(o))
```

```python
import argparse
import math
import struct

NAME = "standalone__gqa_softmax__sampling"

HEADER = """; Kernarg layout for this problem (48 bytes, ptrs only, base s[0:1]):
"""


class Asm:
    def __init__(self):
        self.lines = []

    def __call__(self, s):
        for ln in s.strip("\n").split("\n"):
            self.lines.append(ln)

    def text(self):
        return "\n".join(self.lines) + "\n"


class LdsTracker:
    def __init__(self, a):
        self.a, self.issued, self.done = a, 0, 0

    def need(self, n):
        assert n <= self.issued
        if n > self.done:
            self.a(f"  s_waitcnt lgkmcnt({self.issued - n})")
            self.done = n

    def issue(self, line):
        if self.issued - self.done >= 15:
            self.need(self.issued - 11)
        self.a(line)
        self.issued += 1


def vr(a, n=1):
    return f"v{a}" if n == 1 else f"v[{a}:{a + n - 1}]"


def sr(a, n):
    return f"s[{a}:{a + n - 1}]"


def f32hex(x):
    return "0x%08x" % struct.unpack("<I", struct.pack("<f", x))[0]


VQ = 4
VO = 20
VS = 52
VP = 68
VK = 76
VV = 140
VKB = 204
VVB = 208
VKA = 216
VVA = 220
VM = 228
VL = 229
VT = 230
VLANE = 242
VHS = 243
VZ = 244
NVGPR = 248
VDK = 4
VDV = 8

SK = 4
SV = 8
SQ = 12
SW = 16
S_WAVE = 20
S_I = 21
S_OFFK = 22
S_OFFV = 23
S_RD = 25
S_C = 26
S_PAIR = 27
S_ARG = 28
S_HALF = 40
S_T = 41
S_TS = 48
SD = 60
S_HOOK = 64
S_MYBOX = 65
S_PBOX = 66
S_MYFLAG = 67
S_PFLAG = 68
S_OUT = 69
S_SH = 70
NSGPR = 80

TILE = 16384
UNIT = 32768
NS = 3
LDS_MODE = UNIT * NS
LDS_BYTES = UNIT * NS + 64

WS_FLAG = 0x900000
WS_ML = 0x800000
WS_STAMP = 0xC00000
WS_SIZE = 0x1000000


def stamp(a, o, idx):
    if o.stamp:
        a(f"  s_memrealtime s[{S_TS + 2 * idx}:{S_TS + 2 * idx + 1}]")


def xlane_ops(op, reg, t0, t1):
    return [
        f"  v_mov_b32 v{t0}, v{reg}",
        f"  v_mov_b32 v{t1}, v{reg}",
        "  s_nop 1",
        f"  v_permlane32_swap_b32 v{t0}, v{t1}",
        f"  {op} v{t0}, v{t0}, v{t1}",
        f"  v_mov_b32 v{t1}, v{t0}",
        "  s_nop 1",
        f"  v_permlane16_swap_b32 v{t0}, v{t1}",
        f"  {op} v{reg}, v{t0}, v{t1}",
    ]


def group(a, o, isv, first_piece, w, barrier_at, waits=True):
    srd, off = (SV, S_OFFV) if isv else (SK, S_OFFK)
    for p in range(4):
        if waits:
            a(f"  s_waitcnt vmcnt({w - 1})")
        elif p == 0:
            a("  s_nop 0")
        vo = VDV + (p & 1) if isv else VDK + p
        a(f"  buffer_load_dwordx4 v{vo}, {sr(srd, 4)}, s{off} offen offset:{1024 * p}{o.aux} lds")
        if barrier_at is not None and first_piece + p == barrier_at:
            a("  s_barrier")
    a(f"  s_add_u32 s{off}, s{off}, 4096")
    a("  s_add_u32 m0, m0, 4096")


def loader(a, o):
    w = o.w
    a(f"""
  s_setprio 3
  v_and_b32 v2, 15, v0
  v_lshrrev_b32 v3, 4, v0
  v_lshlrev_b32 v1, 8, v3
  v_xor_b32 v10, v2, v3
""")
    for p in range(4):
        a(f"  v_xor_b32 v11, {4 * p}, v10")
        a(f"  v_lshl_add_u32 v{VDK + p}, v11, 4, v1")
    a(f"""
  s_mov_b32 s{SK + 2}, 0x80000
  s_mov_b32 s{SK + 3}, 0x20000
  s_mov_b32 s{SV + 2}, 0x80000
  s_mov_b32 s{SV + 3}, 0x20000
  s_mov_b32 s{S_OFFK}, 0
  s_mov_b32 s{S_OFFV}, 0
  s_mov_b32 m0, 0
  v_lshlrev_b32 v10, 1, v3
  v_xor_b32 v10, v2, v10
  v_lshl_add_u32 v{VDV}, v10, 4, v1
  v_xor_b32 v11, 8, v10
  v_lshl_add_u32 v{VDV + 1}, v11, 4, v1
  s_lshl_b32 s{S_T}, s{S_PAIR}, 20
  s_lshl_b32 s{S_T + 1}, s{S_HALF}, 19
  s_or_b32 s{S_T}, s{S_T}, s{S_T + 1}
  s_mov_b32 s{S_I}, 1
  s_waitcnt lgkmcnt(0)
  s_add_u32 s{SK}, s{S_ARG + 2}, s{S_T}
  s_addc_u32 s{SK + 1}, s{S_ARG + 3}, 0
  s_add_u32 s{SV}, s{S_ARG + 4}, s{S_T}
  s_addc_u32 s{SV + 1}, s{S_ARG + 5}, 0
""")
    for g in range(4):
        group(a, o, False, 4 * g, w, None, waits=(4 * g + 3 >= w))
    a(f"  s_mov_b32 m0, {UNIT}")
    a("L_ld_loop:")
    for g in range(8):
        group(a, o, g >= 4, 4 * g, w, w - 1)
    a(f"""
  s_cmp_ge_u32 m0, {UNIT * NS}
  s_cselect_b32 m0, 0, m0
  s_add_u32 s{S_I}, s{S_I}, 1
  s_cmp_lt_u32 s{S_I}, 32
  s_cbranch_scc1 L_ld_loop
  s_add_u32 m0, m0, {TILE}
""")
    for g in range(4):
        group(a, o, True, 4 * g, o.wend, o.wend - 1)
    if o.wend - 1 >= 16:
        a("  s_waitcnt vmcnt(16)")
        a("  s_barrier")
    a("""
  s_waitcnt vmcnt(0)
  s_barrier
  s_endpgm
""")


def v_read(kb, j, t):
    dst = VV + (kb * 8 + j) * 4 + 2 * t
    return f"  ds_read_b64_tr_b16 {vr(dst, 2)}, v{VVA + j} offset:{TILE + 4096 * (2 * kb + t)}"


def pv_mfma(kb, j):
    return f"  v_mfma_f32_16x16x32_bf16 {vr(VO + 4 * j, 4)}, {vr(VV + (kb * 8 + j) * 4, 4)}, {vr(VP + 4 * kb, 4)}, {vr(VO + 4 * j, 4)}"


def qk_mfma(t, s):
    cin = "0" if s == 0 else vr(VS + 4 * t, 4)
    return f"  v_mfma_f32_16x16x32_bf16 {vr(VS + 4 * t, 4)}, {vr(VK + (t * 4 + s) * 4, 4)}, {vr(VQ + 4 * s, 4)}, {cin}"


def compute(a, o):
    c = (128 ** -0.5) * math.log2(math.e)
    t0, t1, mx, al = VT, VT + 1, VT + 2, VT + 3
    a(f"""
L_compute:
  s_sub_u32 s{S_WAVE}, s{S_WAVE}, 1
  v_and_b32 v{VLANE}, 63, v0
  v_and_b32 v2, 15, v0
  v_bfe_u32 v3, v0, 4, 2
  s_mov_b32 s{SQ + 2}, 0x200000
  s_mov_b32 s{SQ + 3}, 0x20000
  s_mov_b32 s{SW + 2}, {WS_SIZE}
  s_mov_b32 s{SW + 3}, 0x20000
  s_mov_b32 s{SD + 2}, 256
  s_mov_b32 s{SD + 3}, 0x20000
  s_lshl_b32 s{S_OUT}, s{S_PAIR}, 2
  s_add_u32 s{S_OUT}, s{S_OUT}, s{S_WAVE}
  s_lshl_b32 s{S_OUT}, s{S_OUT}, 12
  s_lshl_b32 s{S_T}, s{S_PAIR}, 1
  s_add_u32 s{S_T}, s{S_T}, s{S_HALF}
  s_lshl_b32 s{S_T}, s{S_T}, 2
  s_add_u32 s{S_MYBOX}, s{S_T}, s{S_WAVE}
  s_xor_b32 s{S_PBOX}, s{S_MYBOX}, 4
  s_lshl_b32 s{S_MYFLAG}, s{S_MYBOX}, 8
  s_add_u32 s{S_MYFLAG}, s{S_MYFLAG}, {WS_FLAG}
  s_lshl_b32 s{S_PFLAG}, s{S_PBOX}, 8
  s_add_u32 s{S_PFLAG}, s{S_PFLAG}, {WS_FLAG}
  v_lshlrev_b32 v{VT + 2}, 8, v2
  v_lshl_add_u32 v{VT + 2}, v3, 4, v{VT + 2}
  v_mov_b32 v{VZ}, 0
  v_and_b32 v{VT + 4}, 31, v0
  v_lshlrev_b32 v{VT + 4}, 2, v{VT + 4}
  s_waitcnt lgkmcnt(0)
  s_mov_b32 s{SQ}, s{S_ARG}
  s_mov_b32 s{SQ + 1}, s{S_ARG + 1}
  s_mov_b32 s{SW}, s{S_ARG + 10}
  s_mov_b32 s{SW + 1}, s{S_ARG + 11}
  s_mov_b32 s{SD}, s{S_ARG + 8}
  s_mov_b32 s{SD + 1}, s{S_ARG + 9}
""")
    for s in range(4):
        a(f"  buffer_load_dwordx4 {vr(VQ + 4 * s, 4)}, v{VT + 2}, {sr(SQ, 4)}, s{S_OUT} offen offset:{64 * s}{o.qaux}")
    a(f"  buffer_store_dword v{VZ}, v{VT + 4}, {sr(SW, 4)}, s{S_MYFLAG} offen sc1")
    a(f"  v_lshlrev_b32 v{VT}, 8, v2")
    a(f"  v_xor_b32 v{VT + 1}, v2, v3")
    for s in range(4):
        a(f"  v_xor_b32 v{VT + 3}, {4 * s}, v{VT + 1}")
        a(f"  v_lshl_add_u32 v{VKB + s}, v{VT + 3}, 4, v{VT}")
    a(f"""
  v_bfe_u32 v{VT}, v0, 2, 4
  v_and_b32 v{VT + 1}, 7, v{VT}
  v_lshlrev_b32 v{VT + 1}, 1, v{VT + 1}
  v_lshlrev_b32 v{VT}, 8, v{VT}
  v_and_b32 v{VT + 3}, 3, v0
  v_lshl_add_u32 v{VT}, v{VT + 3}, 3, v{VT}
""")
    for j in range(8):
        a(f"  v_xor_b32 v{VT + 3}, {2 * j}, v{VT + 1}")
        a(f"  v_lshl_add_u32 v{VVB + j}, v{VT + 3}, 4, v{VT}")
    for r in range(32):
        a(f"  v_mov_b32 v{VO + r}, 0")
    for r in range(8):
        a(f"  v_mov_b32 v{VP + r}, 0")
    a(f"  v_subrev_u32 v{VT}, 64, v0")
    a(f"  v_lshlrev_b32 v{VT}, 4, v{VT}")
    for p in range(4):
        a(f"  ds_write_b128 v{VT}, {vr(VO, 4)} offset:{TILE + 4096 * p}")
    a(f"""
  v_mov_b32 v{VM}, 0xff800000
  v_mov_b32 v{VL}, 0
  s_mov_b32 s{S_C}, {f32hex(c)}
  s_mov_b32 s{S_RD}, 0
  s_mov_b32 s{S_I}, 0
  s_cmp_eq_u32 s{S_WAVE}, 0
  s_cselect_b32 s{S_HOOK}, 0, -1
  s_mov_b32 s{SQ}, s{S_ARG + 6}
  s_mov_b32 s{SQ + 1}, s{S_ARG + 7}
  s_waitcnt vmcnt(0) lgkmcnt(0)
L_loop:
""")
    for s in range(4):
        a(f"  v_add_u32 v{VKA + s}, s{S_RD}, v{VKB + s}")
    for j in range(8):
        a(f"  v_add_u32 v{VVA + j}, s{S_RD}, v{VVB + j}")
    a(f"""
  s_add_u32 s{S_RD}, s{S_RD}, {UNIT}
  s_cmp_ge_u32 s{S_RD}, {UNIT * NS}
  s_cselect_b32 s{S_RD}, 0, s{S_RD}
  s_barrier
""")
    if o.stamp:
        for idx, it in ((3, 0), (4, 8), (5, 16)):
            a(f"  s_cmp_lg_u32 s{S_I}, {it}")
            a(f"  s_cbranch_scc1 L_nostamp{idx}")
            stamp(a, o, idx)
            a("  s_waitcnt lgkmcnt(0)")
            a(f"L_nostamp{idx}:")
    kreads = [f"  ds_read_b128 {vr(VK + (t * 4 + s) * 4, 4)}, v{VKA + s} offset:{4096 * t}" for t in range(4) for s in range(4)]
    vreads = [v_read(kb, j, t) for kb in range(2) for j in range(8) for t in range(2)]
    lds = LdsTracker(a)
    for r in kreads[:12]:
        lds.issue(r)
    pend = kreads[12:] + vreads
    for t in range(4):
        lds.need(4 * (t + 1))
        for s in range(4):
            a(qk_mfma(t, s))
            n = 1 if t == 0 else 2
            for _ in range(n):
                if pend:
                    lds.issue(pend.pop(0))
    valu = []
    valu.append(f"  v_max3_f32 v{mx}, v{VS}, v{VS + 1}, v{VS + 2}")
    for r in range(3, 15, 2):
        valu.append(f"  v_max3_f32 v{mx}, v{mx}, v{VS + r}, v{VS + r + 1}")
    valu.append(f"  v_max_f32 v{mx}, v{mx}, v{VS + 15}")
    valu += xlane_ops("v_max_f32", mx, t0, t1)
    valu += [
        f"  v_mul_f32 v{mx}, s{S_C}, v{mx}",
        f"  v_max_f32 v{mx}, v{mx}, v{VM}",
        f"  v_sub_f32 v{al}, v{VM}, v{mx}",
        f"  v_exp_f32 v{al}, v{al}",
        f"  v_mov_b32 v{VM}, v{mx}",
    ]
    for r in range(16):
        valu.append(f"  v_fma_f32 v{VS + r}, v{VS + r}, s{S_C}, -v{VM}")
    for r in range(16):
        valu.append(f"  v_exp_f32 v{VS + r}, v{VS + r}")
    k = 0
    for kb in range(2):
        for j in range(8):
            n = kb * 8 + j
            if j % 2 == 0:
                lds.need(16 + 2 * (n + 2))
            a(pv_mfma(kb, j))
            for _ in range(2):
                if pend:
                    lds.issue(pend.pop(0))
            if n >= 4:
                for _ in range(3):
                    a(valu[k]); k += 1
    assert not pend
    for x in valu[k:]:
        a(x)
    a(f"  v_mul_f32 v{VL}, v{VL}, v{al}")
    for r in range(8):
        a(f"  v_cvt_pk_bf16_f32 v{VP + r}, v{VS + 2 * r}, v{VS + 2 * r + 1}")
    for r in range(32):
        a(f"  v_mul_f32 v{VO + r}, v{VO + r}, v{al}")
    for r in range(0, 16, 2):
        a(f"  v_add_f32 v{VS + r}, v{VS + r}, v{VS + r + 1}")
    for r in range(0, 16, 4):
        a(f"  v_add_f32 v{VS + r}, v{VS + r}, v{VS + r + 2}")
    a(f"""
  v_add_f32 v{VS}, v{VS}, v{VS + 4}
  v_add_f32 v{VS + 8}, v{VS + 8}, v{VS + 12}
  v_add_f32 v{VS}, v{VS}, v{VS + 8}
  v_add_f32 v{VL}, v{VL}, v{VS}
  s_cmp_eq_u32 s{S_I}, s{S_HOOK}
  s_cbranch_scc1 L_hook
L_hook_ret:
  s_add_u32 s{S_I}, s{S_I}, 1
  s_cmp_lt_u32 s{S_I}, 32
  s_cbranch_scc1 L_loop
""")
    for x in xlane_ops("v_add_f32", VL, t0, t1):
        a(x)
    for j in range(8):
        a(f"  v_add_u32 v{VVA + j}, s{S_RD}, v{VVB + j}")
    a(f"""
  v_mov_b32 v{VT + 6}, {LDS_MODE}
  ds_read_b32 v{VHS}, v{VT + 6}
  v_lshlrev_b32 v{VT + 4}, 4, v{VLANE}
  v_lshlrev_b32 v{VT + 5}, 3, v{VLANE}
  v_and_b32 v{VT + 7}, 31, v{VLANE}
  v_lshlrev_b32 v{VT + 7}, 2, v{VT + 7}
  v_and_b32 v{VT + 8}, 15, v{VLANE}
  v_lshlrev_b32 v{VT + 8}, 8, v{VT + 8}
  v_lshrrev_b32 v{VT + 9}, 4, v{VLANE}
  v_lshl_add_u32 v{VT + 8}, v{VT + 9}, 3, v{VT + 8}
  s_waitcnt lgkmcnt(0)
  v_readfirstlane_b32 s{S_SH}, v{VHS}
  s_barrier
""")
    stamp(a, o, 1)
    if o.stamp:
        a("  s_waitcnt lgkmcnt(0)")
    vreads = [v_read(kb, j, t) for kb in range(2) for j in range(8) for t in range(2)]
    for r in vreads[:14]:
        a(r)
    issued = 14
    for n in range(16):
        a(f"  s_waitcnt lgkmcnt({issued - 2 * (n + 1)})")
        a(pv_mfma(n // 8, n % 8))
        for _ in range(2):
            if issued < 32:
                a(vreads[issued]); issued += 1
    a(f"""
  s_cmp_eq_u32 s{S_SH}, 0
  s_cbranch_scc0 L_second
  s_lshl_b32 s{S_T + 1}, s{S_MYBOX}, 13
  s_add_u32 s{S_T + 3}, s{S_T + 1}, 4096
  s_lshl_b32 s{S_T + 2}, s{S_MYBOX}, 9
  s_add_u32 s{S_T + 2}, s{S_T + 2}, {WS_ML}
  buffer_store_dwordx2 {vr(VM, 2)}, v{VT + 5}, {sr(SW, 4)}, s{S_T + 2} offen sc1
""")
    for j in range(8):
        so = S_T + 1 if j < 4 else S_T + 3
        a(f"  buffer_store_dwordx4 {vr(VO + 4 * j, 4)}, v{VT + 4}, {sr(SW, 4)}, s{so} offen offset:{1024 * (j & 3)} sc1")
    a(f"""
  v_mov_b32 v{VT}, 1
  s_waitcnt vmcnt(0)
  buffer_store_dword v{VT}, v{VT + 7}, {sr(SW, 4)}, s{S_MYFLAG} offen sc1
  s_branch L_done
L_second:
  s_lshl_b32 s{S_T + 1}, s{S_PBOX}, 13
  s_add_u32 s{S_T + 3}, s{S_T + 1}, 4096
  s_lshl_b32 s{S_T + 2}, s{S_PBOX}, 9
  s_add_u32 s{S_T + 2}, s{S_T + 2}, {WS_ML}
  s_mov_b32 s{S_I}, 0x100000
L_poll:
  buffer_load_dword v{VT}, v{VZ}, {sr(SW, 4)}, s{S_PFLAG} offen sc1
  s_sub_u32 s{S_I}, s{S_I}, 1
  s_cbranch_scc1 L_end
  s_waitcnt vmcnt(0)
  v_cmp_eq_u32 vcc, 1, v{VT}
  s_cbranch_vccz L_poll
  buffer_load_dwordx2 {vr(VT, 2)}, v{VT + 5}, {sr(SW, 4)}, s{S_T + 2} offen sc1
""")
    for j in range(8):
        so = S_T + 1 if j < 4 else S_T + 3
        a(f"  buffer_load_dwordx4 {vr(VK + 4 * j, 4)}, v{VT + 4}, {sr(SW, 4)}, s{so} offen offset:{1024 * (j & 3)} sc1")
    m2, l2, mm = VT, VT + 1, VT + 2
    a(f"""
  s_waitcnt vmcnt(8)
  v_max_f32 v{mm}, v{VM}, v{m2}
  v_sub_f32 v{VM}, v{VM}, v{mm}
  v_sub_f32 v{m2}, v{m2}, v{mm}
  v_exp_f32 v{VM}, v{VM}
  v_exp_f32 v{m2}, v{m2}
  s_nop 0
  v_mul_f32 v{VL}, v{VL}, v{VM}
  v_mul_f32 v{l2}, v{l2}, v{m2}
  v_add_f32 v{VL}, v{VL}, v{l2}
  v_rcp_f32 v{VL}, v{VL}
  s_nop 0
  v_mul_f32 v{VM}, v{VM}, v{VL}
  v_mul_f32 v{m2}, v{m2}, v{VL}
""")
    for r in range(32):
        a(f"  v_mul_f32 v{VO + r}, v{VO + r}, v{VM}")
    for j in range(8):
        a(f"  s_waitcnt vmcnt(7)")
        for r in range(4):
            a(f"  v_mul_f32 v{VK + 4 * j + r}, v{VK + 4 * j + r}, v{m2}")
        for r in range(4):
            a(f"  v_add_f32 v{VO + 4 * j + r}, v{VO + 4 * j + r}, v{VK + 4 * j + r}")
        a(f"  v_cvt_pk_bf16_f32 v{VS + 2 * j}, v{VO + 4 * j}, v{VO + 4 * j + 1}")
        a(f"  v_cvt_pk_bf16_f32 v{VS + 2 * j + 1}, v{VO + 4 * j + 2}, v{VO + 4 * j + 3}")
        a(f"  buffer_store_dwordx2 {vr(VS + 2 * j, 2)}, v{VT + 8}, {sr(SQ, 4)}, s{S_OUT} offen offset:{32 * j}{o.oaux}")
    a("L_done:")
    if o.stamp:
        a("  s_waitcnt vmcnt(0)")
        stamp(a, o, 2)
        a(f"""
  s_waitcnt lgkmcnt(0)
  s_lshl_b32 s{S_T}, s2, 2
  s_add_u32 s{S_T}, s{S_T}, s{S_WAVE}
  s_lshl_b32 s{S_T}, s{S_T}, 5
  s_add_u32 s{S_T}, s{S_T}, {WS_STAMP}
  v_mov_b32 v4, s{S_TS}
  v_mov_b32 v5, s{S_TS + 2}
  v_mov_b32 v6, s{S_TS + 4}
  s_getreg_b32 s{S_T + 1}, hwreg(HW_REG_XCC_ID)
  v_mov_b32 v7, s{S_T + 1}
  buffer_store_dwordx4 v[4:7], v{VZ}, {sr(SW, 4)}, s{S_T} offen
  v_mov_b32 v12, s{S_TS + 6}
  v_mov_b32 v13, s{S_TS + 8}
  v_mov_b32 v14, s{S_TS + 10}
  v_mov_b32 v15, s{S_SH}
  buffer_store_dwordx4 v[12:15], v{VZ}, {sr(SW, 4)}, s{S_T} offen offset:16
""")
    a(f"""
L_end:
  s_endpgm
L_hook:
  s_cmp_eq_u32 s{S_I}, 0
  s_cbranch_scc0 L_hook2
  s_and_b32 s{S_SH}, s{S_PAIR}, 3
  s_lshl_b32 s{S_SH}, s{S_SH}, 3
  s_lshl_b32 s{S_T}, 1, s{S_SH}
  s_and_b32 s{S_T + 1}, s{S_PAIR}, 0x7c
  v_mov_b32 v{VHS}, s{S_T}
  s_mov_b64 exec, 1
  buffer_atomic_add v{VHS}, v{VZ}, {sr(SD, 4)}, s{S_T + 1} offen sc0 sc1
  s_mov_b64 exec, -1
  s_mov_b32 s{S_HOOK}, 12
  s_branch L_hook_ret
L_hook2:
  s_waitcnt vmcnt(0)
  v_lshrrev_b32 v{VHS}, s{S_SH}, v{VHS}
  v_and_b32 v{VHS}, 0xff, v{VHS}
  v_mov_b32 v{VT}, {LDS_MODE}
  s_mov_b64 exec, 1
  ds_write_b32 v{VT}, v{VHS}
  s_mov_b64 exec, -1
  s_waitcnt lgkmcnt(0)
  s_branch L_hook_ret
""")


def build(o):
    a = Asm()
    a(HEADER)
    label = f"{NAME}_kernel"
    a(f"; @launch grid=(256,1,1) block=(320,1,1) lds={LDS_BYTES}")
    a('.amdgcn_target "amdgcn-amd-amdhsa--gfx950"')
    a(f"""
.text
.globl {label}
.p2align 8
.type {label},@function
{label}:
  s_cmp_ge_u32 s2, 256
  s_cbranch_scc1 L_end
  s_load_dwordx8 s[{S_ARG}:{S_ARG + 7}], s[0:1], 0
  s_load_dwordx4 s[{S_ARG + 8}:{S_ARG + 11}], s[0:1], 32
""")
    stamp(a, o, 0)
    a(f"  v_readfirstlane_b32 s{S_WAVE}, v0")
    if o.map == 0:
        a(f"""
  s_and_b32 s{S_T}, s2, 7
  s_lshr_b32 s{S_T + 1}, s2, 4
  s_lshl_b32 s{S_T + 1}, s{S_T + 1}, 3
  s_or_b32 s{S_PAIR}, s{S_T}, s{S_T + 1}
  s_bfe_u32 s{S_HALF}, s2, 0x10003
""")
    elif o.map == 1:
        a(f"""
  s_lshr_b32 s{S_PAIR}, s2, 1
  s_and_b32 s{S_HALF}, s2, 1
""")
    a(f"""
  s_lshr_b32 s{S_WAVE}, s{S_WAVE}, 6
  s_cmp_lg_u32 s{S_WAVE}, 0
  s_cbranch_scc1 L_compute
""")
    loader(a, o)
    compute(a, o)
    a(f"""
.section .rodata,"a"
.p2align 6
.amdhsa_kernel {label}
  .amdhsa_next_free_vgpr {NVGPR}
  .amdhsa_next_free_sgpr {NSGPR}
  .amdhsa_accum_offset {NVGPR}
  .amdhsa_group_segment_fixed_size 0
  .amdhsa_kernarg_size 48
  .amdhsa_user_sgpr_count 2
  .amdhsa_user_sgpr_kernarg_segment_ptr 1
  .amdhsa_system_sgpr_workgroup_id_x 1
.end_amdhsa_kernel
""")
    return a.text()


if __name__ == "__main__":
    ap = argparse.ArgumentParser()
    ap.add_argument("-o", default="cdna_kernels/" + NAME + ".s")
    ap.add_argument("--w", type=int, default=22)
    ap.add_argument("--wend", type=int, default=0)
    ap.add_argument("--aux", default="nt")
    ap.add_argument("--qaux", default="")
    ap.add_argument("--oaux", default="")
    ap.add_argument("--stamp", action="store_true")
    ap.add_argument("--map", type=int, default=0)
    o = ap.parse_args()
    o.wend = o.wend or o.w
    fx = lambda s: (" " + s.replace(",", " ")) if s else ""
    o.aux, o.qaux, o.oaux = fx(o.aux), fx(o.qaux), fx(o.oaux)
    open(o.o, "w").write(build(o))
```

```python
import argparse
import math
import struct

NAME = "standalone__gqa_softmax__sampling"

HEADER = """; Kernarg layout for this problem (48 bytes, ptrs only, base s[0:1]):
"""


class Asm:
    def __init__(self):
        self.lines = []

    def __call__(self, s):
        for ln in s.strip("\n").split("\n"):
            self.lines.append(ln)

    def text(self):
        return "\n".join(self.lines) + "\n"


class LdsTracker:
    def __init__(self, a):
        self.a, self.issued, self.done = a, 0, 0

    def need(self, n):
        assert n <= self.issued
        if n > self.done:
            self.a(f"  s_waitcnt lgkmcnt({self.issued - n})")
            self.done = n

    def issue(self, line):
        if self.issued - self.done >= 15:
            self.need(self.issued - 11)
        self.a(line)
        self.issued += 1


def vr(a, n=1):
    return f"v{a}" if n == 1 else f"v[{a}:{a + n - 1}]"


def sr(a, n):
    return f"s[{a}:{a + n - 1}]"


def f32hex(x):
    return "0x%08x" % struct.unpack("<I", struct.pack("<f", x))[0]


VQ = 4
VO = 20
VS = 52
VP = 68
VK = 76
VV = 140
VKB = 204
VVB = 208
VKA = 216
VVA = 220
VM = 228
VL = 229
VT = 230
VLANE = 242
VHS = 243
VZ = 244
NVGPR = 248
VDK = 4
VDV = 8

SK = 4
SV = 8
SQ = 12
SW = 16
S_WAVE = 20
S_I = 21
S_OFFK = 22
S_OFFV = 23
S_RD = 25
S_C = 26
S_PAIR = 27
S_ARG = 28
S_HALF = 40
S_T = 41
S_TS = 48
SD = 60
S_HOOK = 64
S_MYBOX = 65
S_PBOX = 66
S_MYFLAG = 67
S_PFLAG = 68
S_OUT = 69
S_SH = 70
NSGPR = 80

TILE = 16384
UNIT = 32768
NS = 3
LDS_MODE = UNIT * NS
LDS_BYTES = UNIT * NS + 64

WS_FLAG = 0x900000
WS_ML = 0x800000
WS_STAMP = 0xC00000
WS_SIZE = 0x1000000


def stamp(a, o, idx):
    if o.stamp:
        a(f"  s_memrealtime s[{S_TS + 2 * idx}:{S_TS + 2 * idx + 1}]")


def xlane_ops(op, reg, t0, t1):
    return [
        f"  v_mov_b32 v{t0}, v{reg}",
        f"  v_mov_b32 v{t1}, v{reg}",
        "  s_nop 1",
        f"  v_permlane32_swap_b32 v{t0}, v{t1}",
        f"  {op} v{t0}, v{t0}, v{t1}",
        f"  v_mov_b32 v{t1}, v{t0}",
        "  s_nop 1",
        f"  v_permlane16_swap_b32 v{t0}, v{t1}",
        f"  {op} v{reg}, v{t0}, v{t1}",
    ]


def group(a, o, isv, first_piece, w, barrier_at, waits=True):
    srd, off = (SV, S_OFFV) if isv else (SK, S_OFFK)
    for p in range(4):
        if waits:
            a(f"  s_waitcnt vmcnt({w - 1})")
        elif p == 0:
            a("  s_nop 0")
        vo = VDV + (p & 1) if isv else VDK + p
        a(f"  buffer_load_dwordx4 v{vo}, {sr(srd, 4)}, s{off} offen offset:{1024 * p}{o.aux} lds")
        if barrier_at is not None and first_piece + p == barrier_at:
            a("  s_barrier")
    a(f"  s_add_u32 s{off}, s{off}, 4096")
    a("  s_add_u32 m0, m0, 4096")


def loader(a, o):
    w = o.w
    a(f"""
  s_setprio 3
  v_and_b32 v2, 15, v0
  v_lshrrev_b32 v3, 4, v0
  v_lshlrev_b32 v1, 8, v3
  v_xor_b32 v10, v2, v3
""")
    for p in range(4):
        a(f"  v_xor_b32 v11, {4 * p}, v10")
        a(f"  v_lshl_add_u32 v{VDK + p}, v11, 4, v1")
    a(f"""
  s_mov_b32 s{SK + 2}, 0x80000
  s_mov_b32 s{SK + 3}, 0x20000
  s_mov_b32 s{SV + 2}, 0x80000
  s_mov_b32 s{SV + 3}, 0x20000
  s_mov_b32 s{S_OFFK}, 0
  s_mov_b32 s{S_OFFV}, 0
  s_mov_b32 m0, 0
  v_lshlrev_b32 v10, 1, v3
  v_xor_b32 v10, v2, v10
  v_lshl_add_u32 v{VDV}, v10, 4, v1
  v_xor_b32 v11, 8, v10
  v_lshl_add_u32 v{VDV + 1}, v11, 4, v1
  s_lshl_b32 s{S_T}, s{S_PAIR}, 20
  s_lshl_b32 s{S_T + 1}, s{S_HALF}, 19
  s_or_b32 s{S_T}, s{S_T}, s{S_T + 1}
  s_mov_b32 s{S_I}, 1
  s_waitcnt lgkmcnt(0)
  s_add_u32 s{SK}, s{S_ARG + 2}, s{S_T}
  s_addc_u32 s{SK + 1}, s{S_ARG + 3}, 0
  s_add_u32 s{SV}, s{S_ARG + 4}, s{S_T}
  s_addc_u32 s{SV + 1}, s{S_ARG + 5}, 0
""")
    for g in range(4):
        group(a, o, False, 4 * g, w, None, waits=(4 * g + 3 >= w))
    a(f"  s_mov_b32 m0, {UNIT}")
    a("L_ld_loop:")
    for g in range(8):
        group(a, o, g >= 4, 4 * g, w, w - 1)
    a(f"""
  s_cmp_ge_u32 m0, {UNIT * NS}
  s_cselect_b32 m0, 0, m0
  s_add_u32 s{S_I}, s{S_I}, 1
  s_cmp_lt_u32 s{S_I}, 32
  s_cbranch_scc1 L_ld_loop
  s_add_u32 m0, m0, {TILE}
""")
    for g in range(4):
        group(a, o, True, 4 * g, o.wend, o.wend - 1)
    if o.wend - 1 >= 16:
        a("  s_waitcnt vmcnt(16)")
        a("  s_barrier")
    a("""
  s_waitcnt vmcnt(0)
  s_barrier
  s_endpgm
""")


def v_read(kb, j, t):
    dst = VV + (kb * 8 + j) * 4 + 2 * t
    return f"  ds_read_b64_tr_b16 {vr(dst, 2)}, v{VVA + j} offset:{TILE + 4096 * (2 * kb + t)}"


def pv_mfma(kb, j):
    return f"  v_mfma_f32_16x16x32_bf16 {vr(VO + 4 * j, 4)}, {vr(VV + (kb * 8 + j) * 4, 4)}, {vr(VP + 4 * kb, 4)}, {vr(VO + 4 * j, 4)}"


def qk_mfma(t, s):
    cin = "0" if s == 0 else vr(VS + 4 * t, 4)
    return f"  v_mfma_f32_16x16x32_bf16 {vr(VS + 4 * t, 4)}, {vr(VK + (t * 4 + s) * 4, 4)}, {vr(VQ + 4 * s, 4)}, {cin}"


def diag(a, o):
    ts = lambda i: S_TS + 2 * i
    a(f"""
  s_mov_b64 exec, 1
  s_not_b32 s{S_T}, s{ts(0)}
  v_mov_b32 v4, s{S_T}
  buffer_atomic_umax v4, v{VZ}, {sr(SD, 4)}, 0 offen offset:128 sc1
""")
    for i in range(6):
        a(f"  v_mov_b32 v{5 + i}, s{ts(i)}")
        a(f"  buffer_atomic_umax v{5 + i}, v{VZ}, {sr(SD, 4)}, 0 offen offset:{132 + 4 * i} sc1")
        a(f"  buffer_atomic_add v{5 + i}, v{VZ}, {sr(SD, 4)}, 0 offen offset:{160 + 4 * i} sc1")
    kind, idx = o.diag.split(":")
    idx = int(idx)
    a(f"""
  s_or_b32 s{S_T}, s2, s{S_WAVE}
  s_cmp_lg_u32 s{S_T}, 0
  s_cbranch_scc1 L_end
  s_add_u32 s{S_T + 1}, s{ts(0)}, 19000
L_dg1:
  s_memrealtime s[{S_T + 3}:{S_T + 4}]
  s_waitcnt lgkmcnt(0)
  s_sub_u32 s{S_T + 3}, s{S_T + 3}, s{S_T + 1}
  s_cmp_lt_i32 s{S_T + 3}, 0
  s_cbranch_scc1 L_dg1
  buffer_load_dword v4, v{VZ}, {sr(SD, 4)}, 0 offen offset:128 sc1
  buffer_load_dword v5, v{VZ}, {sr(SD, 4)}, 0 offen offset:{(132 if kind != "mean" else 160) + 4 * idx} sc1
  s_waitcnt vmcnt(0)
  v_readfirstlane_b32 s{S_T}, v4
  v_readfirstlane_b32 s{S_T + 1}, v5
  s_not_b32 s{S_T}, s{S_T}
""")
    if kind == "zero":
        a(f"  s_mov_b32 s{S_T + 1}, 0")
    elif kind == "max":
        a(f"  s_sub_u32 s{S_T + 1}, s{S_T + 1}, s{S_T}")
    else:
        a(f"  s_lshl_b32 s{S_T + 2}, s{S_T}, 10")
        a(f"  s_sub_u32 s{S_T + 1}, s{S_T + 1}, s{S_T + 2}")
        a(f"  s_lshr_b32 s{S_T + 1}, s{S_T + 1}, 10")
    a(f"""
  s_min_u32 s{S_T + 1}, s{S_T + 1}, 10000
  s_add_u32 s{S_T + 1}, s{S_T + 1}, 20000
  s_sub_u32 s{S_T + 2}, s{ts(0)}, s{S_T}
  s_min_u32 s{S_T + 2}, s{S_T + 2}, 1000
  s_sub_u32 s{S_T}, s{ts(0)}, s{S_T + 2}
  s_add_u32 s{S_T + 1}, s{S_T + 1}, s{S_T}
L_dg2:
  s_memrealtime s[{S_T + 3}:{S_T + 4}]
  s_waitcnt lgkmcnt(0)
  s_sub_u32 s{S_T + 3}, s{S_T + 3}, s{S_T + 1}
  s_cmp_lt_i32 s{S_T + 3}, 0
  s_cbranch_scc1 L_dg2
""")


def compute(a, o):
    c = (128 ** -0.5) * math.log2(math.e)
    t0, t1, mx, al = VT, VT + 1, VT + 2, VT + 3
    a(f"""
L_compute:
  s_sub_u32 s{S_WAVE}, s{S_WAVE}, 1
  v_and_b32 v{VLANE}, 63, v0
  v_and_b32 v2, 15, v0
  v_bfe_u32 v3, v0, 4, 2
  s_mov_b32 s{SQ + 2}, 0x200000
  s_mov_b32 s{SQ + 3}, 0x20000
  s_mov_b32 s{SW + 2}, {WS_SIZE}
  s_mov_b32 s{SW + 3}, 0x20000
  s_mov_b32 s{SD + 2}, 256
  s_mov_b32 s{SD + 3}, 0x20000
  s_lshl_b32 s{S_OUT}, s{S_PAIR}, 2
  s_add_u32 s{S_OUT}, s{S_OUT}, s{S_WAVE}
  s_lshl_b32 s{S_OUT}, s{S_OUT}, 12
  s_lshl_b32 s{S_T}, s{S_PAIR}, 1
  s_add_u32 s{S_T}, s{S_T}, s{S_HALF}
  s_lshl_b32 s{S_T}, s{S_T}, 2
  s_add_u32 s{S_MYBOX}, s{S_T}, s{S_WAVE}
  s_xor_b32 s{S_PBOX}, s{S_MYBOX}, 4
  s_lshl_b32 s{S_MYFLAG}, s{S_MYBOX}, 8
  s_add_u32 s{S_MYFLAG}, s{S_MYFLAG}, {WS_FLAG}
  s_lshl_b32 s{S_PFLAG}, s{S_PBOX}, 8
  s_add_u32 s{S_PFLAG}, s{S_PFLAG}, {WS_FLAG}
  v_lshlrev_b32 v{VT + 2}, 8, v2
  v_lshl_add_u32 v{VT + 2}, v3, 4, v{VT + 2}
  v_mov_b32 v{VZ}, 0
  v_and_b32 v{VT + 4}, 31, v0
  v_lshlrev_b32 v{VT + 4}, 2, v{VT + 4}
  s_waitcnt lgkmcnt(0)
  s_mov_b32 s{SQ}, s{S_ARG}
  s_mov_b32 s{SQ + 1}, s{S_ARG + 1}
  s_mov_b32 s{SW}, s{S_ARG + 10}
  s_mov_b32 s{SW + 1}, s{S_ARG + 11}
  s_mov_b32 s{SD}, s{S_ARG + 8}
  s_mov_b32 s{SD + 1}, s{S_ARG + 9}
""")
    for s in range(4):
        a(f"  buffer_load_dwordx4 {vr(VQ + 4 * s, 4)}, v{VT + 2}, {sr(SQ, 4)}, s{S_OUT} offen offset:{64 * s}{o.qaux}")
    a(f"  buffer_store_dword v{VZ}, v{VT + 4}, {sr(SW, 4)}, s{S_MYFLAG} offen sc1")
    a(f"  v_lshlrev_b32 v{VT}, 8, v2")
    a(f"  v_xor_b32 v{VT + 1}, v2, v3")
    for s in range(4):
        a(f"  v_xor_b32 v{VT + 3}, {4 * s}, v{VT + 1}")
        a(f"  v_lshl_add_u32 v{VKB + s}, v{VT + 3}, 4, v{VT}")
    a(f"""
  v_bfe_u32 v{VT}, v0, 2, 4
  v_and_b32 v{VT + 1}, 7, v{VT}
  v_lshlrev_b32 v{VT + 1}, 1, v{VT + 1}
  v_lshlrev_b32 v{VT}, 8, v{VT}
  v_and_b32 v{VT + 3}, 3, v0
  v_lshl_add_u32 v{VT}, v{VT + 3}, 3, v{VT}
""")
    for j in range(8):
        a(f"  v_xor_b32 v{VT + 3}, {2 * j}, v{VT + 1}")
        a(f"  v_lshl_add_u32 v{VVB + j}, v{VT + 3}, 4, v{VT}")
    for r in range(32):
        a(f"  v_mov_b32 v{VO + r}, 0")
    for r in range(8):
        a(f"  v_mov_b32 v{VP + r}, 0")
    a(f"  v_subrev_u32 v{VT}, 64, v0")
    a(f"  v_lshlrev_b32 v{VT}, 4, v{VT}")
    for p in range(4):
        a(f"  ds_write_b128 v{VT}, {vr(VO, 4)} offset:{TILE + 4096 * p}")
    a(f"""
  v_mov_b32 v{VM}, 0xff800000
  v_mov_b32 v{VL}, 0
  s_mov_b32 s{S_C}, {f32hex(c)}
  s_mov_b32 s{S_RD}, 0
  s_mov_b32 s{S_I}, 0
  s_cmp_eq_u32 s{S_WAVE}, 0
  s_cselect_b32 s{S_HOOK}, 0, -1
  s_mov_b32 s{SQ}, s{S_ARG + 6}
  s_mov_b32 s{SQ + 1}, s{S_ARG + 7}
  s_waitcnt vmcnt(0) lgkmcnt(0)
L_loop:
""")
    for s in range(4):
        a(f"  v_add_u32 v{VKA + s}, s{S_RD}, v{VKB + s}")
    for j in range(8):
        a(f"  v_add_u32 v{VVA + j}, s{S_RD}, v{VVB + j}")
    a(f"""
  s_add_u32 s{S_RD}, s{S_RD}, {UNIT}
  s_cmp_ge_u32 s{S_RD}, {UNIT * NS}
  s_cselect_b32 s{S_RD}, 0, s{S_RD}
  s_barrier
""")
    if o.stamp:
        for idx, it in ((3, 0), (4, 8), (5, 16)):
            a(f"  s_cmp_lg_u32 s{S_I}, {it}")
            a(f"  s_cbranch_scc1 L_nostamp{idx}")
            stamp(a, o, idx)
            a("  s_waitcnt lgkmcnt(0)")
            a(f"L_nostamp{idx}:")
    kreads = [f"  ds_read_b128 {vr(VK + (t * 4 + s) * 4, 4)}, v{VKA + s} offset:{4096 * t}" for t in range(4) for s in range(4)]
    vreads = [v_read(kb, j, t) for kb in range(2) for j in range(8) for t in range(2)]
    lds = LdsTracker(a)
    for r in kreads[:12]:
        lds.issue(r)
    pend = kreads[12:] + vreads
    for t in range(4):
        lds.need(4 * (t + 1))
        for s in range(4):
            a(qk_mfma(t, s))
            n = 1 if t == 0 else 2
            for _ in range(n):
                if pend:
                    lds.issue(pend.pop(0))
    valu = []
    valu.append(f"  v_max3_f32 v{mx}, v{VS}, v{VS + 1}, v{VS + 2}")
    for r in range(3, 15, 2):
        valu.append(f"  v_max3_f32 v{mx}, v{mx}, v{VS + r}, v{VS + r + 1}")
    valu.append(f"  v_max_f32 v{mx}, v{mx}, v{VS + 15}")
    valu += xlane_ops("v_max_f32", mx, t0, t1)
    valu += [
        f"  v_mul_f32 v{mx}, s{S_C}, v{mx}",
        f"  v_max_f32 v{mx}, v{mx}, v{VM}",
        f"  v_sub_f32 v{al}, v{VM}, v{mx}",
        f"  v_exp_f32 v{al}, v{al}",
        f"  v_mov_b32 v{VM}, v{mx}",
    ]
    for r in range(16):
        valu.append(f"  v_fma_f32 v{VS + r}, v{VS + r}, s{S_C}, -v{VM}")
    for r in range(16):
        valu.append(f"  v_exp_f32 v{VS + r}, v{VS + r}")
    k = 0
    for kb in range(2):
        for j in range(8):
            n = kb * 8 + j
            if j % 2 == 0:
                lds.need(16 + 2 * (n + 2))
            a(pv_mfma(kb, j))
            for _ in range(2):
                if pend:
                    lds.issue(pend.pop(0))
            if n >= 4:
                for _ in range(3):
                    a(valu[k]); k += 1
    assert not pend
    for x in valu[k:]:
        a(x)
    a(f"  v_mul_f32 v{VL}, v{VL}, v{al}")
    for r in range(8):
        a(f"  v_cvt_pk_bf16_f32 v{VP + r}, v{VS + 2 * r}, v{VS + 2 * r + 1}")
    for r in range(32):
        a(f"  v_mul_f32 v{VO + r}, v{VO + r}, v{al}")
    for r in range(0, 16, 2):
        a(f"  v_add_f32 v{VS + r}, v{VS + r}, v{VS + r + 1}")
    for r in range(0, 16, 4):
        a(f"  v_add_f32 v{VS + r}, v{VS + r}, v{VS + r + 2}")
    a(f"""
  v_add_f32 v{VS}, v{VS}, v{VS + 4}
  v_add_f32 v{VS + 8}, v{VS + 8}, v{VS + 12}
  v_add_f32 v{VS}, v{VS}, v{VS + 8}
  v_add_f32 v{VL}, v{VL}, v{VS}
  s_cmp_eq_u32 s{S_I}, s{S_HOOK}
  s_cbranch_scc1 L_hook
L_hook_ret:
  s_add_u32 s{S_I}, s{S_I}, 1
  s_cmp_lt_u32 s{S_I}, 32
  s_cbranch_scc1 L_loop
""")
    for x in xlane_ops("v_add_f32", VL, t0, t1):
        a(x)
    for j in range(8):
        a(f"  v_add_u32 v{VVA + j}, s{S_RD}, v{VVB + j}")
    a(f"""
  v_mov_b32 v{VT + 6}, {LDS_MODE}
  ds_read_b32 v{VHS}, v{VT + 6}
  v_lshlrev_b32 v{VT + 4}, 4, v{VLANE}
  v_lshlrev_b32 v{VT + 5}, 3, v{VLANE}
  v_and_b32 v{VT + 7}, 31, v{VLANE}
  v_lshlrev_b32 v{VT + 7}, 2, v{VT + 7}
  v_and_b32 v{VT + 8}, 15, v{VLANE}
  v_lshlrev_b32 v{VT + 8}, 8, v{VT + 8}
  v_lshrrev_b32 v{VT + 9}, 4, v{VLANE}
  v_lshl_add_u32 v{VT + 8}, v{VT + 9}, 3, v{VT + 8}
  s_waitcnt lgkmcnt(0)
  v_readfirstlane_b32 s{S_SH}, v{VHS}
  s_barrier
""")
    stamp(a, o, 1)
    if o.stamp:
        a("  s_waitcnt lgkmcnt(0)")
    vreads = [v_read(kb, j, t) for kb in range(2) for j in range(8) for t in range(2)]
    for r in vreads[:14]:
        a(r)
    issued = 14
    for n in range(16):
        a(f"  s_waitcnt lgkmcnt({issued - 2 * (n + 1)})")
        a(pv_mfma(n // 8, n % 8))
        for _ in range(2):
            if issued < 32:
                a(vreads[issued]); issued += 1
    a(f"""
  s_cmp_eq_u32 s{S_SH}, 0
  s_cbranch_scc0 L_second
  s_lshl_b32 s{S_T + 1}, s{S_MYBOX}, 13
  s_add_u32 s{S_T + 3}, s{S_T + 1}, 4096
  s_lshl_b32 s{S_T + 2}, s{S_MYBOX}, 9
  s_add_u32 s{S_T + 2}, s{S_T + 2}, {WS_ML}
  buffer_store_dwordx2 {vr(VM, 2)}, v{VT + 5}, {sr(SW, 4)}, s{S_T + 2} offen sc1
""")
    for j in range(8):
        so = S_T + 1 if j < 4 else S_T + 3
        a(f"  buffer_store_dwordx4 {vr(VO + 4 * j, 4)}, v{VT + 4}, {sr(SW, 4)}, s{so} offen offset:{1024 * (j & 3)} sc1")
    a(f"""
  v_mov_b32 v{VT}, 1
  s_waitcnt vmcnt(0)
  buffer_store_dword v{VT}, v{VT + 7}, {sr(SW, 4)}, s{S_MYFLAG} offen sc1
  s_branch L_done
L_second:
  s_lshl_b32 s{S_T + 1}, s{S_PBOX}, 13
  s_add_u32 s{S_T + 3}, s{S_T + 1}, 4096
  s_lshl_b32 s{S_T + 2}, s{S_PBOX}, 9
  s_add_u32 s{S_T + 2}, s{S_T + 2}, {WS_ML}
  s_mov_b32 s{S_I}, 0x100000
L_poll:
  buffer_load_dword v{VT}, v{VZ}, {sr(SW, 4)}, s{S_PFLAG} offen sc1
  s_sub_u32 s{S_I}, s{S_I}, 1
  s_cbranch_scc1 L_end
  s_waitcnt vmcnt(0)
  v_cmp_eq_u32 vcc, 1, v{VT}
  s_cbranch_vccz L_poll
  buffer_load_dwordx2 {vr(VT, 2)}, v{VT + 5}, {sr(SW, 4)}, s{S_T + 2} offen sc1
""")
    for j in range(8):
        so = S_T + 1 if j < 4 else S_T + 3
        a(f"  buffer_load_dwordx4 {vr(VK + 4 * j, 4)}, v{VT + 4}, {sr(SW, 4)}, s{so} offen offset:{1024 * (j & 3)} sc1")
    m2, l2, mm = VT, VT + 1, VT + 2
    a(f"""
  s_waitcnt vmcnt(8)
  v_max_f32 v{mm}, v{VM}, v{m2}
  v_sub_f32 v{VM}, v{VM}, v{mm}
  v_sub_f32 v{m2}, v{m2}, v{mm}
  v_exp_f32 v{VM}, v{VM}
  v_exp_f32 v{m2}, v{m2}
  s_nop 0
  v_mul_f32 v{VL}, v{VL}, v{VM}
  v_mul_f32 v{l2}, v{l2}, v{m2}
  v_add_f32 v{VL}, v{VL}, v{l2}
  v_rcp_f32 v{VL}, v{VL}
  s_nop 0
  v_mul_f32 v{VM}, v{VM}, v{VL}
  v_mul_f32 v{m2}, v{m2}, v{VL}
""")
    for r in range(32):
        a(f"  v_mul_f32 v{VO + r}, v{VO + r}, v{VM}")
    for j in range(8):
        a(f"  s_waitcnt vmcnt(7)")
        for r in range(4):
            a(f"  v_mul_f32 v{VK + 4 * j + r}, v{VK + 4 * j + r}, v{m2}")
        for r in range(4):
            a(f"  v_add_f32 v{VO + 4 * j + r}, v{VO + 4 * j + r}, v{VK + 4 * j + r}")
        a(f"  v_cvt_pk_bf16_f32 v{VS + 2 * j}, v{VO + 4 * j}, v{VO + 4 * j + 1}")
        a(f"  v_cvt_pk_bf16_f32 v{VS + 2 * j + 1}, v{VO + 4 * j + 2}, v{VO + 4 * j + 3}")
        a(f"  buffer_store_dwordx2 {vr(VS + 2 * j, 2)}, v{VT + 8}, {sr(SQ, 4)}, s{S_OUT} offen offset:{32 * j}{o.oaux}")
    a("L_done:")
    if o.stamp:
        a("  s_waitcnt vmcnt(0)")
        stamp(a, o, 2)
        a(f"""
  s_waitcnt lgkmcnt(0)
  s_lshl_b32 s{S_T}, s2, 2
  s_add_u32 s{S_T}, s{S_T}, s{S_WAVE}
  s_lshl_b32 s{S_T}, s{S_T}, 5
  s_add_u32 s{S_T}, s{S_T}, {WS_STAMP}
  v_mov_b32 v4, s{S_TS}
  v_mov_b32 v5, s{S_TS + 2}
  v_mov_b32 v6, s{S_TS + 4}
  s_getreg_b32 s{S_T + 1}, hwreg(HW_REG_XCC_ID)
  v_mov_b32 v7, s{S_T + 1}
  buffer_store_dwordx4 v[4:7], v{VZ}, {sr(SW, 4)}, s{S_T} offen
  v_mov_b32 v12, s{S_TS + 6}
  v_mov_b32 v13, s{S_TS + 8}
  v_mov_b32 v14, s{S_TS + 10}
  v_mov_b32 v15, s{S_SH}
  buffer_store_dwordx4 v[12:15], v{VZ}, {sr(SW, 4)}, s{S_T} offen offset:16
""")
    if o.diag:
        diag(a, o)
    a(f"""
L_end:
  s_endpgm
L_hook:
  s_cmp_eq_u32 s{S_I}, 0
  s_cbranch_scc0 L_hook2
  s_and_b32 s{S_SH}, s{S_PAIR}, 3
  s_lshl_b32 s{S_SH}, s{S_SH}, 3
  s_lshl_b32 s{S_T}, 1, s{S_SH}
  s_and_b32 s{S_T + 1}, s{S_PAIR}, 0x7c
  v_mov_b32 v{VHS}, s{S_T}
  s_mov_b64 exec, 1
  buffer_atomic_xor v{VHS}, v{VZ}, {sr(SD, 4)}, s{S_T + 1} offen sc0 sc1
  s_mov_b64 exec, -1
  s_mov_b32 s{S_HOOK}, 12
  s_branch L_hook_ret
L_hook2:
  s_waitcnt vmcnt(0)
  v_lshrrev_b32 v{VHS}, s{S_SH}, v{VHS}
  v_and_b32 v{VHS}, 0xff, v{VHS}
  v_mov_b32 v{VT}, {LDS_MODE}
  s_mov_b64 exec, 1
  ds_write_b32 v{VT}, v{VHS}
  s_mov_b64 exec, -1
  s_waitcnt lgkmcnt(0)
  s_branch L_hook_ret
""")


def build(o):
    a = Asm()
    a(HEADER)
    label = f"{NAME}_kernel"
    a(f"; @launch grid=(256,1,1) block=(320,1,1) lds={LDS_BYTES}")
    a('.amdgcn_target "amdgcn-amd-amdhsa--gfx950"')
    a(f"""
.text
.globl {label}
.p2align 8
.type {label},@function
{label}:
  s_cmp_ge_u32 s2, 256
  s_cbranch_scc1 L_end
  s_load_dwordx8 s[{S_ARG}:{S_ARG + 7}], s[0:1], 0
  s_load_dwordx4 s[{S_ARG + 8}:{S_ARG + 11}], s[0:1], 32
""")
    stamp(a, o, 0)
    a(f"  v_readfirstlane_b32 s{S_WAVE}, v0")
    if o.map == 0:
        a(f"""
  s_and_b32 s{S_T}, s2, 7
  s_lshr_b32 s{S_T + 1}, s2, 4
  s_lshl_b32 s{S_T + 1}, s{S_T + 1}, 3
  s_or_b32 s{S_PAIR}, s{S_T}, s{S_T + 1}
  s_bfe_u32 s{S_HALF}, s2, 0x10003
""")
    elif o.map == 1:
        a(f"""
  s_lshr_b32 s{S_PAIR}, s2, 1
  s_and_b32 s{S_HALF}, s2, 1
""")
    a(f"""
  s_lshr_b32 s{S_WAVE}, s{S_WAVE}, 6
  s_cmp_lg_u32 s{S_WAVE}, 0
  s_cbranch_scc1 L_compute
""")
    loader(a, o)
    compute(a, o)
    a(f"""
.section .rodata,"a"
.p2align 6
.amdhsa_kernel {label}
  .amdhsa_next_free_vgpr {NVGPR}
  .amdhsa_next_free_sgpr {NSGPR}
  .amdhsa_accum_offset {NVGPR}
  .amdhsa_group_segment_fixed_size 0
  .amdhsa_kernarg_size 48
  .amdhsa_user_sgpr_count 2
  .amdhsa_user_sgpr_kernarg_segment_ptr 1
  .amdhsa_system_sgpr_workgroup_id_x 1
.end_amdhsa_kernel
""")
    return a.text()


if __name__ == "__main__":
    ap = argparse.ArgumentParser()
    ap.add_argument("-o", default="cdna_kernels/" + NAME + ".s")
    ap.add_argument("--w", type=int, default=22)
    ap.add_argument("--wend", type=int, default=0)
    ap.add_argument("--aux", default="nt")
    ap.add_argument("--qaux", default="")
    ap.add_argument("--oaux", default="")
    ap.add_argument("--stamp", action="store_true")
    ap.add_argument("--map", type=int, default=0)
    ap.add_argument("--diag", default="")
    o = ap.parse_args()
    o.wend = o.wend or o.w
    o.stamp = o.stamp or bool(o.diag)
    fx = lambda s: (" " + s.replace(",", " ")) if s else ""
    o.aux, o.qaux, o.oaux = fx(o.aux), fx(o.qaux), fx(o.oaux)
    open(o.o, "w").write(build(o))
```

```python
import argparse
import math
import struct

NAME = "standalone__gqa_softmax__sampling"

HEADER = """; Kernarg layout for this problem (48 bytes, ptrs only, base s[0:1]):
"""


class Asm:
    def __init__(self):
        self.lines = []

    def __call__(self, s):
        for ln in s.strip("\n").split("\n"):
            self.lines.append(ln)

    def text(self):
        return "\n".join(self.lines) + "\n"


class LdsTracker:
    def __init__(self, a):
        self.a, self.issued, self.done = a, 0, 0

    def need(self, n):
        assert n <= self.issued
        if n > self.done:
            self.a(f"  s_waitcnt lgkmcnt({self.issued - n})")
            self.done = n

    def issue(self, line):
        if self.issued - self.done >= 15:
            self.need(self.issued - 11)
        self.a(line)
        self.issued += 1


def vr(a, n=1):
    return f"v{a}" if n == 1 else f"v[{a}:{a + n - 1}]"


def sr(a, n):
    return f"s[{a}:{a + n - 1}]"


def f32hex(x):
    return "0x%08x" % struct.unpack("<I", struct.pack("<f", x))[0]


VQ = 4
VO = 20
VS = 52
VP = 68
VK = 76
VV = 140
VKB = 204
VVB = 208
VKA = 216
VVA = 220
VM = 228
VL = 229
VT = 230
VLANE = 242
VHS = 243
VZ = 244
NVGPR = 248
VDK = 4
VDV = 8

SK = 4
SV = 8
SQ = 12
SW = 16
S_WAVE = 20
S_I = 21
S_OFFK = 22
S_OFFV = 23
S_RD = 25
S_C = 26
S_PAIR = 27
S_ARG = 28
S_HALF = 40
S_T = 41
S_TS = 48
SD = 60
S_HOOK = 64
S_MYBOX = 65
S_PBOX = 66
S_MYFLAG = 67
S_PFLAG = 68
S_OUT = 69
S_SH = 70
NSGPR = 80

TILE = 16384
UNIT = 32768
NS = 3
LDS_MODE = UNIT * NS
LDS_BYTES = UNIT * NS + 64

WS_FLAG = 0x900000
WS_ML = 0x800000
WS_STAMP = 0xC00000
WS_SIZE = 0x1000000


def stamp(a, o, idx):
    if o.stamp:
        a(f"  s_memrealtime s[{S_TS + 2 * idx}:{S_TS + 2 * idx + 1}]")


def xlane_ops(op, reg, t0, t1):
    return [
        f"  v_mov_b32 v{t0}, v{reg}",
        f"  v_mov_b32 v{t1}, v{reg}",
        "  s_nop 1",
        f"  v_permlane32_swap_b32 v{t0}, v{t1}",
        f"  {op} v{t0}, v{t0}, v{t1}",
        f"  v_mov_b32 v{t1}, v{t0}",
        "  s_nop 1",
        f"  v_permlane16_swap_b32 v{t0}, v{t1}",
        f"  {op} v{reg}, v{t0}, v{t1}",
    ]


def group(a, o, isv, first_piece, w, barrier_at, waits=True):
    srd, off = (SV, S_OFFV) if isv else (SK, S_OFFK)
    for p in range(4):
        if waits:
            a(f"  s_waitcnt vmcnt({w - 1})")
        elif p == 0:
            a("  s_nop 0")
        vo = VDV + (p & 1) if isv else VDK + p
        a(f"  buffer_load_dwordx4 v{vo}, {sr(srd, 4)}, s{off} offen offset:{1024 * p}{o.aux} lds")
        if barrier_at is not None and first_piece + p == barrier_at:
            a("  s_barrier")
    a(f"  s_add_u32 s{off}, s{off}, 4096")
    a("  s_add_u32 m0, m0, 4096")


def loader(a, o):
    w = o.w
    a(f"""
  s_setprio 3
  v_and_b32 v2, 15, v0
  v_lshrrev_b32 v3, 4, v0
  v_lshlrev_b32 v1, 8, v3
  v_xor_b32 v10, v2, v3
""")
    for p in range(4):
        a(f"  v_xor_b32 v11, {4 * p}, v10")
        a(f"  v_lshl_add_u32 v{VDK + p}, v11, 4, v1")
    a(f"""
  s_mov_b32 s{SK + 2}, 0x80000
  s_mov_b32 s{SK + 3}, 0x20000
  s_mov_b32 s{SV + 2}, 0x80000
  s_mov_b32 s{SV + 3}, 0x20000
  s_mov_b32 s{S_OFFK}, 0
  s_mov_b32 s{S_OFFV}, 0
  s_mov_b32 m0, 0
  v_lshlrev_b32 v10, 1, v3
  v_xor_b32 v10, v2, v10
  v_lshl_add_u32 v{VDV}, v10, 4, v1
  v_xor_b32 v11, 8, v10
  v_lshl_add_u32 v{VDV + 1}, v11, 4, v1
  s_lshl_b32 s{S_T}, s{S_PAIR}, 20
  s_lshl_b32 s{S_T + 1}, s{S_HALF}, 19
  s_or_b32 s{S_T}, s{S_T}, s{S_T + 1}
  s_mov_b32 s{S_I}, 1
  s_waitcnt lgkmcnt(0)
  s_add_u32 s{SK}, s{S_ARG + 2}, s{S_T}
  s_addc_u32 s{SK + 1}, s{S_ARG + 3}, 0
  s_add_u32 s{SV}, s{S_ARG + 4}, s{S_T}
  s_addc_u32 s{SV + 1}, s{S_ARG + 5}, 0
""")
    for g in range(4):
        group(a, o, False, 4 * g, w, None, waits=(4 * g + 3 >= w))
    a(f"  s_mov_b32 m0, {UNIT}")
    a("L_ld_loop:")
    for g in range(8):
        group(a, o, g >= 4, 4 * g, w, w - 1)
    a(f"""
  s_cmp_ge_u32 m0, {UNIT * NS}
  s_cselect_b32 m0, 0, m0
  s_add_u32 s{S_I}, s{S_I}, 1
  s_cmp_lt_u32 s{S_I}, 32
  s_cbranch_scc1 L_ld_loop
  s_add_u32 m0, m0, {TILE}
""")
    for g in range(4):
        group(a, o, True, 4 * g, o.wend, o.wend - 1)
    if o.wend - 1 >= 16:
        a("  s_waitcnt vmcnt(16)")
        a("  s_barrier")
    a("""
  s_waitcnt vmcnt(0)
  s_barrier
  s_endpgm
""")


def v_read(kb, j, t):
    dst = VV + (kb * 8 + j) * 4 + 2 * t
    return f"  ds_read_b64_tr_b16 {vr(dst, 2)}, v{VVA + j} offset:{TILE + 4096 * (2 * kb + t)}"


def pv_mfma(kb, j):
    return f"  v_mfma_f32_16x16x32_bf16 {vr(VO + 4 * j, 4)}, {vr(VV + (kb * 8 + j) * 4, 4)}, {vr(VP + 4 * kb, 4)}, {vr(VO + 4 * j, 4)}"


def qk_mfma(t, s):
    cin = "0" if s == 0 else vr(VS + 4 * t, 4)
    return f"  v_mfma_f32_16x16x32_bf16 {vr(VS + 4 * t, 4)}, {vr(VK + (t * 4 + s) * 4, 4)}, {vr(VQ + 4 * s, 4)}, {cin}"


def diag(a, o):
    ts = lambda i: S_TS + 2 * i
    kind, idx = o.diag.split(":")
    idx = int(idx)
    a(f"""
  s_add_u32 s{S_T + 1}, s{ts(0)}, 8000
L_dg0:
  s_sleep 8
  s_memrealtime s[{S_T + 3}:{S_T + 4}]
  s_waitcnt lgkmcnt(0)
  s_sub_u32 s{S_T + 3}, s{S_T + 3}, s{S_T + 1}
  s_cmp_lt_i32 s{S_T + 3}, 0
  s_cbranch_scc1 L_dg0
  s_mov_b64 exec, 1
  s_not_b32 s{S_T}, s{ts(0)}
  v_mov_b32 v4, s{S_T}
  buffer_atomic_umax v4, v{VZ}, {sr(SD, 4)}, 0 offen offset:128 sc1
  v_mov_b32 v5, s{ts(idx)}
  buffer_atomic_umax v5, v{VZ}, {sr(SD, 4)}, 0 offen offset:{132 + 4 * idx} sc1
  buffer_atomic_add v5, v{VZ}, {sr(SD, 4)}, 0 offen offset:{160 + 4 * idx} sc1
""")
    a(f"""
  s_or_b32 s{S_T}, s2, s{S_WAVE}
  s_cmp_lg_u32 s{S_T}, 0
  s_cbranch_scc1 L_end
  s_add_u32 s{S_T + 1}, s{ts(0)}, 19000
L_dg1:
  s_memrealtime s[{S_T + 3}:{S_T + 4}]
  s_waitcnt lgkmcnt(0)
  s_sub_u32 s{S_T + 3}, s{S_T + 3}, s{S_T + 1}
  s_cmp_lt_i32 s{S_T + 3}, 0
  s_cbranch_scc1 L_dg1
  buffer_load_dword v4, v{VZ}, {sr(SD, 4)}, 0 offen offset:128 sc1
  buffer_load_dword v5, v{VZ}, {sr(SD, 4)}, 0 offen offset:{(132 if kind != "mean" else 160) + 4 * idx} sc1
  s_waitcnt vmcnt(0)
  v_readfirstlane_b32 s{S_T}, v4
  v_readfirstlane_b32 s{S_T + 1}, v5
  s_not_b32 s{S_T}, s{S_T}
""")
    if kind == "zero":
        a(f"  s_mov_b32 s{S_T + 1}, 0")
    elif kind == "max":
        a(f"  s_sub_u32 s{S_T + 1}, s{S_T + 1}, s{S_T}")
    else:
        a(f"  s_lshl_b32 s{S_T + 2}, s{S_T}, 10")
        a(f"  s_sub_u32 s{S_T + 1}, s{S_T + 1}, s{S_T + 2}")
        a(f"  s_lshr_b32 s{S_T + 1}, s{S_T + 1}, 10")
    a(f"""
  s_min_u32 s{S_T + 1}, s{S_T + 1}, 10000
  s_add_u32 s{S_T + 1}, s{S_T + 1}, 20000
  s_sub_u32 s{S_T + 2}, s{ts(0)}, s{S_T}
  s_min_u32 s{S_T + 2}, s{S_T + 2}, 1000
  s_sub_u32 s{S_T}, s{ts(0)}, s{S_T + 2}
  s_add_u32 s{S_T + 1}, s{S_T + 1}, s{S_T}
L_dg2:
  s_memrealtime s[{S_T + 3}:{S_T + 4}]
  s_waitcnt lgkmcnt(0)
  s_sub_u32 s{S_T + 3}, s{S_T + 3}, s{S_T + 1}
  s_cmp_lt_i32 s{S_T + 3}, 0
  s_cbranch_scc1 L_dg2
""")


def compute(a, o):
    c = (128 ** -0.5) * math.log2(math.e)
    t0, t1, mx, al = VT, VT + 1, VT + 2, VT + 3
    a(f"""
L_compute:
  s_sub_u32 s{S_WAVE}, s{S_WAVE}, 1
  v_and_b32 v{VLANE}, 63, v0
  v_and_b32 v2, 15, v0
  v_bfe_u32 v3, v0, 4, 2
  s_mov_b32 s{SQ + 2}, 0x200000
  s_mov_b32 s{SQ + 3}, 0x20000
  s_mov_b32 s{SW + 2}, {WS_SIZE}
  s_mov_b32 s{SW + 3}, 0x20000
  s_mov_b32 s{SD + 2}, 256
  s_mov_b32 s{SD + 3}, 0x20000
  s_lshl_b32 s{S_OUT}, s{S_PAIR}, 2
  s_add_u32 s{S_OUT}, s{S_OUT}, s{S_WAVE}
  s_lshl_b32 s{S_OUT}, s{S_OUT}, 12
  s_lshl_b32 s{S_T}, s{S_PAIR}, 1
  s_add_u32 s{S_T}, s{S_T}, s{S_HALF}
  s_lshl_b32 s{S_T}, s{S_T}, 2
  s_add_u32 s{S_MYBOX}, s{S_T}, s{S_WAVE}
  s_xor_b32 s{S_PBOX}, s{S_MYBOX}, 4
  s_lshl_b32 s{S_MYFLAG}, s{S_MYBOX}, 8
  s_add_u32 s{S_MYFLAG}, s{S_MYFLAG}, {WS_FLAG}
  s_lshl_b32 s{S_PFLAG}, s{S_PBOX}, 8
  s_add_u32 s{S_PFLAG}, s{S_PFLAG}, {WS_FLAG}
  v_lshlrev_b32 v{VT + 2}, 8, v2
  v_lshl_add_u32 v{VT + 2}, v3, 4, v{VT + 2}
  v_mov_b32 v{VZ}, 0
  v_and_b32 v{VT + 4}, 31, v0
  v_lshlrev_b32 v{VT + 4}, 2, v{VT + 4}
  s_waitcnt lgkmcnt(0)
  s_mov_b32 s{SQ}, s{S_ARG}
  s_mov_b32 s{SQ + 1}, s{S_ARG + 1}
  s_mov_b32 s{SW}, s{S_ARG + 10}
  s_mov_b32 s{SW + 1}, s{S_ARG + 11}
  s_mov_b32 s{SD}, s{S_ARG + 8}
  s_mov_b32 s{SD + 1}, s{S_ARG + 9}
""")
    for s in range(4):
        a(f"  buffer_load_dwordx4 {vr(VQ + 4 * s, 4)}, v{VT + 2}, {sr(SQ, 4)}, s{S_OUT} offen offset:{64 * s}{o.qaux}")
    a(f"  buffer_store_dword v{VZ}, v{VT + 4}, {sr(SW, 4)}, s{S_MYFLAG} offen sc1")
    a(f"  v_lshlrev_b32 v{VT}, 8, v2")
    a(f"  v_xor_b32 v{VT + 1}, v2, v3")
    for s in range(4):
        a(f"  v_xor_b32 v{VT + 3}, {4 * s}, v{VT + 1}")
        a(f"  v_lshl_add_u32 v{VKB + s}, v{VT + 3}, 4, v{VT}")
    a(f"""
  v_bfe_u32 v{VT}, v0, 2, 4
  v_and_b32 v{VT + 1}, 7, v{VT}
  v_lshlrev_b32 v{VT + 1}, 1, v{VT + 1}
  v_lshlrev_b32 v{VT}, 8, v{VT}
  v_and_b32 v{VT + 3}, 3, v0
  v_lshl_add_u32 v{VT}, v{VT + 3}, 3, v{VT}
""")
    for j in range(8):
        a(f"  v_xor_b32 v{VT + 3}, {2 * j}, v{VT + 1}")
        a(f"  v_lshl_add_u32 v{VVB + j}, v{VT + 3}, 4, v{VT}")
    for r in range(32):
        a(f"  v_mov_b32 v{VO + r}, 0")
    for r in range(8):
        a(f"  v_mov_b32 v{VP + r}, 0")
    a(f"  v_subrev_u32 v{VT}, 64, v0")
    a(f"  v_lshlrev_b32 v{VT}, 4, v{VT}")
    for p in range(4):
        a(f"  ds_write_b128 v{VT}, {vr(VO, 4)} offset:{TILE + 4096 * p}")
    a(f"""
  v_mov_b32 v{VM}, 0xff800000
  v_mov_b32 v{VL}, 0
  s_mov_b32 s{S_C}, {f32hex(c)}
  s_mov_b32 s{S_RD}, 0
  s_mov_b32 s{S_I}, 0
  s_cmp_eq_u32 s{S_WAVE}, 0
  s_cselect_b32 s{S_HOOK}, 0, -1
  s_mov_b32 s{SQ}, s{S_ARG + 6}
  s_mov_b32 s{SQ + 1}, s{S_ARG + 7}
  s_waitcnt vmcnt(0) lgkmcnt(0)
L_loop:
""")
    for s in range(4):
        a(f"  v_add_u32 v{VKA + s}, s{S_RD}, v{VKB + s}")
    for j in range(8):
        a(f"  v_add_u32 v{VVA + j}, s{S_RD}, v{VVB + j}")
    a(f"""
  s_add_u32 s{S_RD}, s{S_RD}, {UNIT}
  s_cmp_ge_u32 s{S_RD}, {UNIT * NS}
  s_cselect_b32 s{S_RD}, 0, s{S_RD}
  s_barrier
""")
    if o.stamp:
        for idx, it in ((3, 0), (4, 8), (5, 16)):
            a(f"  s_cmp_lg_u32 s{S_I}, {it}")
            a(f"  s_cbranch_scc1 L_nostamp{idx}")
            stamp(a, o, idx)
            a("  s_waitcnt lgkmcnt(0)")
            a(f"L_nostamp{idx}:")
    kreads = [f"  ds_read_b128 {vr(VK + (t * 4 + s) * 4, 4)}, v{VKA + s} offset:{4096 * t}" for t in range(4) for s in range(4)]
    vreads = [v_read(kb, j, t) for kb in range(2) for j in range(8) for t in range(2)]
    lds = LdsTracker(a)
    for r in kreads[:12]:
        lds.issue(r)
    pend = kreads[12:] + vreads
    for t in range(4):
        lds.need(4 * (t + 1))
        for s in range(4):
            a(qk_mfma(t, s))
            n = 1 if t == 0 else 2
            for _ in range(n):
                if pend:
                    lds.issue(pend.pop(0))
    valu = []
    valu.append(f"  v_max3_f32 v{mx}, v{VS}, v{VS + 1}, v{VS + 2}")
    for r in range(3, 15, 2):
        valu.append(f"  v_max3_f32 v{mx}, v{mx}, v{VS + r}, v{VS + r + 1}")
    valu.append(f"  v_max_f32 v{mx}, v{mx}, v{VS + 15}")
    valu += xlane_ops("v_max_f32", mx, t0, t1)
    valu += [
        f"  v_mul_f32 v{mx}, s{S_C}, v{mx}",
        f"  v_max_f32 v{mx}, v{mx}, v{VM}",
        f"  v_sub_f32 v{al}, v{VM}, v{mx}",
        f"  v_exp_f32 v{al}, v{al}",
        f"  v_mov_b32 v{VM}, v{mx}",
    ]
    for r in range(16):
        valu.append(f"  v_fma_f32 v{VS + r}, v{VS + r}, s{S_C}, -v{VM}")
    for r in range(16):
        valu.append(f"  v_exp_f32 v{VS + r}, v{VS + r}")
    k = 0
    for kb in range(2):
        for j in range(8):
            n = kb * 8 + j
            if j % 2 == 0:
                lds.need(16 + 2 * (n + 2))
            a(pv_mfma(kb, j))
            for _ in range(2):
                if pend:
                    lds.issue(pend.pop(0))
            if n >= 4:
                for _ in range(3):
                    a(valu[k]); k += 1
    assert not pend
    for x in valu[k:]:
        a(x)
    a(f"  v_mul_f32 v{VL}, v{VL}, v{al}")
    for r in range(8):
        a(f"  v_cvt_pk_bf16_f32 v{VP + r}, v{VS + 2 * r}, v{VS + 2 * r + 1}")
    for r in range(32):
        a(f"  v_mul_f32 v{VO + r}, v{VO + r}, v{al}")
    for r in range(0, 16, 2):
        a(f"  v_add_f32 v{VS + r}, v{VS + r}, v{VS + r + 1}")
    for r in range(0, 16, 4):
        a(f"  v_add_f32 v{VS + r}, v{VS + r}, v{VS + r + 2}")
    a(f"""
  v_add_f32 v{VS}, v{VS}, v{VS + 4}
  v_add_f32 v{VS + 8}, v{VS + 8}, v{VS + 12}
  v_add_f32 v{VS}, v{VS}, v{VS + 8}
  v_add_f32 v{VL}, v{VL}, v{VS}
  s_cmp_eq_u32 s{S_I}, s{S_HOOK}
  s_cbranch_scc1 L_hook
L_hook_ret:
  s_add_u32 s{S_I}, s{S_I}, 1
  s_cmp_lt_u32 s{S_I}, 32
  s_cbranch_scc1 L_loop
""")
    for x in xlane_ops("v_add_f32", VL, t0, t1):
        a(x)
    for j in range(8):
        a(f"  v_add_u32 v{VVA + j}, s{S_RD}, v{VVB + j}")
    a(f"""
  v_mov_b32 v{VT + 6}, {LDS_MODE}
  ds_read_b32 v{VHS}, v{VT + 6}
  v_lshlrev_b32 v{VT + 4}, 4, v{VLANE}
  v_lshlrev_b32 v{VT + 5}, 3, v{VLANE}
  v_and_b32 v{VT + 7}, 31, v{VLANE}
  v_lshlrev_b32 v{VT + 7}, 2, v{VT + 7}
  v_and_b32 v{VT + 8}, 15, v{VLANE}
  v_lshlrev_b32 v{VT + 8}, 8, v{VT + 8}
  v_lshrrev_b32 v{VT + 9}, 4, v{VLANE}
  v_lshl_add_u32 v{VT + 8}, v{VT + 9}, 3, v{VT + 8}
  s_waitcnt lgkmcnt(0)
  v_readfirstlane_b32 s{S_SH}, v{VHS}
  s_barrier
""")
    stamp(a, o, 1)
    if o.stamp:
        a("  s_waitcnt lgkmcnt(0)")
    vreads = [v_read(kb, j, t) for kb in range(2) for j in range(8) for t in range(2)]
    for r in vreads[:14]:
        a(r)
    issued = 14
    for n in range(16):
        a(f"  s_waitcnt lgkmcnt({issued - 2 * (n + 1)})")
        a(pv_mfma(n // 8, n % 8))
        for _ in range(2):
            if issued < 32:
                a(vreads[issued]); issued += 1
    a(f"""
  s_cmp_eq_u32 s{S_SH}, 0
  s_cbranch_scc0 L_second
  s_lshl_b32 s{S_T + 1}, s{S_MYBOX}, 13
  s_add_u32 s{S_T + 3}, s{S_T + 1}, 4096
  s_lshl_b32 s{S_T + 2}, s{S_MYBOX}, 9
  s_add_u32 s{S_T + 2}, s{S_T + 2}, {WS_ML}
  buffer_store_dwordx2 {vr(VM, 2)}, v{VT + 5}, {sr(SW, 4)}, s{S_T + 2} offen sc1
""")
    for j in range(8):
        so = S_T + 1 if j < 4 else S_T + 3
        a(f"  buffer_store_dwordx4 {vr(VO + 4 * j, 4)}, v{VT + 4}, {sr(SW, 4)}, s{so} offen offset:{1024 * (j & 3)} sc1")
    a(f"""
  v_mov_b32 v{VT}, 1
  s_waitcnt vmcnt(0)
  buffer_store_dword v{VT}, v{VT + 7}, {sr(SW, 4)}, s{S_MYFLAG} offen sc1
  s_branch L_done
L_second:
  s_lshl_b32 s{S_T + 1}, s{S_PBOX}, 13
  s_add_u32 s{S_T + 3}, s{S_T + 1}, 4096
  s_lshl_b32 s{S_T + 2}, s{S_PBOX}, 9
  s_add_u32 s{S_T + 2}, s{S_T + 2}, {WS_ML}
  s_mov_b32 s{S_I}, 0x100000
L_poll:
  buffer_load_dword v{VT}, v{VZ}, {sr(SW, 4)}, s{S_PFLAG} offen sc1
  s_sub_u32 s{S_I}, s{S_I}, 1
  s_cbranch_scc1 L_end
  s_waitcnt vmcnt(0)
  v_cmp_eq_u32 vcc, 1, v{VT}
  s_cbranch_vccz L_poll
  buffer_load_dwordx2 {vr(VT, 2)}, v{VT + 5}, {sr(SW, 4)}, s{S_T + 2} offen sc1
""")
    for j in range(8):
        so = S_T + 1 if j < 4 else S_T + 3
        a(f"  buffer_load_dwordx4 {vr(VK + 4 * j, 4)}, v{VT + 4}, {sr(SW, 4)}, s{so} offen offset:{1024 * (j & 3)} sc1")
    m2, l2, mm = VT, VT + 1, VT + 2
    a(f"""
  s_waitcnt vmcnt(8)
  v_max_f32 v{mm}, v{VM}, v{m2}
  v_sub_f32 v{VM}, v{VM}, v{mm}
  v_sub_f32 v{m2}, v{m2}, v{mm}
  v_exp_f32 v{VM}, v{VM}
  v_exp_f32 v{m2}, v{m2}
  s_nop 0
  v_mul_f32 v{VL}, v{VL}, v{VM}
  v_mul_f32 v{l2}, v{l2}, v{m2}
  v_add_f32 v{VL}, v{VL}, v{l2}
  v_rcp_f32 v{VL}, v{VL}
  s_nop 0
  v_mul_f32 v{VM}, v{VM}, v{VL}
  v_mul_f32 v{m2}, v{m2}, v{VL}
""")
    for r in range(32):
        a(f"  v_mul_f32 v{VO + r}, v{VO + r}, v{VM}")
    for j in range(8):
        a(f"  s_waitcnt vmcnt(7)")
        for r in range(4):
            a(f"  v_mul_f32 v{VK + 4 * j + r}, v{VK + 4 * j + r}, v{m2}")
        for r in range(4):
            a(f"  v_add_f32 v{VO + 4 * j + r}, v{VO + 4 * j + r}, v{VK + 4 * j + r}")
        a(f"  v_cvt_pk_bf16_f32 v{VS + 2 * j}, v{VO + 4 * j}, v{VO + 4 * j + 1}")
        a(f"  v_cvt_pk_bf16_f32 v{VS + 2 * j + 1}, v{VO + 4 * j + 2}, v{VO + 4 * j + 3}")
        a(f"  buffer_store_dwordx2 {vr(VS + 2 * j, 2)}, v{VT + 8}, {sr(SQ, 4)}, s{S_OUT} offen offset:{32 * j}{o.oaux}")
    a("L_done:")
    if o.stamp:
        a("  s_waitcnt vmcnt(0)")
        stamp(a, o, 2)
        a(f"""
  s_waitcnt lgkmcnt(0)
  s_lshl_b32 s{S_T}, s2, 2
  s_add_u32 s{S_T}, s{S_T}, s{S_WAVE}
  s_lshl_b32 s{S_T}, s{S_T}, 5
  s_add_u32 s{S_T}, s{S_T}, {WS_STAMP}
  v_mov_b32 v4, s{S_TS}
  v_mov_b32 v5, s{S_TS + 2}
  v_mov_b32 v6, s{S_TS + 4}
  s_getreg_b32 s{S_T + 1}, hwreg(HW_REG_XCC_ID)
  v_mov_b32 v7, s{S_T + 1}
  buffer_store_dwordx4 v[4:7], v{VZ}, {sr(SW, 4)}, s{S_T} offen
  v_mov_b32 v12, s{S_TS + 6}
  v_mov_b32 v13, s{S_TS + 8}
  v_mov_b32 v14, s{S_TS + 10}
  v_mov_b32 v15, s{S_SH}
  buffer_store_dwordx4 v[12:15], v{VZ}, {sr(SW, 4)}, s{S_T} offen offset:16
""")
    if o.diag:
        diag(a, o)
    a(f"""
L_end:
  s_endpgm
L_hook:
  s_cmp_eq_u32 s{S_I}, 0
  s_cbranch_scc0 L_hook2
  s_and_b32 s{S_SH}, s{S_PAIR}, 3
  s_lshl_b32 s{S_SH}, s{S_SH}, 3
  s_lshl_b32 s{S_T}, 1, s{S_SH}
  s_and_b32 s{S_T + 1}, s{S_PAIR}, 0x7c
  v_mov_b32 v{VHS}, s{S_T}
  s_mov_b64 exec, 1
  buffer_atomic_xor v{VHS}, v{VZ}, {sr(SD, 4)}, s{S_T + 1} offen sc0 sc1
  s_mov_b64 exec, -1
  s_mov_b32 s{S_HOOK}, 12
  s_branch L_hook_ret
L_hook2:
  s_waitcnt vmcnt(0)
  v_lshrrev_b32 v{VHS}, s{S_SH}, v{VHS}
  v_and_b32 v{VHS}, 0xff, v{VHS}
  v_mov_b32 v{VT}, {LDS_MODE}
  s_mov_b64 exec, 1
  ds_write_b32 v{VT}, v{VHS}
  s_mov_b64 exec, -1
  s_waitcnt lgkmcnt(0)
  s_branch L_hook_ret
""")


def build(o):
    a = Asm()
    a(HEADER)
    label = f"{NAME}_kernel"
    a(f"; @launch grid=(256,1,1) block=(320,1,1) lds={LDS_BYTES}")
    a('.amdgcn_target "amdgcn-amd-amdhsa--gfx950"')
    a(f"""
.text
.globl {label}
.p2align 8
.type {label},@function
{label}:
  s_cmp_ge_u32 s2, 256
  s_cbranch_scc1 L_end
  s_load_dwordx8 s[{S_ARG}:{S_ARG + 7}], s[0:1], 0
  s_load_dwordx4 s[{S_ARG + 8}:{S_ARG + 11}], s[0:1], 32
""")
    stamp(a, o, 0)
    a(f"  v_readfirstlane_b32 s{S_WAVE}, v0")
    if o.map == 0:
        a(f"""
  s_and_b32 s{S_T}, s2, 7
  s_lshr_b32 s{S_T + 1}, s2, 4
  s_lshl_b32 s{S_T + 1}, s{S_T + 1}, 3
  s_or_b32 s{S_PAIR}, s{S_T}, s{S_T + 1}
  s_bfe_u32 s{S_HALF}, s2, 0x10003
""")
    elif o.map == 1:
        a(f"""
  s_lshr_b32 s{S_PAIR}, s2, 1
  s_and_b32 s{S_HALF}, s2, 1
""")
    a(f"""
  s_lshr_b32 s{S_WAVE}, s{S_WAVE}, 6
  s_cmp_lg_u32 s{S_WAVE}, 0
  s_cbranch_scc1 L_compute
""")
    loader(a, o)
    compute(a, o)
    a(f"""
.section .rodata,"a"
.p2align 6
.amdhsa_kernel {label}
  .amdhsa_next_free_vgpr {NVGPR}
  .amdhsa_next_free_sgpr {NSGPR}
  .amdhsa_accum_offset {NVGPR}
  .amdhsa_group_segment_fixed_size 0
  .amdhsa_kernarg_size 48
  .amdhsa_user_sgpr_count 2
  .amdhsa_user_sgpr_kernarg_segment_ptr 1
  .amdhsa_system_sgpr_workgroup_id_x 1
.end_amdhsa_kernel
""")
    return a.text()


if __name__ == "__main__":
    ap = argparse.ArgumentParser()
    ap.add_argument("-o", default="cdna_kernels/" + NAME + ".s")
    ap.add_argument("--w", type=int, default=22)
    ap.add_argument("--wend", type=int, default=0)
    ap.add_argument("--aux", default="nt")
    ap.add_argument("--qaux", default="")
    ap.add_argument("--oaux", default="")
    ap.add_argument("--stamp", action="store_true")
    ap.add_argument("--map", type=int, default=0)
    ap.add_argument("--diag", default="")
    o = ap.parse_args()
    o.wend = o.wend or o.w
    o.stamp = o.stamp or bool(o.diag)
    fx = lambda s: (" " + s.replace(",", " ")) if s else ""
    o.aux, o.qaux, o.oaux = fx(o.aux), fx(o.qaux), fx(o.oaux)
    open(o.o, "w").write(build(o))
```

```python
import argparse
import math
import struct

NAME = "standalone__gqa_softmax__sampling"

HEADER = """; Kernarg layout for this problem (48 bytes, ptrs only, base s[0:1]):
"""


class Asm:
    def __init__(self):
        self.lines = []

    def __call__(self, s):
        for ln in s.strip("\n").split("\n"):
            self.lines.append(ln)

    def text(self):
        return "\n".join(self.lines) + "\n"


class LdsTracker:
    def __init__(self, a):
        self.a, self.issued, self.done = a, 0, 0

    def need(self, n):
        assert n <= self.issued
        if n > self.done:
            self.a(f"  s_waitcnt lgkmcnt({self.issued - n})")
            self.done = n

    def issue(self, line):
        if self.issued - self.done >= 15:
            self.need(self.issued - 11)
        self.a(line)
        self.issued += 1


def vr(a, n=1):
    return f"v{a}" if n == 1 else f"v[{a}:{a + n - 1}]"


def sr(a, n):
    return f"s[{a}:{a + n - 1}]"


def f32hex(x):
    return "0x%08x" % struct.unpack("<I", struct.pack("<f", x))[0]


VQ = 4
VO = 20
VS = 52
VP = 68
VK = 76
VV = 140
VKB = 204
VVB = 208
VKA = 216
VVA = 220
VM = 228
VL = 229
VT = 230
VLANE = 242
VHS = 243
VZ = 244
VCT = 245
VCB = 246
VCA = 247
VFL = 248
VBOX = 250
VDUM = 251
VG0 = 253
VAT = 254
NVGPR = 256
VDK = 4
VDV = 8

SK = 4
SV = 8
SQ = 12
SW = 16
S_WAVE = 20
S_I = 21
S_OFFK = 22
S_OFFV = 23
S_RD = 25
S_C = 26
S_PAIR = 27
S_ARG = 28
S_HALF = 40
S_T = 41
S_TS = 48
SD = 60
S_HOOK = 64
S_BLK = 65
S_KEEP = 66
S_SEND = 67
S_MODE = 68
S_OUT = 69
S_SH = 70
S_CTL = 71
S_REP = 72
S_REPV = 73
S_INT = 74
S_WSUM = 75
S_DW = 76
S_ID = 77
S_LOC = 78
S_SLOT = 79
NSGPR = 88

TILE = 16384
UNIT = 32768
NS = 3
LDS_MODE = UNIT * NS
LDS_WIN = UNIT * NS + 4
LDS_BYTES = UNIT * NS + 64
KOFF = TILE
VOFF = 0

WS_DUMP = 0x0
WS_DML = 0x400000
WS_BLK = 0x500000
WS_REP = 0x600000
WS_LOC = 0x700000
REP_STRIDE = 4352
WS_STAMP = 0xC00000
WS_SIZE = 0x1000000
SPIN = 0x40000


def stamp(a, o, idx):
    if o.stamp:
        a(f"  s_memrealtime s[{S_TS + 2 * idx}:{S_TS + 2 * idx + 1}]")


def xlane_ops(op, reg, t0, t1):
    return [
        f"  v_mov_b32 v{t0}, v{reg}",
        f"  v_mov_b32 v{t1}, v{reg}",
        "  s_nop 1",
        f"  v_permlane32_swap_b32 v{t0}, v{t1}",
        f"  {op} v{t0}, v{t0}, v{t1}",
        f"  v_mov_b32 v{t1}, v{t0}",
        "  s_nop 1",
        f"  v_permlane16_swap_b32 v{t0}, v{t1}",
        f"  {op} v{reg}, v{t0}, v{t1}",
    ]


def group(a, o, isv, first_piece, w, barrier_at, waits=True):
    srd, off = (SV, S_OFFV) if isv else (SK, S_OFFK)
    for p in range(4):
        if waits:
            a(f"  s_waitcnt vmcnt({w - 1})")
        elif p == 0:
            a("  s_nop 0")
        vo = VDV + (p & 1) if isv else VDK + p
        a(f"  buffer_load_dwordx4 v{vo}, {sr(srd, 4)}, s{off} offen offset:{1024 * p}{o.aux} lds")
        if barrier_at is not None and first_piece + p == barrier_at:
            a("  s_barrier")
    a(f"  s_addk_i32 s{off}, 4096")
    a("  s_addk_i32 m0, 4096")
    if o.rot:
        a(f"  s_bitset0_b32 s{off}, 19")


def dispatch(a, lo, hi):
    if lo == hi:
        a(f"  s_branch L_ld_v{lo}")
        return
    mid = (lo + hi + 1) // 2
    a(f"  s_cmp_ge_u32 s{S_T}, {mid}")
    if mid == hi:
        a(f"  s_cbranch_scc1 L_ld_v{mid}")
        dispatch(a, lo, mid - 1)
        return
    a(f"  s_cbranch_scc1 L_dsp_{mid}_{hi}")
    dispatch(a, lo, mid - 1)
    a(f"L_dsp_{mid}_{hi}:")
    dispatch(a, mid, hi)


def loader(a, o):
    wins = o.wins
    multi = len(wins) > 1
    a(f"""
  s_setprio 3
  v_and_b32 v2, 15, v0
  v_lshrrev_b32 v3, 4, v0
  v_lshlrev_b32 v1, 8, v3
  v_xor_b32 v10, v2, v3
""")
    for p in range(4):
        a(f"  v_xor_b32 v11, {4 * p}, v10")
        a(f"  v_lshl_add_u32 v{VDK + p}, v11, 4, v1")
    a(f"""
  s_mov_b32 s{SK + 2}, 0x80000
  s_mov_b32 s{SK + 3}, 0x20000
  s_mov_b32 s{SV + 2}, 0x80000
  s_mov_b32 s{SV + 3}, 0x20000
  s_lshr_b32 s{S_OFFK}, s2, 3
  s_mul_i32 s{S_OFFK}, s{S_OFFK}, {o.rot[0] if o.rot else 0}
  s_and_b32 s{S_OFFV}, s2, 7
  s_mul_i32 s{S_OFFV}, s{S_OFFV}, {o.rot[1] if o.rot else 0}
  s_add_u32 s{S_OFFK}, s{S_OFFK}, s{S_OFFV}
  s_and_b32 s{S_OFFK}, s{S_OFFK}, 127
  s_lshl_b32 s{S_OFFK}, s{S_OFFK}, 12
  s_mov_b32 s{S_OFFV}, s{S_OFFK}
  s_movk_i32 m0, {KOFF}
  v_lshlrev_b32 v10, 1, v3
  v_xor_b32 v10, v2, v10
  v_lshl_add_u32 v{VDV}, v10, 4, v1
  v_xor_b32 v11, 8, v10
  v_lshl_add_u32 v{VDV + 1}, v11, 4, v1
  s_lshl_b32 s{S_T}, s{S_PAIR}, 20
  s_lshl_b32 s{S_T + 1}, s{S_HALF}, 19
  s_or_b32 s{S_T}, s{S_T}, s{S_T + 1}
  s_mov_b32 s{S_I}, 1
  v_mov_b32 v12, {LDS_WIN}
  s_waitcnt lgkmcnt(0)
  s_add_u32 s{SK}, s{S_ARG + 2}, s{S_T}
  s_addc_u32 s{SK + 1}, s{S_ARG + 3}, 0
  s_add_u32 s{SV}, s{S_ARG + 4}, s{S_T}
  s_addc_u32 s{SV + 1}, s{S_ARG + 5}, 0
""")
    first = wins.index(o.winit)
    for g in range(4):
        group(a, o, False, 4 * g, o.winit, None, waits=(4 * g + 3 >= o.winit))
    order = [first] + [i for i in range(len(wins)) if i != first]
    for vi in order:
        w = wins[vi]
        a(f"L_ld_v{vi}:")
        for g in range(4):
            group(a, o, True, 4 * g, w, w - 1)
        a(f"  s_cmp_eq_u32 s{S_I}, 32")
        a(f"  s_cbranch_scc1 {'L_ld_tail2' if w - 1 < 16 else 'L_ld_tail1'}")
        early = w - 1 < 28
        for g in range(4, 8):
            if multi and early and g == 7:
                a("  ds_read_b32 v13, v12")
            group(a, o, False, 4 * g, w, w - 1)
        if multi and not early:
            a("  ds_read_b32 v13, v12")
        a(f"""
  s_cmp_ge_u32 m0, {UNIT * NS}
  s_cselect_b32 m0, 0, m0
  s_add_u32 s{S_I}, s{S_I}, 1
""")
        if multi:
            a(f"""
  s_waitcnt lgkmcnt(0)
  v_readfirstlane_b32 s{S_T}, v13
  s_cmp_eq_u32 s{S_T}, {vi}
  s_cbranch_scc1 L_ld_v{vi}
  s_branch L_ld_dispatch
""")
        else:
            a(f"  s_branch L_ld_v{vi}")
    if multi:
        a("L_ld_dispatch:")
        dispatch(a, 0, len(wins) - 1)
    a("""
L_ld_tail1:
  s_waitcnt vmcnt(16)
  s_barrier
L_ld_tail2:
  s_waitcnt vmcnt(0)
  s_barrier
  s_endpgm
""")


def v_read(kb, j, t):
    dst = VV + (kb * 8 + j) * 4 + 2 * t
    return f"  ds_read_b64_tr_b16 {vr(dst, 2)}, v{VVA + j} offset:{VOFF + 4096 * (2 * kb + t)}"


def pv_mfma(kb, j):
    return f"  v_mfma_f32_16x16x32_bf16 {vr(VO + 4 * j, 4)}, {vr(VV + (kb * 8 + j) * 4, 4)}, {vr(VP + 4 * kb, 4)}, {vr(VO + 4 * j, 4)}"


def qk_mfma(t, s):
    cin = "0" if s == 0 else vr(VS + 4 * t, 4)
    return f"  v_mfma_f32_16x16x32_bf16 {vr(VS + 4 * t, 4)}, {vr(VK + (t * 4 + s) * 4, 4)}, {vr(VQ + 4 * s, 4)}, {cin}"


def weights(a, m2, l2, mm):
    a(f"""
  v_max_f32 v{mm}, v{VM}, v{m2}
  v_sub_f32 v{VM}, v{VM}, v{mm}
  v_sub_f32 v{m2}, v{m2}, v{mm}
  v_exp_f32 v{VM}, v{VM}
  v_exp_f32 v{m2}, v{m2}
  s_nop 0
  v_mul_f32 v{VL}, v{VL}, v{VM}
  v_mul_f32 v{l2}, v{l2}, v{m2}
  v_add_f32 v{VL}, v{VL}, v{l2}
  v_rcp_f32 v{VL}, v{VL}
  s_nop 0
  v_mul_f32 v{VM}, v{VM}, v{VL}
  v_mul_f32 v{m2}, v{m2}, v{VL}
""")


def merge_half(a, o, own, pk, w_own, w_oth, tmp, dst, vaddr, soff):
    for jj in range(4):
        for r in range(4):
            a(f"  v_mul_f32 v{own + 4 * jj + r}, v{own + 4 * jj + r}, v{w_own}")
        for h in range(2):
            a(f"  v_lshlrev_b32 v{tmp + 2 * h}, 16, v{pk + 2 * jj + h}")
            a(f"  v_and_b32 v{tmp + 2 * h + 1}, 0xffff0000, v{pk + 2 * jj + h}")
        for r in range(4):
            a(f"  v_fmac_f32 v{own + 4 * jj + r}, v{tmp + r}, v{w_oth}")
        a(f"  v_cvt_pk_bf16_f32 v{dst + 2 * jj}, v{own + 4 * jj}, v{own + 4 * jj + 1}")
        a(f"  v_cvt_pk_bf16_f32 v{dst + 2 * jj + 1}, v{own + 4 * jj + 2}, v{own + 4 * jj + 3}")
        a(f"  buffer_store_dwordx2 {vr(dst + 2 * jj, 2)}, v{vaddr}, {sr(SQ, 4)}, s{soff} offen offset:{32 * jj}{o.oaux}")


def prologue(a, o):
    c = (128 ** -0.5) * math.log2(math.e)
    multi = len(o.wins) > 1 and not o.noctl
    a(f"""
L_compute:
  s_sub_u32 s{S_WAVE}, s{S_WAVE}, 1
  v_and_b32 v{VLANE}, 63, v0
  v_and_b32 v2, 15, v0
  v_bfe_u32 v3, v0, 4, 2
  s_mov_b32 s{SQ + 2}, 0x200000
  s_mov_b32 s{SQ + 3}, 0x20000
  s_mov_b32 s{SW + 2}, {WS_SIZE}
  s_mov_b32 s{SW + 3}, 0x20000
  s_mov_b32 s{SD + 2}, 256
  s_mov_b32 s{SD + 3}, 0x20000
  s_lshl_b32 s{S_T}, s{S_PAIR}, 2
  s_add_u32 s{S_T}, s{S_T}, s{S_WAVE}
  s_lshl_b32 s{S_OUT}, s{S_T}, 12
  s_lshl_b32 s{S_BLK}, s{S_T}, 9
  s_add_u32 s{S_BLK}, s{S_BLK}, {WS_BLK}
  s_lshl_b32 s{S_T}, s{S_HALF}, 7
  s_add_u32 s{S_KEEP}, s{S_OUT}, s{S_T}
  s_xor_b32 s{S_SEND}, s{S_KEEP}, 128
  v_lshlrev_b32 v{VT}, 8, v2
  v_lshl_add_u32 v{VT + 2}, v3, 4, v{VT}
  v_lshl_add_u32 v{VBOX}, v3, 5, v{VT}
  v_mov_b32 v{VZ}, 0
  v_min_u32 v{VCA}, 32, v{VLANE}
  v_lshlrev_b32 v{VCA}, 2, v{VCA}
  s_getreg_b32 s{S_ID}, hwreg(HW_REG_XCC_ID, 0, 4)
  s_mul_i32 s{S_LOC}, s{S_ID}, {REP_STRIDE}
  s_add_u32 s{S_LOC}, s{S_LOC}, {WS_LOC}
  s_or_b32 s{S_ID}, s{S_ID}, 16
  s_lshr_b32 s{S_SLOT}, s2, 3
  s_mul_i32 s{S_REPV}, s{S_SLOT}, {REP_STRIDE}
  s_add_u32 s{S_REPV}, s{S_REPV}, {WS_REP}
  s_mul_i32 s{S_REP}, s{S_SLOT}, {o.gstep}
  s_add_u32 s{S_REP}, s{S_REP}, {o.gfirst}
  s_cmp_le_u32 s{S_REP}, {o.glast}
  s_cselect_b32 s{S_REP}, s{S_REP}, 64
  s_cmp_eq_u32 s{S_WAVE}, 1
  s_cselect_b32 s{S_CTL}, {1 if multi else 0}, 0
  s_waitcnt lgkmcnt(0)
  s_mov_b32 s{SQ}, s{S_ARG}
  s_mov_b32 s{SQ + 1}, s{S_ARG + 1}
  s_mov_b32 s{SW}, s{S_ARG + 10}
  s_mov_b32 s{SW + 1}, s{S_ARG + 11}
  s_mov_b32 s{SD}, s{S_ARG + 8}
  s_mov_b32 s{SD + 1}, s{S_ARG + 9}
""")
    for s in range(4):
        a(f"  buffer_load_dwordx4 {vr(VQ + 4 * s, 4)}, v{VT + 2}, {sr(SQ, 4)}, s{S_OUT} offen offset:{64 * s}{o.qaux}")
    a(f"""
  buffer_load_dwordx2 {vr(VFL, 2)}, v{VZ}, {sr(SW, 4)}, s{S_BLK} offen offset:256 sc1
  s_cmp_eq_u32 s{S_CTL}, 0
  s_cbranch_scc1 L_nobase
  buffer_load_dword v{VCB}, v{VCA}, {sr(SW, 4)}, s{S_LOC} offen sc1
  buffer_load_dword v{VG0}, v{VZ}, {sr(SW, 4)}, s{S_REPV} offen{o.baux}
L_nobase:
  s_mov_b32 s{S_INT}, 0
  s_mov_b32 s{S_WSUM}, 0
  v_mov_b32 v{VT + 3}, {LDS_WIN}
  v_mov_b32 v{VT + 4}, {o.wins.index(o.winit)}
  ds_write_b32 v{VT + 3}, v{VT + 4}
  s_and_b32 s{S_SH}, s{S_PAIR}, 3
  s_lshl_b32 s{S_SH}, s{S_SH}, 3
  s_and_b32 s{S_DW}, s{S_PAIR}, 0x7c
  v_xor_b32 v{VT + 1}, v2, v3
""")
    for s in range(4):
        a(f"  v_xor_b32 v{VT + 3}, {4 * s}, v{VT + 1}")
        a(f"  v_lshl_add_u32 v{VKB + s}, v{VT + 3}, 4, v{VT}")
    a(f"""
  s_lshl_b32 s{S_T}, s{S_HALF}, 3
  s_xor_b32 s{S_T}, s{S_T}, 8
  v_bfe_u32 v{VT}, v0, 2, 4
  v_and_b32 v{VT + 1}, 7, v{VT}
  v_lshlrev_b32 v{VT + 1}, 1, v{VT + 1}
  v_xor_b32 v{VT + 1}, s{S_T}, v{VT + 1}
  v_lshlrev_b32 v{VT}, 8, v{VT}
  v_and_b32 v{VT + 3}, 3, v0
  v_lshl_add_u32 v{VT}, v{VT + 3}, 3, v{VT}
""")
    for j in range(8):
        a(f"  v_xor_b32 v{VT + 3}, {2 * j}, v{VT + 1}")
        a(f"  v_lshl_add_u32 v{VVB + j}, v{VT + 3}, 4, v{VT}")
    for r in range(32):
        a(f"  v_mov_b32 v{VO + r}, 0")
    for r in range(8):
        a(f"  v_mov_b32 v{VP + r}, 0")
    a(f"  v_subrev_u32 v{VT}, 64, v0")
    a(f"  v_lshlrev_b32 v{VT}, 4, v{VT}")
    for p in range(4):
        a(f"  ds_write_b128 v{VT}, {vr(VO, 4)} offset:{VOFF + 4096 * p}")
    a(f"""
  v_mov_b32 v{VM}, 0xff800000
  v_mov_b32 v{VL}, 0
  s_mov_b32 s{S_C}, {f32hex(c)}
  s_mov_b32 s{S_RD}, 0
  s_mov_b32 s{S_I}, 0
  s_cmp_eq_u32 s{S_WAVE}, 0
  s_cselect_b32 s{S_HOOK}, 1, {o.pre}
  s_mov_b32 s{SQ}, s{S_ARG + 6}
  s_mov_b32 s{SQ + 1}, s{S_ARG + 7}
  s_waitcnt lgkmcnt(0)
""")


def mainloop(a, o):
    t0, t1, mx, al = VT, VT + 1, VT + 2, VT + 3
    a("L_loop:")
    for s in range(4):
        a(f"  v_add_u32 v{VKA + s}, s{S_RD}, v{VKB + s}")
    for j in range(8):
        a(f"  v_add_u32 v{VVA + j}, s{S_RD}, v{VVB + j}")
    a(f"""
  s_add_u32 s{S_RD}, s{S_RD}, {UNIT}
  s_cmp_ge_u32 s{S_RD}, {UNIT * NS}
  s_cselect_b32 s{S_RD}, 0, s{S_RD}
  s_cmp_eq_u32 s{S_I}, 0
  s_cselect_b32 s{S_T}, 1, s{S_CTL}
  s_cmp_lg_u32 s{S_T}, 0
  s_barrier
  s_cbranch_scc1 L_ctl
L_ctl_ret:
""")
    if o.stamp and not o.estamp:
        for idx, it in ((3, o.st[0]), (4, o.st[1]), (5, o.st[2])):
            a(f"  s_cmp_lg_u32 s{S_I}, {it}")
            a(f"  s_cbranch_scc1 L_nostamp{idx}")
            stamp(a, o, idx)
            a("  s_waitcnt lgkmcnt(0)")
            a(f"L_nostamp{idx}:")
    kreads = [f"  ds_read_b128 {vr(VK + (t * 4 + s) * 4, 4)}, v{VKA + s} offset:{KOFF + 4096 * t}" for t in range(4) for s in range(4)]
    vreads = [v_read(kb, j, t) for kb in range(2) for j in range(8) for t in range(2)]
    lds = LdsTracker(a)
    for r in kreads[:12]:
        lds.issue(r)
    pend = kreads[12:] + vreads
    for t in range(4):
        lds.need(4 * (t + 1))
        for s in range(4):
            a(qk_mfma(t, s))
            for _ in range(1 if t == 0 else 2):
                if pend:
                    lds.issue(pend.pop(0))
    valu = [f"  v_max3_f32 v{mx}, v{VS}, v{VS + 1}, v{VS + 2}"]
    for r in range(3, 15, 2):
        valu.append(f"  v_max3_f32 v{mx}, v{mx}, v{VS + r}, v{VS + r + 1}")
    valu.append(f"  v_max_f32 v{mx}, v{mx}, v{VS + 15}")
    valu += xlane_ops("v_max_f32", mx, t0, t1)
    valu += [
        f"  v_mul_f32 v{mx}, s{S_C}, v{mx}",
        f"  v_max_f32 v{mx}, v{mx}, v{VM}",
        f"  v_sub_f32 v{al}, v{VM}, v{mx}",
        f"  v_exp_f32 v{al}, v{al}",
        f"  v_mov_b32 v{VM}, v{mx}",
    ]
    for r in range(16):
        valu.append(f"  v_fma_f32 v{VS + r}, v{VS + r}, s{S_C}, -v{VM}")
    for r in range(16):
        valu.append(f"  v_exp_f32 v{VS + r}, v{VS + r}")
    k = 0
    for n in range(16):
        if n % 2 == 0:
            lds.need(16 + 2 * (n + 2))
        a(pv_mfma(n // 8, n % 8))
        for _ in range(2):
            if pend:
                lds.issue(pend.pop(0))
        if n >= 4:
            for _ in range(3):
                a(valu[k]); k += 1
    assert not pend
    for x in valu[k:]:
        a(x)
    a(f"  v_mul_f32 v{VL}, v{VL}, v{al}")
    for r in range(8):
        a(f"  v_cvt_pk_bf16_f32 v{VP + r}, v{VS + 2 * r}, v{VS + 2 * r + 1}")
    for r in range(32):
        a(f"  v_mul_f32 v{VO + r}, v{VO + r}, v{al}")
    for r in range(0, 16, 2):
        a(f"  v_add_f32 v{VS + r}, v{VS + r}, v{VS + r + 1}")
    for r in range(0, 16, 4):
        a(f"  v_add_f32 v{VS + r}, v{VS + r}, v{VS + r + 2}")
    a(f"""
  v_add_f32 v{VS}, v{VS}, v{VS + 4}
  v_add_f32 v{VS + 8}, v{VS + 8}, v{VS + 12}
  v_add_f32 v{VS}, v{VS}, v{VS + 8}
  v_add_f32 v{VL}, v{VL}, v{VS}
""")
    a(f"""
  s_cmp_eq_u32 s{S_I}, s{S_HOOK}
  s_cbranch_scc1 L_hook
L_hook_ret:
  s_add_u32 s{S_I}, s{S_I}, 1
  s_cmp_lt_u32 s{S_I}, 32
  s_cbranch_scc1 L_loop
""")


def epilogue(a, o):
    t0, t1 = VT, VT + 1
    vml, vout = VT + 10, VT + 11
    m2, l2, mm, tmp = VT, VT + 1, VT + 2, VT + 4
    for x in xlane_ops("v_add_f32", VL, t0, t1):
        a(x)
    a(f"""
  v_mov_b32 v{VT + 2}, {LDS_MODE}
  ds_read_b32 v{VHS}, v{VT + 2}
  v_and_b32 v{vml}, 15, v{VLANE}
  v_lshlrev_b32 v{vout}, 8, v{vml}
  v_lshlrev_b32 v{vml}, 3, v{vml}
  s_lshl_b32 s{S_T}, s{S_HALF}, 7
  s_add_u32 s{S_T + 1}, s{S_BLK}, s{S_T}
  s_xor_b32 s{S_T + 2}, s{S_T + 1}, 128
  buffer_store_dwordx2 {vr(VM, 2)}, v{vml}, {sr(SW, 4)}, s{S_T + 1} offen
  v_lshrrev_b32 v{VT + 3}, 4, v{VLANE}
  v_lshl_add_u32 v{vout}, v{VT + 3}, 3, v{vout}
""")
    for j in range(8):
        a(f"  v_add_u32 v{VVA + j}, s{S_RD}, v{VVB + j}")
    a(f"""
  s_lshl_b32 s{S_T + 3}, s{S_HALF}, 2
  s_add_u32 s{S_T + 3}, s{S_T + 3}, s{S_BLK}
  s_xor_b32 s{S_T + 4}, s{S_T + 3}, 4
  s_cmp_eq_u32 s{S_HALF}, 0
  s_cbranch_scc1 L_noswap
  v_swap_b32 v{VFL}, v{VFL + 1}
L_noswap:
  v_add_u32 v{VFL}, 1, v{VFL}
  s_mov_b32 s{S_I}, {SPIN}
  s_waitcnt lgkmcnt(0)
  v_readfirstlane_b32 s{S_MODE}, v{VHS}
  s_cmp_lg_u32 s{S_MODE}, 0
  s_barrier
""")
    stamp(a, o, 1)
    if o.stamp:
        a("  s_waitcnt lgkmcnt(0)")
    order = [(kb, j) for jh in range(2) for kb in range(2) for j in range(4 * jh, 4 * jh + 4)]
    vreads = [v_read(kb, j, t) for kb, j in order for t in range(2)]
    lds = LdsTracker(a)
    for r in vreads[:14]:
        lds.issue(r)
    a("  s_cbranch_scc1 L_generic")
    pend = vreads[14:]
    for n, (kb, j) in enumerate(order):
        lds.need(2 * (n + 1))
        a(pv_mfma(kb, j))
        for _ in range(2):
            if pend:
                lds.issue(pend.pop(0))
        if n >= 12:
            jj = n - 12
            a(f"  v_cvt_pk_bf16_f32 v{VS + 2 * jj}, v{VO + 4 * jj}, v{VO + 4 * jj + 1}")
            a(f"  v_cvt_pk_bf16_f32 v{VS + 2 * jj + 1}, v{VO + 4 * jj + 2}, v{VO + 4 * jj + 3}")
            if jj & 1:
                a(f"  buffer_store_dwordx4 {vr(VS + 4 * (jj >> 1), 4)}, v{VBOX}, {sr(SQ, 4)}, s{S_SEND} offen offset:{16 * (jj >> 1)}")
    if o.estamp == 1:
        stamp(a, o, 3)
    a("  s_waitcnt vmcnt(0)")
    if o.estamp:
        stamp(a, o, 4 if o.estamp == 1 else 3)
    a(f"""
  buffer_store_dword v{VFL}, v{VZ}, {sr(SW, 4)}, s{S_T + 3} offen offset:256
L_poll:
  buffer_load_dword v{VT}, v{VZ}, {sr(SW, 4)}, s{S_T + 4} offen offset:256 sc1
  s_sub_u32 s{S_I}, s{S_I}, 1
  s_cbranch_scc1 L_end
  s_waitcnt vmcnt(0)
  v_cmp_ne_u32 vcc, v{VFL + 1}, v{VT}
  s_cbranch_vccz L_poll
""")
    if o.estamp:
        stamp(a, o, 5 if o.estamp == 1 else 4)
    a(f"""
  buffer_load_dwordx2 {vr(m2, 2)}, v{vml}, {sr(SW, 4)}, s{S_T + 2} offen sc1
  buffer_load_dwordx4 {vr(VK, 4)}, v{VBOX}, {sr(SQ, 4)}, s{S_KEEP} offen sc1
  buffer_load_dwordx4 {vr(VK + 4, 4)}, v{VBOX}, {sr(SQ, 4)}, s{S_KEEP} offen offset:16 sc1
  s_waitcnt vmcnt(2)
""")
    weights(a, m2, l2, mm)
    a("  s_waitcnt vmcnt(0)")
    if o.estamp == 2:
        stamp(a, o, 5)
    merge_half(a, o, VO + 16, VK, VM, m2, tmp, VS + 8, vout, S_KEEP)
    a("L_done:")
    if o.stamp:
        a("  s_waitcnt vmcnt(0)")
        stamp(a, o, 2)
        a(f"""
  s_waitcnt lgkmcnt(0)
  s_lshl_b32 s{S_T}, s2, 2
  s_add_u32 s{S_T}, s{S_T}, s{S_WAVE}
  s_lshl_b32 s{S_T}, s{S_T}, 5
  s_add_u32 s{S_T}, s{S_T}, {WS_STAMP}
  v_mov_b32 v4, s{S_TS}
  v_mov_b32 v5, s{S_TS + 2}
  v_mov_b32 v6, s{S_TS + 4}
  s_getreg_b32 s{S_T + 1}, hwreg(HW_REG_XCC_ID)
  s_and_b32 s{S_T + 1}, s{S_T + 1}, 15
  s_lshl_b32 s{S_T + 2}, s{S_MODE}, 4
  s_or_b32 s{S_T + 1}, s{S_T + 1}, s{S_T + 2}
  s_getreg_b32 s{S_T + 2}, hwreg(HW_REG_HW_ID)
  s_lshl_b32 s{S_T + 2}, s{S_T + 2}, 8
  s_or_b32 s{S_T + 1}, s{S_T + 1}, s{S_T + 2}
  v_mov_b32 v7, s{S_T + 1}
  buffer_store_dwordx4 v[4:7], v{VZ}, {sr(SW, 4)}, s{S_T} offen
  v_mov_b32 v12, s{S_TS + 6}
  v_mov_b32 v13, s{S_TS + 8}
  v_mov_b32 v14, s{S_TS + 10}
  v_mov_b32 v15, s{S_WSUM}
  buffer_store_dwordx4 v[12:15], v{VZ}, {sr(SW, 4)}, s{S_T} offen offset:16
""")
    if o.diag:
        diag(a, o)
    a("""
L_end:
  s_endpgm
""")
    a("L_generic:")
    for r in vreads[14:]:
        a("  s_waitcnt lgkmcnt(8)")
        a(r)
    a("  s_waitcnt lgkmcnt(0)")
    for kb, j in order:
        a(pv_mfma(kb, j))
    a(f"""
  s_lshl_b32 s{S_T}, s{S_PAIR}, 2
  s_add_u32 s{S_T}, s{S_T}, s{S_WAVE}
  s_lshl_b32 s{S_T + 1}, s{S_T}, 13
  s_add_u32 s{S_T + 3}, s{S_T + 1}, 4096
  s_lshl_b32 s{S_T + 2}, s{S_T}, 9
  s_add_u32 s{S_T + 2}, s{S_T + 2}, {WS_DML}
  s_lshl_b32 s{S_T + 4}, 64, s{S_SH}
  v_lshlrev_b32 v{VT + 8}, 4, v{VLANE}
  v_lshlrev_b32 v{VT + 9}, 3, v{VLANE}
  s_cmp_eq_u32 s{S_MODE}, 1
  s_cbranch_scc0 L_second
  buffer_store_dwordx2 {vr(VM, 2)}, v{VT + 9}, {sr(SW, 4)}, s{S_T + 2} offen sc1
""")
    for j in range(8):
        so = S_T + 1 if j < 4 else S_T + 3
        a(f"  buffer_store_dwordx4 {vr(VO + 4 * j, 4)}, v{VT + 8}, {sr(SW, 4)}, s{so} offen offset:{1024 * (j & 3)} sc1")
    a(f"""
  s_waitcnt vmcnt(0)
  s_barrier
  s_cmp_eq_u32 s{S_WAVE}, 0
  s_cbranch_scc0 L_done
  v_mov_b32 v{VT}, s{S_T + 4}
  s_mov_b64 exec, 1
  buffer_atomic_or v{VT}, v{VZ}, {sr(SD, 4)}, s{S_DW} offen sc1
  s_mov_b64 exec, -1
  s_branch L_done
L_second:
  buffer_load_dword v{VT}, v{VZ}, {sr(SD, 4)}, s{S_DW} offen sc1
  s_sub_u32 s{S_I}, s{S_I}, 1
  s_cbranch_scc1 L_end
  s_waitcnt vmcnt(0)
  v_and_b32 v{VT}, s{S_T + 4}, v{VT}
  v_cmp_ne_u32 vcc, 0, v{VT}
  s_cbranch_vccz L_second
  buffer_load_dwordx2 {vr(m2, 2)}, v{VT + 9}, {sr(SW, 4)}, s{S_T + 2} offen sc1
""")
    for j in range(8):
        so = S_T + 1 if j < 4 else S_T + 3
        a(f"  buffer_load_dwordx4 {vr(VK + 4 * j, 4)}, v{VT + 8}, {sr(SW, 4)}, s{so} offen offset:{1024 * (j & 3)} sc1")
    a("  s_waitcnt vmcnt(0)")
    weights(a, m2, l2, mm)
    for r in range(8):
        a(f"  v_cvt_pk_bf16_f32 v{VK + 32 + r}, v{VK + 2 * r}, v{VK + 2 * r + 1}")
        a(f"  v_cvt_pk_bf16_f32 v{VK + 40 + r}, v{VO + 2 * r}, v{VO + 2 * r + 1}")
    merge_half(a, o, VO + 16, VK + 32, VM, m2, tmp, VS + 8, vout, S_KEEP)
    merge_half(a, o, VK + 16, VK + 40, m2, VM, tmp, VS, vout, S_SEND)
    a("  s_branch L_done")


def hooks(a, o):
    b = S_T
    a(f"""
L_hook:
  s_cmp_eq_u32 s{S_I}, {o.pre}
  s_cbranch_scc1 L_hook_pre
  s_mov_b64 exec, 1
  s_cmp_eq_u32 s{S_I}, 1
  s_cbranch_scc0 L_hook2
""")
    if o.force == "late":
        a(f"""
  s_cmp_eq_u32 s{S_HALF}, 0
  s_cbranch_scc1 L_nodelay
  s_lshl_b32 s{b + 1}, 32, s{S_SH}
  s_mov_b32 s{b + 2}, {SPIN}
L_delay:
  buffer_load_dword v{VT}, v{VZ}, {sr(SD, 4)}, s{S_DW} offen sc1
  s_sub_u32 s{b + 2}, s{b + 2}, 1
  s_cbranch_scc1 L_nodelay
  s_waitcnt vmcnt(0)
  v_and_b32 v{VT}, s{b + 1}, v{VT}
  v_cmp_ne_u32 vcc, 0, v{VT}
  s_cbranch_vccz L_delay
L_nodelay:
""")
    a(f"""
  s_lshl_b32 s{b}, s{S_ID}, s{S_SH}
  v_mov_b32 v{VHS}, s{b}
  buffer_atomic_xor v{VHS}, v{VZ}, {sr(SD, 4)}, s{S_DW} offen sc0 sc1
  s_mov_b32 s{S_HOOK}, 12
  s_branch L_hook_out
L_hook2:
  s_waitcnt vmcnt(0)
  v_readfirstlane_b32 s{b}, v{VHS}
  s_lshr_b32 s{b}, s{b}, s{S_SH}
  s_cmp_eq_u32 s{S_I}, 12
  s_cbranch_scc0 L_hook3
  s_bitcmp1_b32 s{b}, 4
  s_cbranch_scc1 L_hook_second
  buffer_load_dword v{VHS}, v{VZ}, {sr(SD, 4)}, s{S_DW} offen sc1
  s_mov_b32 s{S_HOOK}, 16
  s_branch L_hook_out
L_hook_second:
  s_and_b32 s{b}, s{b}, 0x3f
  s_cmp_eq_u32 s{b}, s{S_ID}
  s_cselect_b32 s{b}, 0, 2
  s_branch L_hook_mode
L_hook3:
  s_bitcmp1_b32 s{b}, 4
  s_cbranch_scc0 L_hook_first
  s_lshl_b32 s{b}, 32, s{S_SH}
  v_mov_b32 v{VHS}, s{b}
  buffer_atomic_or v{VHS}, v{VZ}, {sr(SD, 4)}, s{S_DW} offen sc0 sc1
  s_waitcnt vmcnt(0)
  v_readfirstlane_b32 s{b}, v{VHS}
  s_lshr_b32 s{b}, s{b}, s{S_SH}
L_hook_first:
  s_and_b32 s{b}, s{b}, 0x1f
  s_cmp_eq_u32 s{b}, 0
  s_cselect_b32 s{b}, 0, 1
L_hook_mode:
  v_mov_b32 v{VHS}, s{b}
  v_mov_b32 v{VT}, {LDS_MODE}
  ds_write_b32 v{VT}, v{VHS}
  s_mov_b32 s{S_HOOK}, {o.pre}
  s_waitcnt lgkmcnt(0)
L_hook_out:
  s_mov_b64 exec, -1
  s_branch L_hook_ret
L_hook_pre:
  buffer_load_dword v{VDUM}, v{VBOX}, {sr(SQ, 4)}, s{S_KEEP} offen{o.paux}
  v_and_b32 v{VT}, 15, v{VLANE}
  v_lshlrev_b32 v{VT}, 5, v{VT}
  buffer_load_dword v{VDUM + 1}, v{VT}, {sr(SW, 4)}, s{S_BLK} offen{o.paux}
  s_branch L_hook_ret
""")


def controller(a, o):
    nw = len(o.wins)
    x, e, g = S_T, S_T + 1, S_T + 2
    t = VT
    a(f"""
L_ctl:
  s_waitcnt vmcnt(0)
  s_cmp_eq_u32 s{S_CTL}, 0
  s_cbranch_scc1 L_ctl_ret
  v_sub_u32 v{t}, v{VCT}, v{VCB}
  s_add_u32 s{x}, s{S_I}, 1
  v_add_u32 v{t + 1}, s{x}, v{VCB}
  s_cmp_lt_u32 s{S_I}, {o.lfirst}
  s_cbranch_scc1 L_ctl_nopub
  s_lshl_b64 exec, 1, s{S_SLOT}
  buffer_store_dword v{t + 1}, v{VCA}, {sr(SW, 4)}, s{S_LOC} offen
L_ctl_nopub:
  s_sub_u32 s{x}, s{S_I}, s{S_REP}
  s_cmp_gt_u32 s{x}, 1
  s_cbranch_scc1 L_ctl_nolead
  s_lshl_b64 exec, 1, 32
  s_cmp_eq_u32 s{x}, 0
  s_cbranch_scc0 L_ctl_rank
  v_mov_b32 v{VAT}, 1
  buffer_atomic_add v{VAT}, v{VZ}, {sr(SW, 4)}, s{S_REPV} offen sc0 sc1
  s_branch L_ctl_nolead
L_ctl_rank:
  v_sub_u32 v{VAT}, v{VAT}, v{VG0}
  v_lshl_add_u32 v{VAT}, v{VAT}, 1, v{VCB}
  v_subrev_u32 v{VAT}, 7, v{VAT}
  buffer_store_dword v{VAT}, v{VCA}, {sr(SW, 4)}, s{S_LOC} offen
L_ctl_nolead:
  s_mov_b64 exec, -1
  buffer_load_dword v{VCT}, v{VCA}, {sr(SW, 4)}, s{S_LOC} offen sc1
  s_cmp_lt_u32 s{S_I}, {o.cstart}
  s_cbranch_scc1 L_ctl_ret
  v_cmp_ne_u32 vcc, 0, v{t}
  v_readlane_b32 s{g}, v{t}, 32
  v_add_u32_dpp v{t}, v{t}, v{t} row_shr:1 row_mask:0xf bank_mask:0xf bound_ctrl:1
  s_nop 1
  v_add_u32_dpp v{t}, v{t}, v{t} row_shr:2 row_mask:0xf bank_mask:0xf bound_ctrl:1
  s_nop 1
  v_add_u32_dpp v{t}, v{t}, v{t} row_shr:4 row_mask:0xf bank_mask:0xf bound_ctrl:1
  s_nop 1
  v_add_u32_dpp v{t}, v{t}, v{t} row_shr:8 row_mask:0xf bank_mask:0xf bound_ctrl:1
  s_cmp_eq_u32 vcc_lo, -1
  s_cbranch_scc0 L_ctl_end
  v_readlane_b32 s{x}, v{t}, 15
  v_readlane_b32 s{e}, v{t}, 31
  s_max_i32 s{g}, s{g}, -7
  s_min_i32 s{g}, s{g}, 7
  s_add_u32 s{x}, s{x}, s{e}
  s_lshl_b32 s{e}, s{S_I}, 5
  s_sub_i32 s{e}, s{x}, s{e}
  s_add_i32 s{e}, s{e}, {32 - o.bias}
  s_max_i32 s{e}, s{e}, -128
  s_min_i32 s{e}, s{e}, 128
""")
    if o.logerr:
        a(f"  s_add_i32 s{S_WSUM}, s{S_WSUM}, s{e if o.logerr == 1 else g}")
    if o.ki or o.kig:
        a(f"""
  s_mul_i32 s{x}, s{e}, {o.ki}
  s_add_i32 s{S_INT}, s{S_INT}, s{x}
  s_mul_i32 s{x}, s{g}, {o.kig}
  s_add_i32 s{S_INT}, s{S_INT}, s{x}
  s_max_i32 s{S_INT}, s{S_INT}, {-o.imax * 512}
  s_min_i32 s{S_INT}, s{S_INT}, {o.imax * 512}
""")
    a(f"""
  s_mul_i32 s{e}, s{e}, {o.kp}
  s_mul_i32 s{g}, s{g}, {o.kpg}
  s_add_i32 s{e}, s{e}, s{g}
  s_add_i32 s{e}, s{e}, s{S_INT}
  s_add_i32 s{e}, s{e}, {int(o.w0 * 512 + 256)}
  s_ashr_i32 s{e}, s{e}, 9
  s_max_i32 s{e}, s{e}, 0
  s_min_i32 s{e}, s{e}, {nw - 1}
""")
    if o.stamp and not o.logerr:
        a(f"  s_add_u32 s{S_WSUM}, s{S_WSUM}, s{e}")
    a(f"""
  v_mov_b32 v{t}, s{e}
  v_mov_b32 v{t + 2}, {LDS_WIN}
  ds_write_b32 v{t + 2}, v{t}
  s_waitcnt lgkmcnt(0)
L_ctl_end:
  s_cmp_lt_u32 s{S_I}, {o.cend}
  s_cselect_b32 s{S_CTL}, s{S_CTL}, 0
  s_branch L_ctl_ret
""")


def diag(a, o):
    ts = lambda i: S_TS + 2 * i
    kind, idx = o.diag.split(":")
    idx = int(idx)
    a(f"""
  s_add_u32 s{S_T + 1}, s{ts(0)}, 8000
L_dg0:
  s_sleep 8
  s_memrealtime s[{S_T + 3}:{S_T + 4}]
  s_waitcnt lgkmcnt(0)
  s_sub_u32 s{S_T + 3}, s{S_T + 3}, s{S_T + 1}
  s_cmp_lt_i32 s{S_T + 3}, 0
  s_cbranch_scc1 L_dg0
  s_mov_b64 exec, 1
  s_not_b32 s{S_T}, s{ts(0)}
  v_mov_b32 v4, s{S_T}
  buffer_atomic_umax v4, v{VZ}, {sr(SD, 4)}, 0 offen offset:244 sc1
  v_mov_b32 v5, s{ts(idx)}
""")
    if o.diagx >= 0:
        a(f"""
  s_and_b32 s{S_T}, s2, 7
  s_cmp_eq_u32 s{S_T}, {o.diagx}
  s_cbranch_scc0 L_dgskip
""")
    a(f"""
  buffer_atomic_umax v5, v{VZ}, {sr(SD, 4)}, 0 offen offset:248 sc1
  buffer_atomic_add v5, v{VZ}, {sr(SD, 4)}, 0 offen offset:252 sc1
L_dgskip:
  s_or_b32 s{S_T}, s2, s{S_WAVE}
  s_cmp_lg_u32 s{S_T}, 0
  s_cbranch_scc1 L_end
  s_add_u32 s{S_T + 1}, s{ts(0)}, 19000
L_dg1:
  s_memrealtime s[{S_T + 3}:{S_T + 4}]
  s_waitcnt lgkmcnt(0)
  s_sub_u32 s{S_T + 3}, s{S_T + 3}, s{S_T + 1}
  s_cmp_lt_i32 s{S_T + 3}, 0
  s_cbranch_scc1 L_dg1
  buffer_load_dword v4, v{VZ}, {sr(SD, 4)}, 0 offen offset:244 sc1
  buffer_load_dword v5, v{VZ}, {sr(SD, 4)}, 0 offen offset:{248 if kind != "mean" else 252} sc1
  s_waitcnt vmcnt(0)
  v_readfirstlane_b32 s{S_T}, v4
  v_readfirstlane_b32 s{S_T + 1}, v5
  s_not_b32 s{S_T}, s{S_T}
""")
    sh = 10 if o.diagx < 0 else 7
    if kind == "zero":
        a(f"  s_mov_b32 s{S_T + 1}, 0")
    elif kind == "max":
        a(f"  s_sub_u32 s{S_T + 1}, s{S_T + 1}, s{S_T}")
    else:
        a(f"  s_lshl_b32 s{S_T + 2}, s{S_T}, {sh}")
        a(f"  s_sub_u32 s{S_T + 1}, s{S_T + 1}, s{S_T + 2}")
        a(f"  s_lshr_b32 s{S_T + 1}, s{S_T + 1}, {sh}")
    a(f"""
  s_min_u32 s{S_T + 1}, s{S_T + 1}, 10000
  s_add_u32 s{S_T + 1}, s{S_T + 1}, 20000
  s_sub_u32 s{S_T + 2}, s{ts(0)}, s{S_T}
  s_min_u32 s{S_T + 2}, s{S_T + 2}, 1000
  s_sub_u32 s{S_T}, s{ts(0)}, s{S_T + 2}
  s_add_u32 s{S_T + 1}, s{S_T + 1}, s{S_T}
L_dg2:
  s_memrealtime s[{S_T + 3}:{S_T + 4}]
  s_waitcnt lgkmcnt(0)
  s_sub_u32 s{S_T + 3}, s{S_T + 3}, s{S_T + 1}
  s_cmp_lt_i32 s{S_T + 3}, 0
  s_cbranch_scc1 L_dg2
""")


def build(o):
    a = Asm()
    a(HEADER)
    label = f"{NAME}_kernel"
    a(f"; @launch grid=(256,1,1) block=(320,1,1) lds={LDS_BYTES}")
    a('.amdgcn_target "amdgcn-amd-amdhsa--gfx950"')
    a(f"""
.text
.globl {label}
.p2align 8
.type {label},@function
{label}:
  s_cmp_ge_u32 s2, 256
  s_cbranch_scc1 L_end
  s_load_dwordx8 s[{S_ARG}:{S_ARG + 7}], s[0:1], 0
  s_load_dwordx4 s[{S_ARG + 8}:{S_ARG + 11}], s[0:1], 32
""")
    stamp(a, o, 0)
    a(f"  v_readfirstlane_b32 s{S_WAVE}, v0")
    if o.map == 0:
        a(f"""
  s_and_b32 s{S_T}, s2, 7
  s_lshr_b32 s{S_T + 1}, s2, 4
  s_lshl_b32 s{S_T + 1}, s{S_T + 1}, 3
  s_or_b32 s{S_PAIR}, s{S_T}, s{S_T + 1}
  s_bfe_u32 s{S_HALF}, s2, 0x10003
""")
    elif o.map == 1:
        a(f"""
  s_lshr_b32 s{S_PAIR}, s2, 1
  s_and_b32 s{S_HALF}, s2, 1
""")
    a(f"""
  s_lshr_b32 s{S_WAVE}, s{S_WAVE}, 6
  s_cmp_lg_u32 s{S_WAVE}, 0
  s_cbranch_scc1 L_compute
""")
    loader(a, o)
    prologue(a, o)
    mainloop(a, o)
    epilogue(a, o)
    hooks(a, o)
    controller(a, o)
    a(f"""
.section .rodata,"a"
.p2align 6
.amdhsa_kernel {label}
  .amdhsa_next_free_vgpr {NVGPR}
  .amdhsa_next_free_sgpr {NSGPR}
  .amdhsa_accum_offset {NVGPR}
  .amdhsa_group_segment_fixed_size 0
  .amdhsa_kernarg_size 48
  .amdhsa_user_sgpr_count 2
  .amdhsa_user_sgpr_kernarg_segment_ptr 1
  .amdhsa_system_sgpr_workgroup_id_x 1
.end_amdhsa_kernel
""")
    return a.text()


if __name__ == "__main__":
    ap = argparse.ArgumentParser()
    ap.add_argument("-o", default="cdna_kernels/" + NAME + ".s")
    ap.add_argument("--wins", default="14,16,18,20,22,24,26,28,30,32")
    ap.add_argument("--winit", type=int, default=24)
    ap.add_argument("--w0", type=float, default=4.0)
    ap.add_argument("--kp", type=int, default=32)
    ap.add_argument("--ki", type=int, default=0)
    ap.add_argument("--kpg", type=int, default=128)
    ap.add_argument("--kig", type=int, default=0)
    ap.add_argument("--imax", type=int, default=4)
    ap.add_argument("--bias", type=int, default=16)
    ap.add_argument("--lfirst", type=int, default=1)
    ap.add_argument("--gfirst", type=int, default=2)
    ap.add_argument("--gstep", type=int, default=2)
    ap.add_argument("--glast", type=int, default=26)
    ap.add_argument("--cstart", type=int, default=3)
    ap.add_argument("--cend", type=int, default=30)
    ap.add_argument("--noctl", action="store_true")
    ap.add_argument("--logerr", type=int, default=0)
    ap.add_argument("--pre", type=int, default=30)
    ap.add_argument("--aux", default="nt")
    ap.add_argument("--qaux", default="nt")
    ap.add_argument("--oaux", default="")
    ap.add_argument("--paux", default="sc1")
    ap.add_argument("--stamp", action="store_true")
    ap.add_argument("--st", default="0,8,16")
    ap.add_argument("--estamp", type=int, default=0)
    ap.add_argument("--gaux", default="sc1")
    ap.add_argument("--baux", default="nt")
    ap.add_argument("--path", default="s")
    ap.add_argument("--nl", type=int, default=3)
    ap.add_argument("--map", type=int, default=0)
    ap.add_argument("--rot", default="")
    ap.add_argument("--force", default="")
    ap.add_argument("--diag", default="")
    ap.add_argument("--diagx", type=int, default=-1)
    o = ap.parse_args()
    o.wins = [int(x) for x in o.wins.split(",")]
    o.st = [int(x) for x in o.st.split(",")]
    o.rot = [int(x) for x in o.rot.split(",")] if o.rot else None
    o.stamp = o.stamp or bool(o.diag)
    fx = lambda s: (" " + s.replace(",", " ")) if s else ""
    o.aux, o.qaux, o.oaux, o.paux, o.gaux = fx(o.aux), fx(o.qaux), fx(o.oaux), fx(o.paux), fx(o.gaux)
    o.baux = fx(o.baux)
    open(o.o, "w").write(build(o))
```

```python
import argparse
import math
import struct

NAME = "standalone__gqa_softmax__sampling"

HEADER = """; Kernarg layout for this problem (48 bytes, ptrs only, base s[0:1]):
"""


class Asm:
    def __init__(self):
        self.lines = []

    def __call__(self, s):
        for ln in s.strip("\n").split("\n"):
            self.lines.append(ln)

    def text(self):
        return "\n".join(self.lines) + "\n"


class LdsTracker:
    def __init__(self, a):
        self.a, self.issued, self.done = a, 0, 0

    def need(self, n):
        assert n <= self.issued
        if n > self.done:
            self.a(f"  s_waitcnt lgkmcnt({self.issued - n})")
            self.done = n

    def issue(self, line):
        if self.issued - self.done >= 15:
            self.need(self.issued - 11)
        self.a(line)
        self.issued += 1


def vr(a, n=1):
    return f"v{a}" if n == 1 else f"v[{a}:{a + n - 1}]"


def sr(a, n):
    return f"s[{a}:{a + n - 1}]"


def f32hex(x):
    return "0x%08x" % struct.unpack("<I", struct.pack("<f", x))[0]


VQ = 4
VO = 20
VS = 52
VP = 68
VK = 76
VV = 140
VKB = 204
VVB = 208
VKA = 216
VVA = 220
VM = 228
VL = 229
VT = 230
VLANE = 242
VHS = 243
VZ = 244
VCT = 245
VCB = 246
VCA = 247
VFL = 248
VBOX = 252
VG0 = 253
VAT = 254
VDUM = 255
NVGPR = 256
VDK = 4
VDV = 8

SK = 4
SV = 8
SQ = 12
SW = 16
S_WAVE = 20
S_I = 21
S_OFFK = 22
S_OFFV = 23
S_RD = 25
S_C = 26
S_PAIR = 27
S_ARG = 28
S_HALF = 40
S_T = 41
S_TS = 48
SD = 60
S_HOOK = 64
S_BLK = 65
S_KEEP = 66
S_SEND = 67
S_MODE = 68
S_OUT = 69
S_SH = 70
S_CTL = 71
S_REP = 72
S_REPV = 73
S_INT = 74
S_WSUM = 75
S_DW = 76
S_ID = 77
S_LOC = 78
S_SLOT = 79
NSGPR = 88

TILE = 16384
UNIT = 32768
NS = 3
LDS_MODE = UNIT * NS
LDS_WIN = UNIT * NS + 4
LDS_BYTES = UNIT * NS + 64
KOFF = TILE
VOFF = 0

WS_DUMP = 0x0
WS_DML = 0x400000
WS_BLK = 0x500000
WS_REP = 0x600000
WS_LOC = 0x700000
REP_STRIDE = 4352
WS_STAMP = 0xC00000
WS_SIZE = 0x1000000
SPIN = 0x40000


def stamp(a, o, idx):
    if o.stamp:
        a(f"  s_memrealtime s[{S_TS + 2 * idx}:{S_TS + 2 * idx + 1}]")


def xlane_ops(op, reg, t0, t1):
    return [
        f"  v_mov_b32 v{t0}, v{reg}",
        f"  v_mov_b32 v{t1}, v{reg}",
        "  s_nop 1",
        f"  v_permlane32_swap_b32 v{t0}, v{t1}",
        f"  {op} v{t0}, v{t0}, v{t1}",
        f"  v_mov_b32 v{t1}, v{t0}",
        "  s_nop 1",
        f"  v_permlane16_swap_b32 v{t0}, v{t1}",
        f"  {op} v{reg}, v{t0}, v{t1}",
    ]


def gbase(o, g):
    return ((g & 1) << o.bits[4]) + ((g >> 1) << o.bits[5])


def group(a, o, isv, first_piece, w, barrier_at, waits=True):
    srd, off = (SV, S_OFFV) if isv else (SK, S_OFFK)
    g = (first_piece // 4) & 3
    for p in range(4):
        if waits:
            a(f"  s_waitcnt vmcnt({w - 1})")
        elif p == 0:
            a("  s_nop 0")
        vo = (VDV if isv else VDK) + p
        a(f"  buffer_load_dwordx4 v{vo}, {sr(srd, 4)}, s{off} offen offset:{1024 * p}{o.aux} lds")
        if barrier_at is not None and first_piece + p == barrier_at:
            a("  s_barrier")
    inc = (gbase(o, g + 1) if g < 3 else o.tstride) - gbase(o, g)
    a(f"  s_addk_i32 s{off}, {inc}")
    a("  s_addk_i32 m0, 4096")
    if o.rot and g == 3:
        a(f"  s_bitset0_b32 s{off}, {o.wrapbit}")


def dispatch(a, lo, hi):
    if lo == hi:
        a(f"  s_branch L_ld_v{lo}")
        return
    mid = (lo + hi + 1) // 2
    a(f"  s_cmp_ge_u32 s{S_T}, {mid}")
    if mid == hi:
        a(f"  s_cbranch_scc1 L_ld_v{mid}")
        dispatch(a, lo, mid - 1)
        return
    a(f"  s_cbranch_scc1 L_dsp_{mid}_{hi}")
    dispatch(a, lo, mid - 1)
    a(f"L_dsp_{mid}_{hi}:")
    dispatch(a, mid, hi)


def loader(a, o):
    wins = o.wins
    multi = len(wins) > 1
    a(f"""
  s_setprio 3
  v_and_b32 v2, 15, v0
  v_lshrrev_b32 v3, 4, v0
  s_lshl_b32 s{S_T + 1}, s{S_HALF}, {o.split}
""")
    if o.bits[1] == o.bits[0] + 1:
        a(f"  v_lshl_add_u32 v1, v3, {o.bits[0]}, s{S_T + 1}")
    else:
        a(f"""
  v_and_b32 v1, 1, v3
  v_lshl_add_u32 v1, v1, {o.bits[0]}, s{S_T + 1}
  v_lshrrev_b32 v12, 5, v0
  v_lshl_add_u32 v1, v12, {o.bits[1]}, v1
""")
    a("  v_xor_b32 v12, v2, v3" if "s" not in o.x else "  v_mov_b32 v12, v2")
    pconst = [((p & 1) << o.bits[2]) + ((p >> 1) << o.bits[3]) - 1024 * p for p in range(4)]
    assert min(pconst) >= 0
    for p in range(4):
        a(f"  v_xor_b32 v13, {4 * p if 's' not in o.x else 0}, v12")
        a(f"  v_lshl_add_u32 v{VDK + p}, v13, 4, v1")
        if pconst[p]:
            a(f"  v_add_u32 v{VDK + p}, {pconst[p]}, v{VDK + p}")
    a(f"""
  s_mov_b32 s{SK + 2}, 0x100000
  s_mov_b32 s{SK + 3}, 0x20000
  s_lshr_b32 s{S_OFFK}, s2, 4
  s_mul_i32 s{S_OFFK}, s{S_OFFK}, {o.rot * o.tstride}
  s_movk_i32 m0, {KOFF}
  s_lshl_b32 s{S_T}, s{S_PAIR}, 20
  s_mov_b32 s{SV + 2}, 0x100000
  s_mov_b32 s{SV + 3}, 0x20000
  s_mov_b32 s{S_OFFV}, s{S_OFFK}
  v_lshlrev_b32 v12, 1, v3
  {"v_xor_b32 v12, v2, v12" if "s" not in o.x else "v_mov_b32 v12, v2"}
  v_lshl_add_u32 v{VDV}, v12, 4, v1
  v_xor_b32 v13, {8 if "s" not in o.x else 0}, v12
  v_lshl_add_u32 v{VDV + 1}, v13, 4, v1
  v_add_u32 v{VDV + 2}, {pconst[2]}, v{VDV}
  v_add_u32 v{VDV + 3}, {pconst[3]}, v{VDV + 1}
  v_add_u32 v{VDV + 1}, {pconst[1]}, v{VDV + 1}
  s_mov_b32 s{S_I}, 1
  v_mov_b32 v12, {LDS_WIN}
  s_waitcnt lgkmcnt(0)
  s_add_u32 s{SK}, s{S_ARG + 2}, s{S_T}
  s_addc_u32 s{SK + 1}, s{S_ARG + 3}, 0
  s_add_u32 s{SV}, s{S_ARG + 4}, s{S_T}
  s_addc_u32 s{SV + 1}, s{S_ARG + 5}, 0
""")
    first = wins.index(o.winit)
    for g in range(4):
        group(a, o, False, 4 * g, o.winit, None, waits=(4 * g + 3 >= o.winit))
    order = [first] + [i for i in range(len(wins)) if i != first]
    for vi in order:
        w = wins[vi]
        a(f"L_ld_v{vi}:")
        for g in range(4):
            group(a, o, True, 4 * g, w, w - 1)
        a(f"  s_cmp_eq_u32 s{S_I}, 32")
        a(f"  s_cbranch_scc1 {'L_ld_tail2' if w - 1 < 16 else 'L_ld_tail1'}")
        early = w - 1 < 28
        for g in range(4, 8):
            if multi and early and g == 7:
                a("  ds_read_b32 v13, v12")
            group(a, o, False, 4 * g, w, w - 1)
        if multi and not early:
            a("  ds_read_b32 v13, v12")
        a(f"""
  s_cmp_ge_u32 m0, {UNIT * NS}
  s_cselect_b32 m0, 0, m0
  s_add_u32 s{S_I}, s{S_I}, 1
""")
        if multi:
            a(f"""
  s_waitcnt lgkmcnt(0)
  v_readfirstlane_b32 s{S_T}, v13
  s_cmp_eq_u32 s{S_T}, {vi}
  s_cbranch_scc1 L_ld_v{vi}
  s_branch L_ld_dispatch
""")
        else:
            a(f"  s_branch L_ld_v{vi}")
    if multi:
        a("L_ld_dispatch:")
        dispatch(a, 0, len(wins) - 1)
    npre = 0 if "p" in o.x else 128 // o.pstride + 1
    for tail in (1, 2):
        if tail == 2 and min(wins) - 1 >= 16:
            continue
        a(f"L_ld_tail{tail}:")
        if npre:
            a(f"""
  s_mov_b32 s{SQ}, s{S_ARG + 6}
  s_mov_b32 s{SQ + 1}, s{S_ARG + 7}
  s_mov_b32 s{SQ + 2}, 0x200000
  s_mov_b32 s{SQ + 3}, 0x20000
  s_lshl_b32 s{S_T}, s{S_PAIR}, 14
  s_lshl_b32 s{S_T + 1}, s{S_HALF}, 7
  s_or_b32 s{S_T}, s{S_T}, s{S_T + 1}
  v_lshlrev_b32 v14, 8, v0
""")
            for n in range(npre - 1):
                a(f"  buffer_load_dword v{16 + n}, v14, {sr(SQ, 4)}, s{S_T} offen offset:{n * o.pstride}{o.paux}")
            a(f"""
  s_mov_b32 s{SW}, s{S_ARG + 10}
  s_mov_b32 s{SW + 1}, s{S_ARG + 11}
  s_mov_b32 s{SW + 2}, {WS_SIZE}
  s_mov_b32 s{SW + 3}, 0x20000
  s_lshl_b32 s{S_T}, s{S_PAIR}, 11
  s_add_u32 s{S_T}, s{S_T}, {WS_BLK}
  v_lshlrev_b32 v15, 5, v0
  buffer_load_dword v20, v15, {sr(SW, 4)}, s{S_T} offen{o.paux}
""")
        if tail == 1:
            a(f"  s_waitcnt vmcnt({16 + npre})")
            a("  s_barrier")
        a(f"""
  s_waitcnt vmcnt({npre})
  s_barrier
  s_endpgm
""")


def v_read(kb, j, t):
    dst = VV + (kb * 8 + j) * 4 + 2 * t
    return f"  ds_read_b64_tr_b16 {vr(dst, 2)}, v{VVA + j} offset:{VOFF + 4096 * (2 * kb + t)}"


def pv_mfma(kb, j):
    return f"  v_mfma_f32_16x16x32_bf16 {vr(VO + 4 * j, 4)}, {vr(VV + (kb * 8 + j) * 4, 4)}, {vr(VP + 4 * kb, 4)}, {vr(VO + 4 * j, 4)}"


def qk_mfma(t, s):
    cin = "0" if s == 0 else vr(VS + 4 * t, 4)
    return f"  v_mfma_f32_16x16x32_bf16 {vr(VS + 4 * t, 4)}, {vr(VK + (t * 4 + s) * 4, 4)}, {vr(VQ + 4 * s, 4)}, {cin}"


def weights(a, m2, l2, mm):
    a(f"""
  v_max_f32 v{mm}, v{VM}, v{m2}
  v_sub_f32 v{VM}, v{VM}, v{mm}
  v_sub_f32 v{m2}, v{m2}, v{mm}
  v_exp_f32 v{VM}, v{VM}
  v_exp_f32 v{m2}, v{m2}
  s_nop 0
  v_mul_f32 v{VL}, v{VL}, v{VM}
  v_mul_f32 v{l2}, v{l2}, v{m2}
  v_add_f32 v{VL}, v{VL}, v{l2}
  v_rcp_f32 v{VL}, v{VL}
  s_nop 0
  v_mul_f32 v{VM}, v{VM}, v{VL}
  v_mul_f32 v{m2}, v{m2}, v{VL}
""")


def merge_half(a, o, own, pk, w_own, w_oth, tmp, dst, vaddr, soff):
    for jj in range(4):
        for r in range(4):
            a(f"  v_mul_f32 v{own + 4 * jj + r}, v{own + 4 * jj + r}, v{w_own}")
        for h in range(2):
            a(f"  v_lshlrev_b32 v{tmp + 2 * h}, 16, v{pk + 2 * jj + h}")
            a(f"  v_and_b32 v{tmp + 2 * h + 1}, 0xffff0000, v{pk + 2 * jj + h}")
        for r in range(4):
            a(f"  v_fmac_f32 v{own + 4 * jj + r}, v{tmp + r}, v{w_oth}")
        a(f"  v_cvt_pk_bf16_f32 v{dst + 2 * jj}, v{own + 4 * jj}, v{own + 4 * jj + 1}")
        a(f"  v_cvt_pk_bf16_f32 v{dst + 2 * jj + 1}, v{own + 4 * jj + 2}, v{own + 4 * jj + 3}")
        if jj & 1:
            d = dst + 2 * (jj - 1)
            a("  s_nop 1")
            a(f"  v_permlane16_swap_b32 v{d}, v{d + 2}")
            a(f"  v_permlane16_swap_b32 v{d + 1}, v{d + 3}")
            a(f"  buffer_store_dwordx4 {vr(d, 4)}, v{vaddr}, {sr(SQ, 4)}, s{soff} offen offset:{64 * (jj >> 1)}{o.oaux}")


def prologue(a, o):
    c = (128 ** -0.5) * math.log2(math.e)
    multi = len(o.wins) > 1 and not o.noctl
    a(f"""
L_compute:
  s_sub_u32 s{S_WAVE}, s{S_WAVE}, 1
  v_and_b32 v{VLANE}, 63, v0
  v_and_b32 v2, 15, v0
  v_bfe_u32 v3, v0, 4, 2
  s_mov_b32 s{SQ + 2}, 0x200000
  s_mov_b32 s{SQ + 3}, 0x20000
  s_mov_b32 s{SW + 2}, {WS_SIZE}
  s_mov_b32 s{SW + 3}, 0x20000
  s_mov_b32 s{SD + 2}, 256
  s_mov_b32 s{SD + 3}, 0x20000
  s_lshl_b32 s{S_T}, s{S_PAIR}, 2
  s_add_u32 s{S_T}, s{S_T}, s{S_WAVE}
  s_lshl_b32 s{S_OUT}, s{S_T}, 12
  s_lshl_b32 s{S_BLK}, s{S_T}, 9
  s_add_u32 s{S_BLK}, s{S_BLK}, {WS_BLK}
  s_lshl_b32 s{S_T}, s{S_HALF}, 7
  s_add_u32 s{S_KEEP}, s{S_OUT}, s{S_T}
  s_xor_b32 s{S_SEND}, s{S_KEEP}, 128
  v_lshlrev_b32 v{VT}, 8, v2
  v_lshl_add_u32 v{VBOX}, v3, 4, v{VT}
  v_mov_b32 v{VZ}, 0
  v_min_u32 v{VCA}, 32, v{VLANE}
  v_lshlrev_b32 v{VCA}, 2, v{VCA}
  s_getreg_b32 s{S_ID}, hwreg(HW_REG_XCC_ID, 0, 4)
  s_mul_i32 s{S_LOC}, s{S_ID}, {REP_STRIDE}
  s_add_u32 s{S_LOC}, s{S_LOC}, {WS_LOC}
  s_or_b32 s{S_ID}, s{S_ID}, 16
  s_lshr_b32 s{S_SLOT}, s2, 3
  s_mul_i32 s{S_REPV}, s{S_SLOT}, {REP_STRIDE}
  s_add_u32 s{S_REPV}, s{S_REPV}, {WS_REP}
  s_mul_i32 s{S_REP}, s{S_SLOT}, {o.gstep}
  s_add_u32 s{S_REP}, s{S_REP}, {o.gfirst}
  s_cmp_le_u32 s{S_REP}, {o.glast}
  s_cselect_b32 s{S_REP}, s{S_REP}, 64
  s_cmp_eq_u32 s{S_WAVE}, 1
  s_cselect_b32 s{S_CTL}, {1 if multi else 0}, 0
  s_waitcnt lgkmcnt(0)
  s_mov_b32 s{SQ}, s{S_ARG}
  s_mov_b32 s{SQ + 1}, s{S_ARG + 1}
  s_mov_b32 s{SW}, s{S_ARG + 10}
  s_mov_b32 s{SW + 1}, s{S_ARG + 11}
  s_mov_b32 s{SD}, s{S_ARG + 8}
  s_mov_b32 s{SD + 1}, s{S_ARG + 9}
""")
    for s in range(4 if "q" not in o.x else 0):
        a(f"  buffer_load_dwordx4 {vr(VQ + 4 * s, 4)}, v{VBOX}, {sr(SQ, 4)}, s{S_OUT} offen offset:{64 * s}{o.qaux}")
    a(f"""
  buffer_load_dwordx4 {vr(VFL, 4)}, v{VZ}, {sr(SW, 4)}, s{S_BLK} offen offset:256{o.faux}
  s_cmp_eq_u32 s{S_CTL}, 0
  s_cbranch_scc1 L_nobase
  buffer_load_dword v{VCB}, v{VCA}, {sr(SW, 4)}, s{S_LOC} offen sc1
  buffer_load_dword v{VG0}, v{VZ}, {sr(SW, 4)}, s{S_REPV} offen{o.baux}
L_nobase:
  s_mov_b32 s{S_INT}, 0
  s_mov_b32 s{S_WSUM}, 0
  v_mov_b32 v{VT + 3}, {LDS_WIN}
  v_mov_b32 v{VT + 4}, {o.wins.index(o.winit)}
  ds_write_b32 v{VT + 3}, v{VT + 4}
  s_and_b32 s{S_SH}, s{S_PAIR}, 3
  s_lshl_b32 s{S_SH}, s{S_SH}, 3
  s_and_b32 s{S_DW}, s{S_PAIR}, 0x7c
  v_xor_b32 v{VT + 1}, v2, v3
""")
    for s in range(4):
        a(f"  v_xor_b32 v{VT + 3}, {4 * s}, v{VT + 1}")
        a(f"  v_lshl_add_u32 v{VKB + s}, v{VT + 3}, 4, v{VT}")
    a(f"""
  s_lshl_b32 s{S_T}, s{S_HALF}, 3
  s_xor_b32 s{S_T}, s{S_T}, 8
  v_bfe_u32 v{VT}, v0, 2, 4
  v_and_b32 v{VT + 1}, 7, v{VT}
  v_lshlrev_b32 v{VT + 1}, 1, v{VT + 1}
  v_xor_b32 v{VT + 1}, s{S_T}, v{VT + 1}
  v_lshlrev_b32 v{VT}, 8, v{VT}
  v_and_b32 v{VT + 3}, 3, v0
  v_lshl_add_u32 v{VT}, v{VT + 3}, 3, v{VT}
""")
    for j in range(8):
        a(f"  v_xor_b32 v{VT + 3}, {2 * j}, v{VT + 1}")
        a(f"  v_lshl_add_u32 v{VVB + j}, v{VT + 3}, 4, v{VT}")
    for r in range(32):
        a(f"  v_mov_b32 v{VO + r}, 0")
    for r in range(8):
        a(f"  v_mov_b32 v{VP + r}, 0")
    a(f"  v_subrev_u32 v{VT}, 64, v0")
    a(f"  v_lshlrev_b32 v{VT}, 4, v{VT}")
    for p in range(4):
        a(f"  ds_write_b128 v{VT}, {vr(VO, 4)} offset:{VOFF + 4096 * p}")
    a(f"""
  v_mov_b32 v{VM}, 0xff800000
  v_mov_b32 v{VL}, 0
  s_mov_b32 s{S_C}, {f32hex(c)}
  s_mov_b32 s{S_RD}, 0
  s_mov_b32 s{S_I}, 0
  s_cmp_eq_u32 s{S_WAVE}, 0
  s_cselect_b32 s{S_HOOK}, {o.hello}, -1
  s_mov_b32 s{SQ}, s{S_ARG + 6}
  s_mov_b32 s{SQ + 1}, s{S_ARG + 7}
  s_waitcnt lgkmcnt(0)
""")


def mainloop(a, o):
    t0, t1, mx, al = VT, VT + 1, VT + 2, VT + 3
    a("L_loop:")
    for s in range(4):
        a(f"  v_add_u32 v{VKA + s}, s{S_RD}, v{VKB + s}")
    for j in range(8):
        a(f"  v_add_u32 v{VVA + j}, s{S_RD}, v{VVB + j}")
    a(f"""
  s_add_u32 s{S_RD}, s{S_RD}, {UNIT}
  s_cmp_ge_u32 s{S_RD}, {UNIT * NS}
  s_cselect_b32 s{S_RD}, 0, s{S_RD}
  s_cmp_lg_u32 s{S_CTL}, 0
  s_barrier
  s_waitcnt vmcnt(0)
  s_cbranch_scc1 L_ctl
L_ctl_ret:
""")
    if o.stamp and not o.estamp:
        for idx, it in ((3, o.st[0]), (4, o.st[1]), (5, o.st[2])):
            a(f"  s_cmp_lg_u32 s{S_I}, {it}")
            a(f"  s_cbranch_scc1 L_nostamp{idx}")
            stamp(a, o, idx)
            a("  s_waitcnt lgkmcnt(0)")
            a(f"L_nostamp{idx}:")
    if "c" in o.x:
        a("  s_branch L_skipc")
    kreads = [f"  ds_read_b128 {vr(VK + (t * 4 + s) * 4, 4)}, v{VKA + s} offset:{KOFF + 4096 * t}" for t in range(4) for s in range(4)]
    vreads = [v_read(kb, j, t) for kb in range(2) for j in range(8) for t in range(2)]
    lds = LdsTracker(a)
    for r in kreads[:12]:
        lds.issue(r)
    pend = kreads[12:] + vreads
    for t in range(4):
        lds.need(4 * (t + 1))
        for s in range(4):
            a(qk_mfma(t, s))
            for _ in range(1 if t == 0 else 2):
                if pend:
                    lds.issue(pend.pop(0))
    valu = [f"  v_max3_f32 v{mx}, v{VS}, v{VS + 1}, v{VS + 2}"]
    for r in range(3, 15, 2):
        valu.append(f"  v_max3_f32 v{mx}, v{mx}, v{VS + r}, v{VS + r + 1}")
    valu.append(f"  v_max_f32 v{mx}, v{mx}, v{VS + 15}")
    valu += xlane_ops("v_max_f32", mx, t0, t1)
    valu += [
        f"  v_mul_f32 v{mx}, s{S_C}, v{mx}",
        f"  v_max_f32 v{mx}, v{mx}, v{VM}",
        f"  v_sub_f32 v{al}, v{VM}, v{mx}",
        f"  v_exp_f32 v{al}, v{al}",
        f"  v_mov_b32 v{VM}, v{mx}",
    ]
    for r in range(16):
        valu.append(f"  v_fma_f32 v{VS + r}, v{VS + r}, s{S_C}, -v{VM}")
    for r in range(16):
        valu.append(f"  v_exp_f32 v{VS + r}, v{VS + r}")
    k = 0
    for n in range(16):
        if n % 2 == 0:
            lds.need(16 + 2 * (n + 2))
        a(pv_mfma(n // 8, n % 8))
        for _ in range(2):
            if pend:
                lds.issue(pend.pop(0))
        if n >= 4:
            for _ in range(3):
                a(valu[k]); k += 1
    assert not pend
    for x in valu[k:]:
        a(x)
    a(f"  v_mul_f32 v{VL}, v{VL}, v{al}")
    for r in range(8):
        a(f"  v_cvt_pk_bf16_f32 v{VP + r}, v{VS + 2 * r}, v{VS + 2 * r + 1}")
    for r in range(32):
        a(f"  v_mul_f32 v{VO + r}, v{VO + r}, v{al}")
    for r in range(0, 16, 2):
        a(f"  v_add_f32 v{VS + r}, v{VS + r}, v{VS + r + 1}")
    for r in range(0, 16, 4):
        a(f"  v_add_f32 v{VS + r}, v{VS + r}, v{VS + r + 2}")
    a(f"""
  v_add_f32 v{VS}, v{VS}, v{VS + 4}
  v_add_f32 v{VS + 8}, v{VS + 8}, v{VS + 12}
  v_add_f32 v{VS}, v{VS}, v{VS + 8}
  v_add_f32 v{VL}, v{VL}, v{VS}
""")
    a(f"""
L_skipc:
  s_cmp_eq_u32 s{S_I}, s{S_HOOK}
  s_cbranch_scc1 L_hook
L_hook_ret:
  s_add_u32 s{S_I}, s{S_I}, 1
  s_cmp_lt_u32 s{S_I}, 32
  s_cbranch_scc1 L_loop
""")


def epilogue(a, o):
    t0, t1 = VT, VT + 1
    vml, vout = VT + 10, VT + 11
    m2, l2, mm, tmp = VT, VT + 1, VT + 2, VT + 4
    for x in xlane_ops("v_add_f32", VL, t0, t1):
        a(x)
    a(f"""
  v_mov_b32 v{VT + 2}, {LDS_MODE}
  ds_read_b32 v{VHS}, v{VT + 2}
  v_and_b32 v{vml}, 15, v{VLANE}
  v_lshlrev_b32 v{vout}, 8, v{vml}
  v_lshlrev_b32 v{vml}, 3, v{vml}
  s_lshl_b32 s{S_T}, s{S_HALF}, 7
  s_add_u32 s{S_T + 1}, s{S_BLK}, s{S_T}
  s_xor_b32 s{S_T + 2}, s{S_T + 1}, 128
  buffer_store_dwordx2 {vr(VM, 2)}, v{vml}, {sr(SW, 4)}, s{S_T + 1} offen
  v_bfe_u32 v{VT + 3}, v{VLANE}, 4, 1
  v_lshl_add_u32 v{vout}, v{VT + 3}, 5, v{vout}
  v_lshrrev_b32 v{VT + 3}, 5, v{VLANE}
  v_lshl_add_u32 v{vout}, v{VT + 3}, 4, v{vout}
""")
    for j in range(8):
        a(f"  v_add_u32 v{VVA + j}, s{S_RD}, v{VVB + j}")
    a(f"""
  s_lshl_b32 s{S_T + 3}, s{S_HALF}, 2
  s_add_u32 s{S_T + 3}, s{S_T + 3}, s{S_BLK}
  s_xor_b32 s{S_T + 4}, s{S_T + 3}, 4
  s_cmp_eq_u32 s{S_HALF}, 0
  s_cbranch_scc1 L_noswap
  v_swap_b32 v{VFL}, v{VFL + 1}
L_noswap:
  v_add_u32 v{VFL}, 1, v{VFL}
  s_mov_b32 s{S_I}, {SPIN}
  s_waitcnt lgkmcnt(0)
  v_readfirstlane_b32 s{S_MODE}, v{VHS}
  s_cmp_lg_u32 s{S_MODE}, 0
  s_barrier
""")
    stamp(a, o, 1)
    if o.stamp:
        a("  s_waitcnt lgkmcnt(0)")
    order = [(kb, j) for jh in range(2) for kb in range(2) for j in range(4 * jh, 4 * jh + 4)]
    vreads = [v_read(kb, j, t) for kb, j in order for t in range(2)]
    lds = LdsTracker(a)
    for r in vreads[:14]:
        lds.issue(r)
    a("  s_cbranch_scc1 L_generic")
    pend = vreads[14:]
    for n, (kb, j) in enumerate(order):
        lds.need(2 * (n + 1))
        a(pv_mfma(kb, j))
        for _ in range(2):
            if pend:
                lds.issue(pend.pop(0))
        if n in (8, 10):
            m = (n - 8) // 2
            for r in range(4):
                a(f"  v_cvt_pk_bf16_f32 v{VS + 4 * m + r}, v{VO + 8 * m + 2 * r}, v{VO + 8 * m + 2 * r + 1}")
            a(f"  buffer_store_dwordx4 {vr(VS + 4 * m, 4)}, v{VBOX}, {sr(SQ, 4)}, s{S_SEND} offen offset:{64 * m}")
    if o.estamp == 1:
        stamp(a, o, 3)
    a("  s_waitcnt vmcnt(0)")
    if o.estamp:
        stamp(a, o, 4 if o.estamp == 1 else 3)
    a(f"""
  buffer_store_dword v{VFL}, v{VZ}, {sr(SW, 4)}, s{S_T + 3} offen offset:256
L_poll:
  buffer_load_dword v{VT}, v{VZ}, {sr(SW, 4)}, s{S_T + 4} offen offset:256 sc1
  s_sub_u32 s{S_I}, s{S_I}, 1
  s_and_b32 s{S_T}, s{S_I}, 63
  s_cbranch_scc0 L_poll_slow
L_poll_ret:
  s_waitcnt vmcnt(0)
  v_cmp_ne_u32 vcc, v{VFL + 1}, v{VT}
  s_cbranch_vccz L_poll
""")
    if o.estamp:
        stamp(a, o, 5 if o.estamp == 1 else 4)
    a(f"""
  buffer_load_dwordx2 {vr(m2, 2)}, v{vml}, {sr(SW, 4)}, s{S_T + 2} offen sc1
  buffer_load_dwordx4 {vr(VK, 4)}, v{VBOX}, {sr(SQ, 4)}, s{S_KEEP} offen sc1
  buffer_load_dwordx4 {vr(VK + 4, 4)}, v{VBOX}, {sr(SQ, 4)}, s{S_KEEP} offen offset:64 sc1
  s_waitcnt vmcnt(2)
""")
    weights(a, m2, l2, mm)
    a("  s_waitcnt vmcnt(0)")
    if o.estamp == 2:
        stamp(a, o, 5)
    merge_half(a, o, VO + 16, VK, VM, m2, tmp, VS + 8, vout, S_KEEP)
    a("L_done:")
    if o.stamp:
        a("  s_waitcnt vmcnt(0)")
        stamp(a, o, 2)
        a(f"""
  s_waitcnt lgkmcnt(0)
  s_lshl_b32 s{S_T}, s2, 2
  s_add_u32 s{S_T}, s{S_T}, s{S_WAVE}
  s_lshl_b32 s{S_T}, s{S_T}, 5
  s_add_u32 s{S_T}, s{S_T}, {WS_STAMP}
  v_mov_b32 v4, s{S_TS}
  v_mov_b32 v5, s{S_TS + 2}
  v_mov_b32 v6, s{S_TS + 4}
  s_getreg_b32 s{S_T + 1}, hwreg(HW_REG_XCC_ID)
  s_and_b32 s{S_T + 1}, s{S_T + 1}, 15
  s_lshl_b32 s{S_T + 2}, s{S_MODE}, 4
  s_or_b32 s{S_T + 1}, s{S_T + 1}, s{S_T + 2}
  s_getreg_b32 s{S_T + 2}, hwreg(HW_REG_HW_ID)
  s_lshl_b32 s{S_T + 2}, s{S_T + 2}, 8
  s_or_b32 s{S_T + 1}, s{S_T + 1}, s{S_T + 2}
  v_mov_b32 v7, s{S_T + 1}
  buffer_store_dwordx4 v[4:7], v{VZ}, {sr(SW, 4)}, s{S_T} offen
  v_mov_b32 v12, s{S_TS + 6}
  v_mov_b32 v13, s{S_TS + 8}
  v_mov_b32 v14, s{S_TS + 10}
  v_mov_b32 v15, s{S_WSUM}
  buffer_store_dwordx4 v[12:15], v{VZ}, {sr(SW, 4)}, s{S_T} offen offset:16
""")
    if o.diag:
        diag(a, o)
    a("""
L_end:
  s_endpgm
""")
    a("L_generic:")
    for r in vreads[14:]:
        a("  s_waitcnt lgkmcnt(8)")
        a(r)
    a("  s_waitcnt lgkmcnt(0)")
    for kb, j in order:
        a(pv_mfma(kb, j))
    a(f"""
L_generic2:
  s_lshl_b32 s{S_T}, s{S_PAIR}, 2
  s_add_u32 s{S_T}, s{S_T}, s{S_WAVE}
  s_lshl_b32 s{S_T + 1}, s{S_T}, 13
  s_add_u32 s{S_T + 3}, s{S_T + 1}, 4096
  s_lshl_b32 s{S_T + 2}, s{S_T}, 9
  s_add_u32 s{S_T + 2}, s{S_T + 2}, {WS_DML}
  s_lshl_b32 s{S_T + 4}, 2, s{S_SH}
  v_lshlrev_b32 v{VT + 8}, 4, v{VLANE}
  v_lshlrev_b32 v{VT + 9}, 3, v{VLANE}
  s_cmp_eq_u32 s{S_MODE}, 1
  s_cbranch_scc0 L_second
  buffer_store_dwordx2 {vr(VM, 2)}, v{VT + 9}, {sr(SW, 4)}, s{S_T + 2} offen sc1
""")
    for j in range(8):
        so = S_T + 1 if j < 4 else S_T + 3
        a(f"  buffer_store_dwordx4 {vr(VO + 4 * j, 4)}, v{VT + 8}, {sr(SW, 4)}, s{so} offen offset:{1024 * (j & 3)} sc1")
    a(f"""
  s_waitcnt vmcnt(0)
  s_barrier
  s_cmp_eq_u32 s{S_WAVE}, 0
  s_cbranch_scc0 L_done
  v_mov_b32 v{VT}, s{S_T + 4}
  s_mov_b64 exec, 1
  buffer_atomic_or v{VT}, v{VZ}, {sr(SD, 4)}, s{S_DW} offen sc1
  s_mov_b64 exec, -1
  s_branch L_done
L_second:
  buffer_load_dword v{VT}, v{VZ}, {sr(SD, 4)}, s{S_DW} offen sc1
  s_sub_u32 s{S_I}, s{S_I}, 1
  s_cbranch_scc1 L_end
  s_waitcnt vmcnt(0)
  v_and_b32 v{VT}, s{S_T + 4}, v{VT}
  v_cmp_ne_u32 vcc, 0, v{VT}
  s_cbranch_vccz L_second
  buffer_load_dwordx2 {vr(m2, 2)}, v{VT + 9}, {sr(SW, 4)}, s{S_T + 2} offen sc1
""")
    for j in range(8):
        so = S_T + 1 if j < 4 else S_T + 3
        a(f"  buffer_load_dwordx4 {vr(VK + 4 * j, 4)}, v{VT + 8}, {sr(SW, 4)}, s{so} offen offset:{1024 * (j & 3)} sc1")
    a("  s_waitcnt vmcnt(0)")
    weights(a, m2, l2, mm)
    for r in range(8):
        a(f"  v_cvt_pk_bf16_f32 v{VK + 32 + r}, v{VK + 2 * r}, v{VK + 2 * r + 1}")
        a(f"  v_cvt_pk_bf16_f32 v{VK + 40 + r}, v{VO + 2 * r}, v{VO + 2 * r + 1}")
    merge_half(a, o, VO + 16, VK + 32, VM, m2, tmp, VS + 8, vout, S_KEEP)
    merge_half(a, o, VK + 16, VK + 40, m2, VM, tmp, VS, vout, S_SEND)
    a(f"""
  s_branch L_done
L_poll_slow:
  s_cmp_eq_u32 s{S_I}, 0
  s_cbranch_scc1 L_end
  buffer_load_dword v{VT + 1}, v{VZ}, {sr(SD, 4)}, s{S_DW} offen sc1
  s_lshl_b32 s{S_T}, 1, s{S_SH}
  s_waitcnt vmcnt(0)
  v_and_b32 v{VT + 1}, s{S_T}, v{VT + 1}
  v_cmp_ne_u32 vcc, 0, v{VT + 1}
  s_cbranch_vccz L_poll_ret
  s_mov_b32 s{S_MODE}, 2
  s_branch L_generic2
""")


def hooks(a, o):
    b = S_T
    a(f"""
L_hook:
  s_mov_b64 exec, 1
  s_lshl_b32 s{b}, s{S_HALF}, 2
  s_add_u32 s{b}, s{b}, s{S_BLK}
  s_cmp_eq_u32 s{S_I}, {o.hello}
  s_cbranch_scc0 L_hook2
""")
    if o.force == "late":
        a(f"""
  s_cmp_eq_u32 s{S_HALF}, 0
  s_cbranch_scc1 L_nodelay
  s_lshl_b32 s{b + 1}, 1, s{S_SH}
  s_mov_b32 s{b + 2}, {SPIN}
L_delay:
  buffer_load_dword v{VT}, v{VZ}, {sr(SD, 4)}, s{S_DW} offen sc1
  s_sub_u32 s{b + 2}, s{b + 2}, 1
  s_cbranch_scc1 L_nodelay
  s_waitcnt vmcnt(0)
  v_and_b32 v{VT}, s{b + 1}, v{VT}
  v_cmp_ne_u32 vcc, 0, v{VT}
  s_cbranch_vccz L_delay
L_nodelay:
""")
    a(f"""
  s_cmp_eq_u32 s{S_HALF}, 0
  s_cbranch_scc1 L_hook_noswap
  v_swap_b32 v{VFL + 2}, v{VFL + 3}
L_hook_noswap:
  v_add_u32 v{VFL + 2}, s{S_ID}, v{VFL + 2}
  buffer_store_dword v{VFL + 2}, v{VZ}, {sr(SW, 4)}, s{b} offen offset:264
  s_mov_b32 s{S_HOOK}, {o.check}
  s_branch L_hook_out
L_hook2:
  s_cmp_eq_u32 s{S_I}, {o.check}
  s_cbranch_scc0 L_hook3
  s_xor_b32 s{b}, s{b}, 4
  buffer_load_dword v{VHS}, v{VZ}, {sr(SW, 4)}, s{b} offen offset:264 sc1
  s_mov_b32 s{S_HOOK}, {o.check + 1}
  s_branch L_hook_out
L_hook3:
  v_sub_u32 v{VHS}, v{VHS}, v{VFL + 3}
  v_cmp_eq_u32 vcc, s{S_ID}, v{VHS}
  v_mov_b32 v{VHS}, 0
  s_cbranch_vccnz L_hook_mode
  s_lshl_b32 s{b}, 1, s{S_SH}
  v_mov_b32 v{VHS}, s{b}
  buffer_atomic_or v{VHS}, v{VZ}, {sr(SD, 4)}, s{S_DW} offen sc0 sc1
  s_waitcnt vmcnt(0)
  v_bfe_u32 v{VHS}, v{VHS}, s{S_SH}, 1
  v_add_u32 v{VHS}, 1, v{VHS}
L_hook_mode:
  v_mov_b32 v{VT}, {LDS_MODE}
  ds_write_b32 v{VT}, v{VHS}
  s_waitcnt lgkmcnt(0)
L_hook_out:
  s_mov_b64 exec, -1
  s_branch L_hook_ret
""")


def controller(a, o):
    nw = len(o.wins)
    x, e, g = S_T, S_T + 1, S_T + 2
    t = VT
    a(f"""
L_ctl:
  v_sub_u32 v{t}, v{VCT}, v{VCB}
  s_add_u32 s{x}, s{S_I}, 1
  v_add_u32 v{t + 1}, s{x}, v{VCB}
  s_cmp_lt_u32 s{S_I}, {o.lfirst}
  s_cbranch_scc1 L_ctl_nopub
  s_lshl_b64 exec, 1, s{S_SLOT}
  buffer_store_dword v{t + 1}, v{VCA}, {sr(SW, 4)}, s{S_LOC} offen
L_ctl_nopub:
  s_sub_u32 s{x}, s{S_I}, s{S_REP}
  s_cmp_gt_u32 s{x}, 1
  s_cbranch_scc1 L_ctl_nolead
  s_lshl_b64 exec, 1, 32
  s_cmp_eq_u32 s{x}, 0
  s_cbranch_scc0 L_ctl_rank
  v_mov_b32 v{VAT}, 1
  buffer_atomic_add v{VAT}, v{VZ}, {sr(SW, 4)}, s{S_REPV} offen sc0 sc1
  s_branch L_ctl_nolead
L_ctl_rank:
  v_sub_u32 v{VAT}, v{VAT}, v{VG0}
  v_lshl_add_u32 v{VAT}, v{VAT}, 1, v{VCB}
  v_subrev_u32 v{VAT}, 7, v{VAT}
  buffer_store_dword v{VAT}, v{VCA}, {sr(SW, 4)}, s{S_LOC} offen
L_ctl_nolead:
  s_mov_b64 exec, -1
  buffer_load_dword v{VCT}, v{VCA}, {sr(SW, 4)}, s{S_LOC} offen sc1
  s_cmp_lt_u32 s{S_I}, {o.cstart}
  s_cbranch_scc1 L_ctl_ret
  v_cmp_ne_u32 vcc, 0, v{t}
  v_readlane_b32 s{g}, v{t}, 32
  v_add_u32_dpp v{t}, v{t}, v{t} row_shr:1 row_mask:0xf bank_mask:0xf bound_ctrl:1
  s_nop 1
  v_add_u32_dpp v{t}, v{t}, v{t} row_shr:2 row_mask:0xf bank_mask:0xf bound_ctrl:1
  s_nop 1
  v_add_u32_dpp v{t}, v{t}, v{t} row_shr:4 row_mask:0xf bank_mask:0xf bound_ctrl:1
  s_nop 1
  v_add_u32_dpp v{t}, v{t}, v{t} row_shr:8 row_mask:0xf bank_mask:0xf bound_ctrl:1
  s_cmp_eq_u32 vcc_lo, -1
  s_cbranch_scc0 L_ctl_end
  v_readlane_b32 s{x}, v{t}, 15
  v_readlane_b32 s{e}, v{t}, 31
  s_max_i32 s{g}, s{g}, -7
  s_min_i32 s{g}, s{g}, 7
  s_add_u32 s{x}, s{x}, s{e}
  s_lshl_b32 s{e}, s{S_I}, 5
  s_sub_i32 s{e}, s{x}, s{e}
  s_add_i32 s{e}, s{e}, {32 - o.bias}
  s_max_i32 s{e}, s{e}, -128
  s_min_i32 s{e}, s{e}, 128
""")
    if o.logerr:
        a(f"  s_add_i32 s{S_WSUM}, s{S_WSUM}, s{e if o.logerr == 1 else g}")
    if o.ki or o.kig:
        a(f"""
  s_mul_i32 s{x}, s{e}, {o.ki}
  s_add_i32 s{S_INT}, s{S_INT}, s{x}
  s_mul_i32 s{x}, s{g}, {o.kig}
  s_add_i32 s{S_INT}, s{S_INT}, s{x}
  s_max_i32 s{S_INT}, s{S_INT}, {-o.imax * 512}
  s_min_i32 s{S_INT}, s{S_INT}, {o.imax * 512}
""")
    a(f"""
  s_mul_i32 s{e}, s{e}, {o.kp}
  s_mul_i32 s{g}, s{g}, {o.kpg}
  s_add_i32 s{e}, s{e}, s{g}
  s_add_i32 s{e}, s{e}, s{S_INT}
  s_add_i32 s{e}, s{e}, {int(o.w0 * 512 + 256)}
  s_ashr_i32 s{e}, s{e}, 9
  s_max_i32 s{e}, s{e}, 0
  s_min_i32 s{e}, s{e}, {nw - 1}
""")
    if o.stamp and not o.logerr:
        a(f"  s_add_u32 s{S_WSUM}, s{S_WSUM}, s{e}")
    a(f"""
  v_mov_b32 v{t}, s{e}
  v_mov_b32 v{t + 2}, {LDS_WIN}
  ds_write_b32 v{t + 2}, v{t}
  s_waitcnt lgkmcnt(0)
L_ctl_end:
  s_cmp_lt_u32 s{S_I}, {o.cend}
  s_cselect_b32 s{S_CTL}, s{S_CTL}, 0
  s_branch L_ctl_ret
""")


def diag(a, o):
    ts = lambda i: S_TS + 2 * i
    kind, idx = o.diag.split(":")
    idx = int(idx)
    a(f"""
  s_add_u32 s{S_T + 1}, s{ts(0)}, 8000
L_dg0:
  s_sleep 8
  s_memrealtime s[{S_T + 3}:{S_T + 4}]
  s_waitcnt lgkmcnt(0)
  s_sub_u32 s{S_T + 3}, s{S_T + 3}, s{S_T + 1}
  s_cmp_lt_i32 s{S_T + 3}, 0
  s_cbranch_scc1 L_dg0
  s_mov_b64 exec, 1
  s_not_b32 s{S_T}, s{ts(0)}
  v_mov_b32 v4, s{S_T}
  buffer_atomic_umax v4, v{VZ}, {sr(SD, 4)}, 0 offen offset:244 sc1
  v_mov_b32 v5, s{ts(idx)}
""")
    if o.diagx >= 0:
        a(f"""
  s_and_b32 s{S_T}, s2, 7
  s_cmp_eq_u32 s{S_T}, {o.diagx}
  s_cbranch_scc0 L_dgskip
""")
    a(f"""
  buffer_atomic_umax v5, v{VZ}, {sr(SD, 4)}, 0 offen offset:248 sc1
  buffer_atomic_add v5, v{VZ}, {sr(SD, 4)}, 0 offen offset:252 sc1
L_dgskip:
  s_or_b32 s{S_T}, s2, s{S_WAVE}
  s_cmp_lg_u32 s{S_T}, 0
  s_cbranch_scc1 L_end
  s_add_u32 s{S_T + 1}, s{ts(0)}, 19000
L_dg1:
  s_memrealtime s[{S_T + 3}:{S_T + 4}]
  s_waitcnt lgkmcnt(0)
  s_sub_u32 s{S_T + 3}, s{S_T + 3}, s{S_T + 1}
  s_cmp_lt_i32 s{S_T + 3}, 0
  s_cbranch_scc1 L_dg1
  buffer_load_dword v4, v{VZ}, {sr(SD, 4)}, 0 offen offset:244 sc1
  buffer_load_dword v5, v{VZ}, {sr(SD, 4)}, 0 offen offset:{248 if kind != "mean" else 252} sc1
  s_waitcnt vmcnt(0)
  v_readfirstlane_b32 s{S_T}, v4
  v_readfirstlane_b32 s{S_T + 1}, v5
  s_not_b32 s{S_T}, s{S_T}
""")
    sh = 10 if o.diagx < 0 else 7
    if kind == "zero":
        a(f"  s_mov_b32 s{S_T + 1}, 0")
    elif kind == "max":
        a(f"  s_sub_u32 s{S_T + 1}, s{S_T + 1}, s{S_T}")
    else:
        a(f"  s_lshl_b32 s{S_T + 2}, s{S_T}, {sh}")
        a(f"  s_sub_u32 s{S_T + 1}, s{S_T + 1}, s{S_T + 2}")
        a(f"  s_lshr_b32 s{S_T + 1}, s{S_T + 1}, {sh}")
    a(f"""
  s_min_u32 s{S_T + 1}, s{S_T + 1}, 10000
  s_add_u32 s{S_T + 1}, s{S_T + 1}, 20000
  s_sub_u32 s{S_T + 2}, s{ts(0)}, s{S_T}
  s_min_u32 s{S_T + 2}, s{S_T + 2}, 1000
  s_sub_u32 s{S_T}, s{ts(0)}, s{S_T + 2}
  s_add_u32 s{S_T + 1}, s{S_T + 1}, s{S_T}
L_dg2:
  s_memrealtime s[{S_T + 3}:{S_T + 4}]
  s_waitcnt lgkmcnt(0)
  s_sub_u32 s{S_T + 3}, s{S_T + 3}, s{S_T + 1}
  s_cmp_lt_i32 s{S_T + 3}, 0
  s_cbranch_scc1 L_dg2
""")


def build(o):
    a = Asm()
    a(HEADER)
    label = f"{NAME}_kernel"
    a(f"; @launch grid=(256,1,1) block=(320,1,1) lds={LDS_BYTES}")
    a('.amdgcn_target "amdgcn-amd-amdhsa--gfx950"')
    a(f"""
.text
.globl {label}
.p2align 8
.type {label},@function
{label}:
  s_cmp_ge_u32 s2, 256
  s_cbranch_scc1 L_end
  s_load_dwordx8 s[{S_ARG}:{S_ARG + 7}], s[0:1], 0
  s_load_dwordx4 s[{S_ARG + 8}:{S_ARG + 11}], s[0:1], 32
""")
    stamp(a, o, 0)
    a(f"  v_readfirstlane_b32 s{S_WAVE}, v0")
    if o.map == 0:
        a(f"""
  s_and_b32 s{S_T}, s2, 7
  s_lshr_b32 s{S_T + 1}, s2, 4
  s_lshl_b32 s{S_T + 1}, s{S_T + 1}, 3
  s_or_b32 s{S_PAIR}, s{S_T}, s{S_T + 1}
  s_bfe_u32 s{S_HALF}, s2, 0x10003
""")
    elif o.map == 1:
        a(f"""
  s_lshr_b32 s{S_PAIR}, s2, 1
  s_and_b32 s{S_HALF}, s2, 1
""")
    a(f"""
  s_lshr_b32 s{S_WAVE}, s{S_WAVE}, 6
  s_cmp_eq_u32 s{S_WAVE}, 0
""")
    if o.cpf:
        a(f"""
  s_cbranch_scc1 L_loader
  s_getpc_b64 s[{S_T + 3}:{S_T + 4}]
L_pc:
  v_subrev_u32 v1, 64, v0
  v_lshlrev_b32 v1, {o.cpf}, v1
  v_min_u32 v1, L_code_end-L_pc-4, v1
  v_mov_b32 v3, s{S_T + 4}
  v_add_co_u32 v2, vcc, s{S_T + 3}, v1
  s_nop 1
  v_addc_co_u32 v3, vcc, 0, v3, vcc
  global_load_dword v{VDUM}, v[2:3], off
  s_branch L_compute
L_loader:
""")
    else:
        a("  s_cbranch_scc0 L_compute")
    loader(a, o)
    prologue(a, o)
    mainloop(a, o)
    epilogue(a, o)
    hooks(a, o)
    controller(a, o)
    a("L_code_end:")
    a(f"""
.section .rodata,"a"
.p2align 6
.amdhsa_kernel {label}
  .amdhsa_next_free_vgpr {NVGPR}
  .amdhsa_next_free_sgpr {NSGPR}
  .amdhsa_accum_offset {NVGPR}
  .amdhsa_group_segment_fixed_size 0
  .amdhsa_kernarg_size 48
  .amdhsa_user_sgpr_count 2
  .amdhsa_user_sgpr_kernarg_segment_ptr 1
  .amdhsa_system_sgpr_workgroup_id_x 1
.end_amdhsa_kernel
""")
    return a.text()


if __name__ == "__main__":
    ap = argparse.ArgumentParser()
    ap.add_argument("-o", default="cdna_kernels/" + NAME + ".s")
    ap.add_argument("--wins", default="14,16,18,20,22,24,26,28,30,32")
    ap.add_argument("--winit", type=int, default=24)
    ap.add_argument("--w0", type=float, default=4.0)
    ap.add_argument("--kp", type=int, default=32)
    ap.add_argument("--ki", type=int, default=0)
    ap.add_argument("--kpg", type=int, default=128)
    ap.add_argument("--kig", type=int, default=0)
    ap.add_argument("--imax", type=int, default=4)
    ap.add_argument("--bias", type=int, default=16)
    ap.add_argument("--lfirst", type=int, default=1)
    ap.add_argument("--gfirst", type=int, default=2)
    ap.add_argument("--gstep", type=int, default=2)
    ap.add_argument("--glast", type=int, default=26)
    ap.add_argument("--cstart", type=int, default=3)
    ap.add_argument("--cend", type=int, default=30)
    ap.add_argument("--noctl", action="store_true")
    ap.add_argument("--logerr", type=int, default=0)
    ap.add_argument("--hello", type=int, default=2)
    ap.add_argument("--check", type=int, default=20)
    ap.add_argument("--pstride", type=int, default=64)
    ap.add_argument("--cpf", type=int, default=6)
    ap.add_argument("--aux", default="nt")
    ap.add_argument("--qaux", default="nt")
    ap.add_argument("--oaux", default="")
    ap.add_argument("--paux", default="sc1")
    ap.add_argument("--stamp", action="store_true")
    ap.add_argument("--st", default="0,8,16")
    ap.add_argument("--estamp", type=int, default=0)
    ap.add_argument("--gaux", default="sc1")
    ap.add_argument("--baux", default="nt")
    ap.add_argument("--path", default="s")
    ap.add_argument("--nl", type=int, default=3)
    ap.add_argument("--map", type=int, default=0)
    ap.add_argument("--rot", type=int, default=0)
    ap.add_argument("--x", default="")
    ap.add_argument("--faux", default="sc1")
    ap.add_argument("--bits", default="8,9,12,13,14,10")
    ap.add_argument("--split", type=int, default=11)
    ap.add_argument("--force", default="")
    ap.add_argument("--diag", default="")
    ap.add_argument("--diagx", type=int, default=-1)
    o = ap.parse_args()
    o.wins = [int(x) for x in o.wins.split(",")]
    o.st = [int(x) for x in o.st.split(",")]
    o.bits = [int(x) for x in o.bits.split(",")]
    rest = [b for b in range(8, 20) if b not in o.bits and b != o.split]
    assert rest == list(range(rest[0], rest[0] + 5))
    o.tstride, o.wrapbit = 1 << rest[0], rest[0] + 5
    o.stamp = o.stamp or bool(o.diag)
    fx = lambda s: (" " + s.replace(",", " ")) if s else ""
    o.aux, o.qaux, o.oaux, o.paux, o.gaux = fx(o.aux), fx(o.qaux), fx(o.oaux), fx(o.paux), fx(o.gaux)
    o.baux, o.faux = fx(o.baux), fx(o.faux)
    open(o.o, "w").write(build(o))
```

```python
import argparse
import math
import struct

NAME = "standalone__gqa_softmax__sampling"

HEADER = """; Kernarg layout for this problem (48 bytes, ptrs only, base s[0:1]):
"""


class Asm:
    def __init__(self):
        self.lines = []

    def __call__(self, s):
        for ln in s.strip("\n").split("\n"):
            self.lines.append(ln)

    def text(self):
        return "\n".join(self.lines) + "\n"


class LdsTracker:
    def __init__(self, a):
        self.a, self.issued, self.done = a, 0, 0

    def need(self, n):
        assert n <= self.issued
        if n > self.done:
            self.a(f"  s_waitcnt lgkmcnt({self.issued - n})")
            self.done = n

    def issue(self, line):
        if self.issued - self.done >= 15:
            self.need(self.issued - 11)
        self.a(line)
        self.issued += 1


def vr(a, n=1):
    return f"v{a}" if n == 1 else f"v[{a}:{a + n - 1}]"


def sr(a, n):
    return f"s[{a}:{a + n - 1}]"


def f32hex(x):
    return "0x%08x" % struct.unpack("<I", struct.pack("<f", x))[0]


VQ = 4
VO = 20
VS = 52
VPA = 68
VK = 76
VV = 140
VPB = 204
VALA = 212
VALB = 214
VKA = 216
VVA = 220
VM = 228
VL = 229
VT = 230
VLANE = 242
VHS = 243
VZ = 244
VCT = 245
VCB = 246
VCA = 247
VFL = 248
VBOX = 252
VG0 = 253
VAT = 254
VDUM = 255
VPC = 220
VALC = 240
VML = 213
VRDY = 215
NVGPR = 256
VDK = 4
VDV = 8
VDT = 24

SK = 4
SV = 8
SQ = 12
SW = 16
S_WAVE = 20
S_I = 21
S_OFFK = 22
S_OFFV = 23
S_RD = 25
S_DL = 24
S_C = 26
S_PAIR = 27
S_ARG = 28
S_HALF = 40
S_T = 41
S_TS = 48
SD = 60
S_HOOK = 64
S_BLK = 65
S_KEEP = 66
S_SEND = 67
S_MODE = 68
S_OUT = 69
S_SH = 70
S_CTL = 71
S_REP = 72
S_REPV = 73
S_INT = 74
S_WSUM = 75
S_DW = 76
S_ID = 77
S_LOC = 78
S_SLOT = 79
S_MLO = 84
S_MLP = 85
S_FLO = 86
S_FLP = 87
NSGPR = 102

TILE = 16384
UNIT = 32768
NS = 3
LDS_MODE = UNIT * NS
LDS_WIN = UNIT * NS + 4
LDS_BYTES = UNIT * NS + 64
KOFF = TILE
VOFF = 0

WS_DUMP = 0x0
WS_DML = 0x400000
WS_BLK = 0x500000
WS_REP = 0x600000
WS_LOC = 0x700000
REP_STRIDE = 4352
WS_STAMP = 0xC00000
WS_SIZE = 0x1000000
SPIN = 0x40000


def stamp(a, o, idx):
    if o.stamp:
        a(f"  s_memrealtime s[{S_TS + 2 * idx}:{S_TS + 2 * idx + 1}]")


def xlane_ops(op, reg, t0, t1):
    return [
        f"  v_mov_b32 v{t0}, v{reg}",
        f"  v_mov_b32 v{t1}, v{reg}",
        "  s_nop 1",
        f"  v_permlane32_swap_b32 v{t0}, v{t1}",
        f"  {op} v{t0}, v{t0}, v{t1}",
        f"  v_mov_b32 v{t1}, v{t0}",
        "  s_nop 1",
        f"  v_permlane16_swap_b32 v{t0}, v{t1}",
        f"  {op} v{reg}, v{t0}, v{t1}",
    ]


def lbarrier(a, o, slot=None):
    if not o.lstamp:
        a("  s_barrier")
        return
    a(f"""
  s_memtime s[80:81]
  s_barrier
  s_memtime s[82:83]
  s_waitcnt lgkmcnt(0)
  s_sub_u32 s80, s82, s80
""")
    if slot is not None:
        a(f"  s_mov_b32 s{S_TS + 2 + slot}, s80")
    else:
        for k in range(3):
            a(f"  s_cmp_eq_u32 s{S_I}, {k + 1}")
            a(f"  s_cmov_b32 s{S_TS + 2 + k}, s80")
        a(f"  s_cmp_gt_u32 s{S_I}, 3")
        a("  s_cselect_b32 s80, s80, 0")
        a(f"  s_add_u32 s{S_TS + 5}, s{S_TS + 5}, s80")


def gbase(o, g):
    return ((g & 1) << o.bits[4]) + ((g >> 1) << o.bits[5])


def group(a, o, isv, first_piece, w, barrier_at, waits=True, setup_at=None):
    srd, off = (SV, S_OFFV) if isv else (SK, S_OFFK)
    g = (first_piece // 4) & 3
    for p in range(4):
        if setup_at == first_piece + p:
            loader_late_setup(a, o)
        if waits:
            a(f"  s_waitcnt vmcnt({w - 1})")
        elif p == 0:
            a("  s_nop 0")
        vo = (VDV if isv else VDK) + p
        a(f"  buffer_load_dwordx4 v{vo}, {sr(srd, 4)}, s{off} offen offset:{1024 * p}{o.aux} lds")
        if barrier_at is not None and first_piece + p == barrier_at:
            lbarrier(a, o)
    inc = (gbase(o, g + 1) if g < 3 else o.tstride) - gbase(o, g)
    a(f"  s_addk_i32 s{off}, {inc}")
    a("  s_addk_i32 m0, 4096")
    if o.rot and g == 3:
        a(f"  s_bitset0_b32 s{off}, {o.wrapbit}")


def dispatch(a, lo, hi):
    if lo == hi:
        a(f"  s_branch L_ld_v{lo}")
        return
    mid = (lo + hi + 1) // 2
    a(f"  s_cmp_ge_u32 s{S_T}, {mid}")
    if mid == hi:
        a(f"  s_cbranch_scc1 L_ld_v{mid}")
        dispatch(a, lo, mid - 1)
        return
    a(f"  s_cbranch_scc1 L_dsp_{mid}_{hi}")
    dispatch(a, lo, mid - 1)
    a(f"L_dsp_{mid}_{hi}:")
    dispatch(a, mid, hi)


def loader(a, o):
    wins = o.wins
    multi = len(wins) > 1
    a(f"""
  s_setprio 3
  v_and_b32 v2, 15, v0
  v_lshrrev_b32 v3, 4, v0
  s_lshl_b32 s{S_T + 1}, s{S_HALF}, {o.split}
""")
    if o.bits[1] == o.bits[0] + 1:
        a(f"  v_lshl_add_u32 v1, v3, {o.bits[0]}, s{S_T + 1}")
    else:
        a(f"""
  v_and_b32 v1, 1, v3
  v_lshl_add_u32 v1, v1, {o.bits[0]}, s{S_T + 1}
  v_lshrrev_b32 v12, 5, v0
  v_lshl_add_u32 v1, v12, {o.bits[1]}, v1
""")
    a("  v_xor_b32 v12, v2, v3" if "s" not in o.x else "  v_mov_b32 v12, v2")
    pconst = [((p & 1) << o.bits[2]) + ((p >> 1) << o.bits[3]) - 1024 * p for p in range(4)]
    assert min(pconst) >= 0
    for p in range(4):
        a(f"  v_xor_b32 v13, {4 * p if 's' not in o.x else 0}, v12")
        a(f"  v_lshl_add_u32 v{VDK + p}, v13, 4, v1")
        if pconst[p]:
            a(f"  v_add_u32 v{VDK + p}, {pconst[p]}, v{VDK + p}")
    a(f"""
  s_mov_b32 s{SK + 2}, 0x100000
  s_mov_b32 s{SK + 3}, 0x20000
  s_lshr_b32 s{S_OFFK}, s2, 4
  s_mul_i32 s{S_OFFK}, s{S_OFFK}, {o.rot * o.tstride}
  s_movk_i32 m0, {KOFF}
  s_lshl_b32 s{S_T}, s{S_PAIR}, 20
  s_mov_b32 s{SV + 2}, 0x100000
  s_mov_b32 s{SV + 3}, 0x20000
  s_mov_b32 s{S_OFFV}, s{S_OFFK}
  v_lshlrev_b32 v12, 1, v3
  {"v_xor_b32 v12, v2, v12" if "s" not in o.x else "v_mov_b32 v12, v2"}
  v_lshl_add_u32 v{VDV}, v12, 4, v1
  v_xor_b32 v13, {8 if "s" not in o.x else 0}, v12
  v_lshl_add_u32 v{VDV + 1}, v13, 4, v1
  v_add_u32 v{VDV + 2}, {pconst[2]}, v{VDV}
  v_add_u32 v{VDV + 3}, {pconst[3]}, v{VDV + 1}
  v_add_u32 v{VDV + 1}, {pconst[1]}, v{VDV + 1}
  s_mov_b32 s{S_I}, 1
  {f"s_mov_b32 s{S_TS + 5}, 0" if o.lstamp else ""}
  v_mov_b32 v12, {LDS_WIN}
  s_waitcnt lgkmcnt(0)
  s_add_u32 s{SK}, s{S_ARG + 2}, s{S_T}
  s_addc_u32 s{SK + 1}, s{S_ARG + 3}, 0
  s_add_u32 s{SV}, s{S_ARG + 4}, s{S_T}
  s_addc_u32 s{SV + 1}, s{S_ARG + 5}, 0
""")
    assert min(wins) >= 17
    first = wins.index(o.winit)
    w = o.winit
    for g in range(8):
        group(a, o, False, 4 * g, w, None, waits=(4 * g + 3 >= w), setup_at=min(w, 31))
        if g == 3:
            a(f"  s_addk_i32 m0, {TILE}")
    for g in range(8):
        group(a, o, g < 4, 4 * g, w, w - 17 if g < 4 else o.bar1)
    a(f"""
  s_mov_b32 m0, 0
  s_mov_b32 s{S_I}, 3
""")
    order = [first] + [i for i in range(len(wins)) if i != first]
    for vi in order:
        w = wins[vi]
        a(f"L_ld_v{vi}:")
        early = w - 1 < 28
        for g in range(8):
            if multi and early and g == 7:
                a("  ds_read_b32 v13, v12")
            group(a, o, g < 4, 4 * g, w, w - 1)
        if multi and not early:
            a("  ds_read_b32 v13, v12")
        a(f"""
  s_cmp_ge_u32 m0, {UNIT * NS}
  s_cselect_b32 m0, 0, m0
  s_add_u32 s{S_I}, s{S_I}, 1
  s_cmp_eq_u32 s{S_I}, 31
  s_cbranch_scc1 L_ld_tail
""")
        if multi:
            a(f"""
  s_waitcnt lgkmcnt(0)
  v_readfirstlane_b32 s{S_T}, v13
  s_cmp_eq_u32 s{S_T}, {vi}
  s_cbranch_scc1 L_ld_v{vi}
  s_branch L_ld_dispatch
""")
        else:
            a(f"  s_branch L_ld_v{vi}")
    if multi:
        a("L_ld_dispatch:")
        dispatch(a, 0, len(wins) - 1)
    a("L_ld_tail:")
    tails = o.wtail
    if len(tails) > 1:
        a("  s_waitcnt lgkmcnt(0)")
        a(f"  v_readfirstlane_b32 s{S_T}, v13")
        for ti in range(len(tails) - 1, 0, -1):
            mid = (tails[ti - 1] + tails[ti] + 1) // 2
            thr = min(i for i, x in enumerate(wins + [99]) if x >= mid)
            a(f"  s_cmp_ge_u32 s{S_T}, {thr}")
            a(f"  s_cbranch_scc1 L_ld_t{ti}")
    npre = 0 if "p" in o.x else 2
    for ti, w in enumerate(tails):
        a(f"L_ld_t{ti}:")
        for g in range(4):
            group(a, o, False, 4 * g, w, None)
        a(f"""
  s_lshl_b32 s{S_T}, s{S_HALF}, 7
  s_add_u32 s{S_OFFK}, s{S_OFFV}, s{S_T}
  s_xor_b32 s{S_OFFV}, s{S_OFFK}, 128
""")
        for g in range(12):
            off = S_OFFV if g < 6 else S_OFFK
            for p in range(4):
                a(f"  s_waitcnt vmcnt({w - 1})")
                a(f"  buffer_load_dwordx4 v{VDT + p}, {sr(SV, 4)}, s{off} offen offset:{1024 * p}{o.aux} lds")
                if 16 + 4 * g + p == w - 1:
                    lbarrier(a, o, 0)
                if 4 * g + p == w - 1 + o.bara:
                    lbarrier(a, o, 1)
                if 4 * g + p == 16 + w - 1:
                    lbarrier(a, o, 2)
                if 4 * g + p == 24 + w - 1:
                    a("  s_barrier")
            if g % 6 != 5:
                inc = (1 << o.bits[5]) if g & 1 == 0 else o.tstride - (1 << o.bits[5])
                a(f"  s_addk_i32 s{off}, {inc}")
                if o.rot and g & 1:
                    a(f"  s_bitset0_b32 s{off}, {o.wrapbit}")
            a("  s_addk_i32 m0, 4096")
        if 24 + w - 1 > 47:
            a("  s_waitcnt vmcnt(24)")
            a("  s_barrier")
        if ti != len(tails) - 1:
            a("  s_branch L_ld_fin")
    a("L_ld_fin:")
    if npre:
        a(f"""
  buffer_load_dword v16, v14, {sr(SQ, 4)}, s{S_KEEP} offen{o.paux}
  buffer_load_dword v17, v15, {sr(SW, 4)}, s{S_BLK} offen{o.paux}
""")
    for left, slot in ((16, 3), (8, 4), (0, 5)):
        a(f"  s_waitcnt vmcnt({left + npre})")
        lbarrier(a, o, slot)
    if o.lstamp:
        a(f"  s_lshl_b32 s{S_T}, s2, 5")
        a(f"  s_add_u32 s{S_T}, s{S_T}, {WS_STAMP + 32768}")
        for k in range(8):
            a(f"  v_mov_b32 v{32 + k}, s{S_TS + k}")
        a("  v_mov_b32 v40, 0")
        a(f"  buffer_store_dwordx4 v[32:35], v40, {sr(SW, 4)}, s{S_T} offen")
        a(f"  buffer_store_dwordx4 v[36:39], v40, {sr(SW, 4)}, s{S_T} offen offset:16")
    a("  s_endpgm")


def loader_late_setup(a, o):
    b = o.bits
    a(f"""
  s_mov_b32 s{SQ}, s{S_ARG + 6}
  s_mov_b32 s{SQ + 1}, s{S_ARG + 7}
  s_mov_b32 s{SQ + 2}, 0x200000
  s_mov_b32 s{SQ + 3}, 0x20000
  s_lshl_b32 s{S_KEEP}, s{S_PAIR}, 14
  s_lshl_b32 s{S_T + 2}, s{S_HALF}, 7
  s_or_b32 s{S_KEEP}, s{S_KEEP}, s{S_T + 2}
  v_lshlrev_b32 v14, 8, v0
  s_mov_b32 s{SW}, s{S_ARG + 10}
  s_mov_b32 s{SW + 1}, s{S_ARG + 11}
  s_mov_b32 s{SW + 2}, {WS_SIZE}
  s_mov_b32 s{SW + 3}, 0x20000
  s_lshl_b32 s{S_BLK}, s{S_PAIR}, 11
  s_add_u32 s{S_BLK}, s{S_BLK}, {WS_BLK}
  v_lshlrev_b32 v15, 5, v0
  v_and_b32 v18, 7, v0
  v_lshlrev_b32 v19, 1, v3
  v_xor_b32 v18, v18, v19
  v_lshl_add_u32 v18, v18, 4, s{S_T + 1}
  v_bfe_u32 v19, v0, 3, 1
  v_lshl_add_u32 v18, v19, {b[0]}, v18
  v_bfe_u32 v19, v0, 4, 1
  v_lshl_add_u32 v18, v19, {b[1]}, v18
  v_lshrrev_b32 v19, 5, v0
  v_lshl_add_u32 v{VDT}, v19, {b[2]}, v18
""")
    for p in range(1, 4):
        c = ((p & 1) << b[3]) + ((p >> 1) << b[4]) - 1024 * p
        assert c >= 0
        a(f"  v_add_u32 v{VDT + p}, {c}, v{VDT}")


def v_read(kb, j, t):
    dst = VV + (kb * 8 + j) * 4 + 2 * t
    return f"  ds_read_b64_tr_b16 {vr(dst, 2)}, v{VVA + j} offset:{VOFF + 4096 * (2 * kb + t)}"


def pv_mfma(kb, j, p=None, vreg=None):
    p = VPA if p is None else p
    vreg = VV + (kb * 8 + j) * 4 if vreg is None else vreg
    return f"  v_mfma_f32_16x16x32_bf16 {vr(VO + 4 * j, 4)}, {vr(vreg, 4)}, {vr(p + 4 * kb, 4)}, {vr(VO + 4 * j, 4)}"


def scale_o(lo, n, al):
    return [f"  v_pk_mul_f32 {vr(r, 2)}, {vr(r, 2)}, {vr(al, 2)} op_sel_hi:[1,0]" for r in range(lo, lo + n, 2)]


def qk_mfma(t, s):
    cin = "0" if s == 0 else vr(VS + 4 * t, 4)
    return f"  v_mfma_f32_16x16x32_bf16 {vr(VS + 4 * t, 4)}, {vr(VK + (t * 4 + s) * 4, 4)}, {vr(VQ + 4 * s, 4)}, {cin}"


def weights(a, m2, l2, mm):
    a(f"""
  v_max_f32 v{mm}, v{VM}, v{m2}
  v_sub_f32 v{VM}, v{VM}, v{mm}
  v_sub_f32 v{m2}, v{m2}, v{mm}
  v_exp_f32 v{VM}, v{VM}
  v_exp_f32 v{m2}, v{m2}
  s_nop 0
  v_mul_f32 v{VL}, v{VL}, v{VM}
  v_mul_f32 v{l2}, v{l2}, v{m2}
  v_add_f32 v{VL}, v{VL}, v{l2}
  v_rcp_f32 v{VL}, v{VL}
  s_nop 0
  v_mul_f32 v{VM}, v{VM}, v{VL}
  v_mul_f32 v{m2}, v{m2}, v{VL}
""")


def merge_half(a, o, own, pk, w_own, w_oth, tmp, dst, vaddr, soff):
    for m in range(2):
        for x in scale_o(own + 8 * m, 8, w_own):
            a(x)
        for h in range(4):
            a(f"  v_lshlrev_b32 v{tmp + 2 * h}, 16, v{pk + 4 * m + h}")
            a(f"  v_and_b32 v{tmp + 2 * h + 1}, 0xffff0000, v{pk + 4 * m + h}")
        for h in range(4):
            r = own + 8 * m + 2 * h
            a(f"  v_pk_fma_f32 {vr(r, 2)}, {vr(tmp + 2 * h, 2)}, {vr(w_oth, 2)}, {vr(r, 2)} op_sel_hi:[1,0,1]")
        d = dst + 4 * m
        for h in (0, 2, 1, 3):
            a(f"  v_cvt_pk_bf16_f32 v{d + h}, v{own + 8 * m + 2 * h}, v{own + 8 * m + 2 * h + 1}")
        a(f"  v_permlane16_swap_b32 v{d}, v{d + 2}")
        a("  s_nop 0")
        a(f"  v_permlane16_swap_b32 v{d + 1}, v{d + 3}")
        a(f"  buffer_store_dwordx4 {vr(d, 4)}, v{vaddr}, {sr(SQ, 4)}, s{soff} offen offset:{64 * m}{o.oaux}")


def prologue(a, o):
    c = (128 ** -0.5) * math.log2(math.e)
    multi = len(o.wins) > 1 and not o.noctl
    a(f"""
L_compute:
  s_sub_u32 s{S_WAVE}, s{S_WAVE}, 1
  v_and_b32 v{VLANE}, 63, v0
  v_and_b32 v2, 15, v0
  v_bfe_u32 v3, v0, 4, 2
  s_mov_b32 s{SQ + 2}, 0x200000
  s_mov_b32 s{SQ + 3}, 0x20000
  s_mov_b32 s{SW + 2}, {WS_SIZE}
  s_mov_b32 s{SW + 3}, 0x20000
  s_mov_b32 s{SD + 2}, 256
  s_mov_b32 s{SD + 3}, 0x20000
  s_lshl_b32 s{S_T}, s{S_PAIR}, 2
  s_add_u32 s{S_T}, s{S_T}, s{S_WAVE}
  s_lshl_b32 s{S_OUT}, s{S_T}, 12
  s_lshl_b32 s{S_BLK}, s{S_T}, 9
  s_add_u32 s{S_BLK}, s{S_BLK}, {WS_BLK}
  s_lshl_b32 s{S_T}, s{S_HALF}, 7
  s_add_u32 s{S_KEEP}, s{S_OUT}, s{S_T}
  s_xor_b32 s{S_SEND}, s{S_KEEP}, 128
  v_lshlrev_b32 v{VT}, 8, v2
  v_lshl_add_u32 v{VBOX}, v3, 4, v{VT}
  v_mov_b32 v{VZ}, 0
  v_min_u32 v{VCA}, 32, v{VLANE}
  v_lshlrev_b32 v{VCA}, 2, v{VCA}
  s_getreg_b32 s{S_ID}, hwreg(HW_REG_XCC_ID, 0, 4)
  s_mul_i32 s{S_LOC}, s{S_ID}, {REP_STRIDE}
  s_add_u32 s{S_LOC}, s{S_LOC}, {WS_LOC}
  s_or_b32 s{S_ID}, s{S_ID}, 16
  s_lshr_b32 s{S_SLOT}, s2, 3
  s_mul_i32 s{S_REPV}, s{S_SLOT}, {REP_STRIDE}
  s_add_u32 s{S_REPV}, s{S_REPV}, {WS_REP}
  s_mul_i32 s{S_REP}, s{S_SLOT}, {o.gstep}
  s_add_u32 s{S_REP}, s{S_REP}, {o.gfirst}
  s_cmp_le_u32 s{S_REP}, {o.glast}
  s_cselect_b32 s{S_REP}, s{S_REP}, 64
  s_cmp_eq_u32 s{S_WAVE}, 1
  s_cselect_b32 s{S_CTL}, {1 if multi else 0}, 0
  s_waitcnt lgkmcnt(0)
  s_mov_b32 s{SQ}, s{S_ARG}
  s_mov_b32 s{SQ + 1}, s{S_ARG + 1}
  s_mov_b32 s{SW}, s{S_ARG + 10}
  s_mov_b32 s{SW + 1}, s{S_ARG + 11}
  s_mov_b32 s{SD}, s{S_ARG + 8}
  s_mov_b32 s{SD + 1}, s{S_ARG + 9}
""")
    for s in range(4 if "q" not in o.x else 0):
        a(f"  buffer_load_dwordx4 {vr(VQ + 4 * s, 4)}, v{VBOX}, {sr(SQ, 4)}, s{S_OUT} offen offset:{64 * s}{o.qaux}")
    a(f"""
  buffer_load_dwordx4 {vr(VFL, 4)}, v{VZ}, {sr(SW, 4)}, s{S_BLK} offen offset:256{o.faux}
  s_cmp_eq_u32 s{S_CTL}, 0
  s_cbranch_scc1 L_nobase
  buffer_load_dword v{VCB}, v{VCA}, {sr(SW, 4)}, s{S_LOC} offen sc1
  buffer_load_dword v{VG0}, v{VZ}, {sr(SW, 4)}, s{S_REPV} offen{o.baux}
L_nobase:
  s_mov_b32 s{S_INT}, 0
  s_mov_b32 s{S_WSUM}, 0
  v_mov_b32 v{VT + 3}, {LDS_WIN}
  v_mov_b32 v{VT + 4}, {o.wins.index(o.winit)}
  ds_write_b32 v{VT + 3}, v{VT + 4}
  s_and_b32 s{S_SH}, s{S_PAIR}, 3
  s_lshl_b32 s{S_SH}, s{S_SH}, 3
  s_and_b32 s{S_DW}, s{S_PAIR}, 0x7c
  v_xor_b32 v{VT + 1}, v2, v3
""")
    for s in range(4):
        a(f"  v_xor_b32 v{VT + 3}, {4 * s}, v{VT + 1}")
        a(f"  v_lshl_add_u32 v{VKA + s}, v{VT + 3}, 4, v{VT}")
    a(f"""
  s_lshl_b32 s{S_T}, s{S_HALF}, 3
  s_xor_b32 s{S_T}, s{S_T}, 8
  v_bfe_u32 v{VT}, v0, 2, 4
  v_and_b32 v{VT + 1}, 7, v{VT}
  v_lshlrev_b32 v{VT + 1}, 1, v{VT + 1}
  v_xor_b32 v{VT + 1}, s{S_T}, v{VT + 1}
  v_lshlrev_b32 v{VT}, 8, v{VT}
  v_and_b32 v{VT + 3}, 3, v0
  v_lshl_add_u32 v{VT}, v{VT + 3}, 3, v{VT}
""")
    for j in range(8):
        a(f"  v_xor_b32 v{VT + 3}, {2 * j}, v{VT + 1}")
        a(f"  v_lshl_add_u32 v{VVA + j}, v{VT + 3}, 4, v{VT}")
    for r in range(32):
        a(f"  v_mov_b32 v{VO + r}, 0")
    for r in range(8):
        a(f"  v_mov_b32 v{VPA + r}, 0")
        a(f"  v_mov_b32 v{VPB + r}, 0")
    a(f"  v_subrev_u32 v{VT}, 64, v0")
    a(f"  v_lshlrev_b32 v{VT}, 4, v{VT}")
    for sl in range(2):
        for p in range(4):
            a(f"  ds_write_b128 v{VT}, {vr(VO, 4)} offset:{sl * UNIT + VOFF + 4096 * p}")
    a(f"""
  v_mov_b32 v{VM}, 0xff800000
  v_mov_b32 v{VL}, 0
  v_mov_b32 v{VALA}, 0
  v_mov_b32 v{VALB}, 0
  v_lshlrev_b32 v{VML}, 3, v2
  s_mov_b32 s{S_C}, {f32hex(c)}
  s_mov_b32 s{S_RD}, 0
  s_mov_b32 s{S_I}, 0
  s_cmp_eq_u32 s{S_WAVE}, 0
  s_cselect_b32 s{S_HOOK}, {o.hello}, {o.sent}
  s_mov_b32 s{SQ}, s{S_ARG + 6}
  s_mov_b32 s{SQ + 1}, s{S_ARG + 7}
  s_lshl_b32 s{S_T}, s{S_HALF}, 7
  s_add_u32 s{S_MLO}, s{S_BLK}, s{S_T}
  s_xor_b32 s{S_MLP}, s{S_MLO}, 128
  s_lshl_b32 s{S_T}, s{S_HALF}, 2
  s_add_u32 s{S_FLO}, s{S_BLK}, s{S_T}
  s_xor_b32 s{S_FLP}, s{S_FLO}, 4
  s_waitcnt lgkmcnt(0)
""")


def cyc(a, o, k):
    if o.estamp == 4:
        a(f"  s_memtime s[{88 + 2 * k}:{89 + 2 * k}]")


NPRE_K = 7


def qk_phase(a, lds, koff, pend_extra, fill, o=None):
    mx = VT + 2
    kreads = [f"  ds_read_b128 {vr(VK + (t * 4 + s) * 4, 4)}, v{VKA + s} offset:{koff + 4096 * t}" for t in range(4) for s in range(4)]
    fill = list(fill)
    for n, r in enumerate(kreads[:NPRE_K]):
        lds.issue(r)
        if n >= 1:
            for _ in range(4):
                if fill:
                    a(fill.pop(0))
    for x in fill:
        a(x)
    nk = 16 - NPRE_K
    pend = kreads[NPRE_K:] + pend_extra
    early = {
        (2, 1): [f"  v_max3_f32 v{mx}, v{VS}, v{VS + 1}, v{VS + 2}"],
        (3, 0): [f"  v_max3_f32 v{mx}, v{mx}, v{VS + 3}, v{VS + 4}"],
        (3, 1): [f"  v_max3_f32 v{mx}, v{mx}, v{VS + 5}, v{VS + 6}"],
    }
    for t in range(4):
        lds.need(4 * (t + 1))
        for s in range(4):
            a(qk_mfma(t, s))
            if o is not None and o.cpos == 4 * t + s:
                cyc(a, o, 1)
            n = 0
            for _ in range(1 if 4 * t + s < nk else 2):
                if pend:
                    lds.issue(pend.pop(0)); n += 1
            if (t, s) in early:
                if n < 2:
                    a("  s_nop 1")
                for x in early[(t, s)]:
                    a(x)
    return pend


def max_chain(al, pad, gap=4):
    t0, t1, mx = VT, VT + 1, VT + 2
    pad = list(pad)
    take = lambda n: [pad.pop(0) if pad else "  s_nop 0" for _ in range(n)]
    v = [f"  v_max3_f32 v{mx}, v{mx}, v{VS + r}, v{VS + r + 1}" for r in (7, 9)]
    v += take(gap)
    v += [f"  v_max3_f32 v{mx}, v{mx}, v{VS + r}, v{VS + r + 1}" for r in (11, 13)]
    v += [f"  v_max_f32 v{t0}, v{mx}, v{VS + 15}", f"  v_max_f32 v{t1}, v{mx}, v{VS + 15}"]
    v += take(2)
    v += [
        f"  v_permlane32_swap_b32 v{t0}, v{t1}",
        f"  v_max_f32 v{mx}, v{t0}, v{t1}",
        f"  v_max_f32 v{t1}, v{t0}, v{t1}",
    ]
    v += take(2)
    v += [
        f"  v_permlane16_swap_b32 v{mx}, v{t1}",
        f"  v_max_f32 v{mx}, v{mx}, v{t1}",
        f"  v_mul_f32 v{mx}, s{S_C}, v{mx}",
        f"  v_max_f32 v{mx}, v{mx}, v{VM}",
        f"  v_sub_f32 v{al}, v{VM}, v{mx}",
        f"  v_mov_b32 v{VM}, v{mx}",
        f"  v_exp_f32 v{al}, v{al}",
    ]
    assert not pad
    for r in range(18):
        if r < 16:
            v.append(f"  v_fma_f32 v{VS + r}, v{VS + r}, s{S_C}, -v{mx}")
        if r >= 2:
            v.append(f"  v_exp_f32 v{VS + r - 2}, v{VS + r - 2}")
    return v


def pack_and_sum(a, pdst, al):
    for r in range(8):
        a(f"  v_cvt_pk_bf16_f32 v{pdst + r}, v{VS + 2 * r}, v{VS + 2 * r + 1}")
    for step in (8, 4, 2):
        for r in range(0, step, 2):
            a(f"  v_pk_add_f32 {vr(VS + r, 2)}, {vr(VS + r, 2)}, {vr(VS + r + step, 2)}")
    a(f"  v_add_f32 v{VS}, v{VS}, v{VS + 1}")
    a(f"  v_fma_f32 v{VL}, v{VL}, v{al}, v{VS}")


def mainloop(a, o):
    a(f"""
L_loop:
  s_cmp_lg_u32 s{S_CTL}, 0
  s_barrier
  s_waitcnt vmcnt(0)
  s_cbranch_scc1 L_ctl
L_ctl_ret:
  s_cmp_eq_u32 s{S_I}, s{S_HOOK}
  s_cbranch_scc1 L_hook
L_hook_ret:
""")
    if o.stamp and not o.estamp:
        for idx, it in ((3, o.st[0]), (4, o.st[1]), (5, o.st[2])):
            a(f"  s_cmp_lg_u32 s{S_I}, {it}")
            a(f"  s_cbranch_scc1 L_nostamp{idx}")
            stamp(a, o, idx)
            a("  s_waitcnt lgkmcnt(0)")
            a(f"L_nostamp{idx}:")
    vreads = [v_read(kb, j, t) for kb in range(2) for j in range(8) for t in range(2)]
    lds = LdsTracker(a)
    if o.estamp == 4:
        a(f"  s_memrealtime s[96:97]")
        cyc(a, o, 0)
        a("  s_waitcnt lgkmcnt(0)")
    fill = scale_o(VO, 32, VALA) + [
        f"  v_mov_b32 v{VALA}, v{VALB}",
        f"  s_add_u32 s{S_RD}, s{S_RD}, 1",
        f"  s_cmp_eq_u32 s{S_RD}, {NS}",
        f"  s_cselect_b32 s{S_RD}, 0, s{S_RD}",
        f"  s_mov_b32 s{S_DL}, {UNIT}",
        f"  s_cmov_b32 s{S_DL}, {-(NS - 1) * UNIT}",
    ]
    pend = qk_phase(a, lds, KOFF, vreads, fill, o)
    adv = lambda r: f"  v_add_u32 v{r}, s{S_DL}, v{r}"
    valu = max_chain(VALB, [adv(VKA + s) for s in range(4)], gap=0)
    k = 0
    for n in range(16):
        if n % 2 == 0:
            lds.need(16 + 2 * (n + 2))
        a(pv_mfma(n // 8, n % 8))
        if o.cpos == 16 + n:
            cyc(a, o, 1)
        for _ in range(2):
            if pend:
                lds.issue(pend.pop(0))
        for _ in range(o.ppm[0] if n < 4 else o.ppm[1]):
            a(valu[k]); k += 1
    assert not pend
    for x in valu[k:]:
        a(x)
    for j in range(8):
        a(adv(VVA + j))
    for r in range(0, 8, 2):
        a(f"  v_mov_b64 {vr(VPA + r, 2)}, {vr(VPB + r, 2)}")
    pack_and_sum(a, VPB, VALB)
    if o.estamp == 4:
        cyc(a, o, 2)
        a(f"""
  s_memrealtime s[98:99]
  s_waitcnt lgkmcnt(0)
  s_cmp_lg_u32 s{S_I}, 18
  s_cbranch_scc1 L_nocyc
  s_sub_u32 s{S_TS + 6}, s90, s88
  s_sub_u32 s{S_TS + 8}, s92, s88
  s_sub_u32 s{S_TS + 10}, s98, s96
L_nocyc:
""")
    a(f"""
  s_add_u32 s{S_I}, s{S_I}, 1
  s_cmp_lt_u32 s{S_I}, 31
  s_cbranch_scc1 L_loop
""")


def tail_pv(a, parts):
    lds = LdsTracker(a)
    reads, mfmas = [], []
    for q, p, acc, fresh, vb in parts:
        for n, (kb, jj) in enumerate((kb, jj) for kb in range(2) for jj in range(4)):
            for t in range(2):
                reads.append(f"  ds_read_b64_tr_b16 {vr(vb + 4 * n + 2 * t, 2)}, v{VKA + jj} offset:{8192 * q + 2048 * (2 * kb + t)}")
            cin = "0" if fresh and kb == 0 else vr(acc + 4 * jj, 4)
            mfmas.append(f"  v_mfma_f32_16x16x32_bf16 {vr(acc + 4 * jj, 4)}, {vr(vb + 4 * n, 4)}, {vr(p + 4 * kb, 4)}, {cin}")
    for r in reads[:12]:
        lds.issue(r)
    pend = reads[12:]
    for n, m in enumerate(mfmas):
        lds.need(2 * (n + 1))
        a(m)
        for _ in range(2):
            if pend:
                lds.issue(pend.pop(0))


def fma_o(lo, n, al, add):
    return [f"  v_pk_fma_f32 {vr(lo + r, 2)}, {vr(lo + r, 2)}, {vr(al, 2)}, {vr(add + r, 2)} op_sel_hi:[1,0,1]" for r in range(0, n, 2)]


def epilogue(a, o):
    t0, t1 = VT, VT + 1
    vout = VT + 11
    m2, l2, mm, tmp = VT, VT + 1, VT + 2, VK + 48
    T1, T2 = VK + 32, VK + 48
    fetch = f"""
  buffer_load_dwordx2 {vr(m2, 2)}, v{VML}, {sr(SW, 4)}, s{S_MLP} offen sc1
  buffer_load_dwordx4 {vr(VK, 4)}, v{VBOX}, {sr(SQ, 4)}, s{S_KEEP} offen sc1
  buffer_load_dwordx4 {vr(VK + 4, 4)}, v{VBOX}, {sr(SQ, 4)}, s{S_KEEP} offen offset:64 sc1
"""
    a("  s_barrier")
    lds = LdsTracker(a)
    pend = qk_phase(a, lds, 0, [], scale_o(VO, 32, VALA))
    assert not pend
    a(f"""
  v_bfe_u32 v{VT + 4}, v{VLANE}, 3, 2
  v_lshlrev_b32 v{VT + 4}, 1, v{VT + 4}
  v_lshrrev_b32 v{VT + 3}, 2, v{VLANE}
  v_lshlrev_b32 v{VT + 3}, 7, v{VT + 3}
  v_and_b32 v{VT + 5}, 3, v{VLANE}
  v_lshl_add_u32 v{VT + 3}, v{VT + 5}, 3, v{VT + 3}
  v_add_u32 v{VT + 3}, {(31 % NS) * UNIT + TILE}, v{VT + 3}
""")
    pad = []
    for jj in range(4):
        pad.append(f"  v_xor_b32 v{VT + 5}, {2 * jj}, v{VT + 4}")
        pad.append(f"  v_lshl_add_u32 v{VKA + jj}, v{VT + 5}, 4, v{VT + 3}")
    for x in max_chain(VALC, pad):
        a(x)
    pack_and_sum(a, VPC, VALC)
    for x in xlane_ops("v_add_f32", VL, t0, t1):
        a(x)
    a(f"""
  v_min_u32 v{VM}, -2, v{VM}
  v_min_u32 v{VL}, -2, v{VL}
  buffer_store_dwordx2 {vr(VM, 2)}, v{VML}, {sr(SW, 4)}, s{S_MLO} offen
  v_lshlrev_b32 v{vout}, 5, v{VML}
  v_bfe_u32 v{VT + 3}, v{VLANE}, 4, 1
  v_lshl_add_u32 v{vout}, v{VT + 3}, 5, v{vout}
  v_lshrrev_b32 v{VT + 3}, 5, v{VLANE}
  v_lshl_add_u32 v{vout}, v{VT + 3}, 4, v{vout}
  s_mov_b32 s{S_I}, {SPIN}
  s_cmp_lg_u32 s{S_MODE}, 0
  s_barrier
""")
    tail_pv(a, [(0, VPA, VO, False, VV), (1, VPB, T1, True, VV + 32)])
    a("  s_nop 2")
    for x in fma_o(VO, 16, VALB, T1) + scale_o(VO, 16, VALC):
        a(x)
    a("  s_barrier")
    tail_pv(a, [(2, VPC, VO, False, VV)])
    a("  s_nop 1")
    a("  s_cbranch_scc1 L_nosend")
    for m in range(2):
        for r in range(4):
            a(f"  v_cvt_pk_bf16_f32 v{VS + 4 * m + r}, v{VO + 8 * m + 2 * r}, v{VO + 8 * m + 2 * r + 1}")
        for r in range(4):
            a(f"  v_min_u32 v{VS + 4 * m + r}, -2, v{VS + 4 * m + r}")
        a(f"  buffer_store_dwordx4 {vr(VS + 4 * m, 4)}, v{VBOX}, {sr(SQ, 4)}, s{S_SEND} offen offset:{64 * m}")
    a("L_nosend:")
    if o.estamp == 1:
        stamp(a, o, 3)
        a("  s_waitcnt lgkmcnt(0)")
    a("  s_barrier")
    tail_pv(a, [(3, VPA, VO + 16, False, VV + 32)])
    a("  s_nop 2")
    for x in scale_o(VO + 16, 16, VALB):
        a(x)
    a("  s_barrier")
    tail_pv(a, [(4, VPB, VO + 16, False, VV)])
    a(f"""
  v_cmp_ne_u32 vcc, v{VFL + 1}, v{VRDY}
  s_cbranch_vccz L_notready
L_ready:
""")
    a(fetch)
    a("L_nofetch:")
    a("  s_nop 1")
    for x in scale_o(VO + 16, 16, VALC):
        a(x)
    if o.estamp == 1:
        stamp(a, o, 4)
        a("  s_waitcnt lgkmcnt(0)")
    a("  s_barrier")
    stamp(a, o, 1)
    if o.stamp:
        a("  s_waitcnt lgkmcnt(0)")
    tail_pv(a, [(5, VPC, VO + 16, False, VV + 32)])
    a(f"""
  s_cmp_lg_u32 s{S_MODE}, 0
  s_cbranch_scc1 L_generic
L_check:
  s_waitcnt vmcnt(0)
  v_max3_u32 v{mm}, v{m2}, v{l2}, v{VK}
  v_max3_u32 v{mm + 1}, v{VK + 1}, v{VK + 2}, v{VK + 3}
  v_max3_u32 v{mm}, v{mm}, v{VK + 4}, v{VK + 5}
  v_max3_u32 v{mm + 1}, v{mm + 1}, v{VK + 6}, v{VK + 7}
  v_max_u32 v{mm}, v{mm}, v{mm + 1}
  v_cmp_eq_u32 vcc, -1, v{mm}
  s_cbranch_vccnz L_retry
""")
    if o.estamp == 1:
        stamp(a, o, 5)
    weights(a, m2, l2, mm)
    merge_half(a, o, VO + 16, VK, VM, m2, tmp, VS + 8, vout, S_KEEP)
    a("L_done:")
    if o.stamp:
        a("  s_waitcnt vmcnt(0)")
        stamp(a, o, 2)
        a(f"""
  s_waitcnt lgkmcnt(0)
  s_lshl_b32 s{S_T}, s2, 2
  s_add_u32 s{S_T}, s{S_T}, s{S_WAVE}
  s_lshl_b32 s{S_T}, s{S_T}, 5
  s_add_u32 s{S_T}, s{S_T}, {WS_STAMP}
  v_mov_b32 v4, s{S_TS}
  v_mov_b32 v5, s{S_TS + 2}
  v_mov_b32 v6, s{S_TS + 4}
  s_getreg_b32 s{S_T + 1}, hwreg(HW_REG_XCC_ID)
  s_and_b32 s{S_T + 1}, s{S_T + 1}, 15
  s_lshl_b32 s{S_T + 2}, s{S_MODE}, 4
  s_or_b32 s{S_T + 1}, s{S_T + 1}, s{S_T + 2}
  s_getreg_b32 s{S_T + 2}, hwreg(HW_REG_HW_ID)
  s_lshl_b32 s{S_T + 2}, s{S_T + 2}, 8
  s_or_b32 s{S_T + 1}, s{S_T + 1}, s{S_T + 2}
  v_mov_b32 v7, s{S_T + 1}
  buffer_store_dwordx4 v[4:7], v{VZ}, {sr(SW, 4)}, s{S_T} offen
  v_mov_b32 v12, s{S_TS + 6}
  v_mov_b32 v13, s{S_TS + 8}
  v_mov_b32 v14, s{S_TS + 10}
  v_mov_b32 v15, s{S_WSUM}
  buffer_store_dwordx4 v[12:15], v{VZ}, {sr(SW, 4)}, s{S_T} offen offset:16
""")
    if o.diag:
        diag(a, o)
    a("""
L_end:
  s_endpgm
""")
    a("L_retry:")
    a(fetch)
    a(f"""
  s_sub_u32 s{S_I}, s{S_I}, 1
  s_cbranch_scc0 L_check
  s_endpgm
L_notready:
  s_cmp_lg_u32 s{S_MODE}, 0
  s_cbranch_scc1 L_nofetch
  buffer_load_dword v{VRDY}, v{VZ}, {sr(SW, 4)}, s{S_FLP} offen offset:256 sc1
  buffer_load_dword v{VT + 3}, v{VZ}, {sr(SD, 4)}, s{S_DW} offen sc1
  s_sub_u32 s{S_I}, s{S_I}, 1
  s_cbranch_scc1 L_end
  s_waitcnt vmcnt(0)
  v_cmp_ne_u32 vcc, v{VFL + 1}, v{VRDY}
  s_cbranch_vccnz L_ready
  v_bfe_u32 v{VT + 3}, v{VT + 3}, s{S_SH}, 1
  v_cmp_ne_u32 vcc, 0, v{VT + 3}
  s_cbranch_vccz L_notready
  s_mov_b32 s{S_MODE}, 2
  s_branch L_nofetch
""")
    a(f"""
L_generic:
  s_waitcnt vmcnt(0)
  s_lshl_b32 s{S_T}, s{S_PAIR}, 2
  s_add_u32 s{S_T}, s{S_T}, s{S_WAVE}
  s_lshl_b32 s{S_T + 1}, s{S_T}, 13
  s_add_u32 s{S_T + 3}, s{S_T + 1}, 4096
  s_lshl_b32 s{S_T + 2}, s{S_T}, 9
  s_add_u32 s{S_T + 2}, s{S_T + 2}, {WS_DML}
  s_lshl_b32 s{S_T + 4}, 2, s{S_SH}
  v_lshlrev_b32 v{VT + 8}, 4, v{VLANE}
  v_lshlrev_b32 v{VT + 9}, 3, v{VLANE}
  s_cmp_eq_u32 s{S_MODE}, 1
  s_cbranch_scc0 L_second
  buffer_store_dwordx2 {vr(VM, 2)}, v{VT + 9}, {sr(SW, 4)}, s{S_T + 2} offen sc1
""")
    for j in range(8):
        so = S_T + 1 if j < 4 else S_T + 3
        a(f"  buffer_store_dwordx4 {vr(VO + 4 * j, 4)}, v{VT + 8}, {sr(SW, 4)}, s{so} offen offset:{1024 * (j & 3)} sc1")
    a(f"""
  s_waitcnt vmcnt(0)
  s_barrier
  s_cmp_eq_u32 s{S_WAVE}, 0
  s_cbranch_scc0 L_done
  v_mov_b32 v{VT}, s{S_T + 4}
  s_mov_b64 exec, 1
  buffer_atomic_or v{VT}, v{VZ}, {sr(SD, 4)}, s{S_DW} offen sc1
  s_mov_b64 exec, -1
  s_branch L_done
L_second:
  buffer_load_dword v{VT}, v{VZ}, {sr(SD, 4)}, s{S_DW} offen sc1
  s_sub_u32 s{S_I}, s{S_I}, 1
  s_cbranch_scc1 L_end
  s_waitcnt vmcnt(0)
  v_and_b32 v{VT}, s{S_T + 4}, v{VT}
  v_cmp_ne_u32 vcc, 0, v{VT}
  s_cbranch_vccz L_second
  buffer_load_dwordx2 {vr(m2, 2)}, v{VT + 9}, {sr(SW, 4)}, s{S_T + 2} offen sc1
""")
    for j in range(8):
        so = S_T + 1 if j < 4 else S_T + 3
        a(f"  buffer_load_dwordx4 {vr(VK + 4 * j, 4)}, v{VT + 8}, {sr(SW, 4)}, s{so} offen offset:{1024 * (j & 3)} sc1")
    a("  s_waitcnt vmcnt(0)")
    weights(a, m2, l2, mm)
    for r in range(8):
        a(f"  v_cvt_pk_bf16_f32 v{VK + 32 + r}, v{VK + 2 * r}, v{VK + 2 * r + 1}")
        a(f"  v_cvt_pk_bf16_f32 v{VK + 40 + r}, v{VO + 2 * r}, v{VO + 2 * r + 1}")
    merge_half(a, o, VO + 16, VK + 32, VM, m2, tmp, VS + 8, vout, S_KEEP)
    merge_half(a, o, VK + 16, VK + 40, m2, VM, tmp, VS, vout, S_SEND)
    a("  s_branch L_done")


def hooks(a, o):
    b = S_T
    a(f"""
L_hook:
  s_cmp_ge_u32 s{S_I}, {o.sent}
  s_cbranch_scc1 L_hook4
  s_mov_b64 exec, 1
  s_cmp_eq_u32 s{S_I}, {o.hello}
  s_cbranch_scc0 L_hook2
""")
    if o.force == "late":
        a(f"""
  s_cmp_eq_u32 s{S_HALF}, 0
  s_cbranch_scc1 L_nodelay
  s_lshl_b32 s{b + 1}, 1, s{S_SH}
  s_mov_b32 s{b + 2}, {SPIN}
L_delay:
  buffer_load_dword v{VT}, v{VZ}, {sr(SD, 4)}, s{S_DW} offen sc1
  s_sub_u32 s{b + 2}, s{b + 2}, 1
  s_cbranch_scc1 L_nodelay
  s_waitcnt vmcnt(0)
  v_and_b32 v{VT}, s{b + 1}, v{VT}
  v_cmp_ne_u32 vcc, 0, v{VT}
  s_cbranch_vccz L_delay
L_nodelay:
""")
    a(f"""
  s_cmp_eq_u32 s{S_HALF}, 0
  s_cbranch_scc1 L_hook_noswap
  v_swap_b32 v{VFL + 2}, v{VFL + 3}
L_hook_noswap:
  v_add_u32 v{VFL + 2}, s{S_ID}, v{VFL + 2}
  buffer_store_dword v{VFL + 2}, v{VZ}, {sr(SW, 4)}, s{S_FLO} offen offset:264
  s_mov_b32 s{S_HOOK}, {o.check}
  s_branch L_hook_out
L_hook2:
  s_cmp_eq_u32 s{S_I}, {o.check}
  s_cbranch_scc0 L_hook3
  buffer_load_dword v{VHS}, v{VZ}, {sr(SW, 4)}, s{S_FLP} offen offset:264 sc1
  s_mov_b32 s{S_HOOK}, {o.check + 1}
  s_branch L_hook_out
L_hook3:
  v_sub_u32 v{VHS}, v{VHS}, v{VFL + 3}
  v_cmp_eq_u32 vcc, s{S_ID}, v{VHS}
  v_mov_b32 v{VHS}, 0
  s_cbranch_vccnz L_hook_mode
  s_lshl_b32 s{b}, 1, s{S_SH}
  v_mov_b32 v{VHS}, s{b}
  buffer_atomic_or v{VHS}, v{VZ}, {sr(SD, 4)}, s{S_DW} offen sc0 sc1
  s_waitcnt vmcnt(0)
  v_bfe_u32 v{VHS}, v{VHS}, s{S_SH}, 1
  v_add_u32 v{VHS}, 1, v{VHS}
L_hook_mode:
  v_mov_b32 v{VT}, {LDS_MODE}
  ds_write_b32 v{VT}, v{VHS}
  s_mov_b32 s{S_HOOK}, {o.sent}
  s_waitcnt lgkmcnt(0)
L_hook_out:
  s_mov_b64 exec, -1
  s_branch L_hook_ret
L_hook4:
  s_cmp_eq_u32 s{S_I}, {o.sent}
  s_cbranch_scc0 L_hook5
  v_mov_b32 v{VT}, {LDS_MODE}
  ds_read_b32 v{VHS}, v{VT}
  s_cmp_eq_u32 s{S_HALF}, 0
  s_cbranch_scc1 L_hook_noswap2
  v_swap_b32 v{VFL}, v{VFL + 1}
L_hook_noswap2:
  v_add_u32 v{VFL}, 1, v{VFL}
  v_mov_b32 v{VRDY}, v{VFL + 1}
  v_mov_b32 v{VT + 4}, -1
  v_mov_b32 v{VT + 5}, -1
  v_mov_b32 v{VT + 6}, -1
  v_mov_b32 v{VT + 7}, -1
  s_waitcnt lgkmcnt(0)
  v_readfirstlane_b32 s{S_MODE}, v{VHS}
  s_cmp_lg_u32 s{S_MODE}, 0
  s_cbranch_scc1 L_hook_ret
  buffer_store_dwordx4 {vr(VT + 4, 4)}, v{VBOX}, {sr(SQ, 4)}, s{S_SEND} offen
  buffer_store_dwordx4 {vr(VT + 4, 4)}, v{VBOX}, {sr(SQ, 4)}, s{S_SEND} offen offset:64
  buffer_store_dwordx2 {vr(VT + 4, 2)}, v{VML}, {sr(SW, 4)}, s{S_MLO} offen
  s_mov_b32 s{S_HOOK}, {o.sent + 1}
  s_branch L_hook_ret
L_hook5:
  s_cmp_eq_u32 s{S_I}, {o.sent + 1}
  s_cbranch_scc0 L_hook6
  buffer_store_dword v{VFL}, v{VZ}, {sr(SW, 4)}, s{S_FLO} offen offset:256
  s_mov_b32 s{S_HOOK}, {o.rdy}
  s_branch L_hook_ret
L_hook6:
  buffer_load_dword v{VRDY}, v{VZ}, {sr(SW, 4)}, s{S_FLP} offen offset:256 sc1
  s_branch L_hook_ret
""")


def controller(a, o):
    nw = len(o.wins)
    x, e, g = S_T, S_T + 1, S_T + 2
    t = VT
    a(f"""
L_ctl:
  v_sub_u32 v{t}, v{VCT}, v{VCB}
  s_add_u32 s{x}, s{S_I}, 1
  v_add_u32 v{t + 1}, s{x}, v{VCB}
  s_cmp_lt_u32 s{S_I}, {o.lfirst}
  s_cbranch_scc1 L_ctl_nopub
  s_lshl_b64 exec, 1, s{S_SLOT}
  buffer_store_dword v{t + 1}, v{VCA}, {sr(SW, 4)}, s{S_LOC} offen
L_ctl_nopub:
  s_sub_u32 s{x}, s{S_I}, s{S_REP}
  s_cmp_gt_u32 s{x}, 1
  s_cbranch_scc1 L_ctl_nolead
  s_lshl_b64 exec, 1, 32
  s_cmp_eq_u32 s{x}, 0
  s_cbranch_scc0 L_ctl_rank
  v_mov_b32 v{VAT}, 1
  buffer_atomic_add v{VAT}, v{VZ}, {sr(SW, 4)}, s{S_REPV} offen sc0 sc1
  s_branch L_ctl_nolead
L_ctl_rank:
  v_sub_u32 v{VAT}, v{VAT}, v{VG0}
  v_lshl_add_u32 v{VAT}, v{VAT}, 1, v{VCB}
  v_subrev_u32 v{VAT}, 7, v{VAT}
  buffer_store_dword v{VAT}, v{VCA}, {sr(SW, 4)}, s{S_LOC} offen
L_ctl_nolead:
  s_mov_b64 exec, -1
  buffer_load_dword v{VCT}, v{VCA}, {sr(SW, 4)}, s{S_LOC} offen sc1
  s_cmp_lt_u32 s{S_I}, {o.cstart}
  s_cbranch_scc1 L_ctl_ret
  v_cmp_ne_u32 vcc, 0, v{t}
  v_readlane_b32 s{g}, v{t}, 32
  v_add_u32_dpp v{t}, v{t}, v{t} row_shr:1 row_mask:0xf bank_mask:0xf bound_ctrl:1
  s_nop 1
  v_add_u32_dpp v{t}, v{t}, v{t} row_shr:2 row_mask:0xf bank_mask:0xf bound_ctrl:1
  s_nop 1
  v_add_u32_dpp v{t}, v{t}, v{t} row_shr:4 row_mask:0xf bank_mask:0xf bound_ctrl:1
  s_nop 1
  v_add_u32_dpp v{t}, v{t}, v{t} row_shr:8 row_mask:0xf bank_mask:0xf bound_ctrl:1
  s_cmp_eq_u32 vcc_lo, -1
  s_cbranch_scc0 L_ctl_end
  v_readlane_b32 s{x}, v{t}, 15
  v_readlane_b32 s{e}, v{t}, 31
  s_max_i32 s{g}, s{g}, -7
  s_min_i32 s{g}, s{g}, 7
  s_add_u32 s{x}, s{x}, s{e}
  s_lshl_b32 s{e}, s{S_I}, 5
  s_sub_i32 s{e}, s{x}, s{e}
  s_add_i32 s{e}, s{e}, {32 - o.bias}
  s_max_i32 s{e}, s{e}, -128
  s_min_i32 s{e}, s{e}, 128
""")
    if o.logerr:
        a(f"  s_add_i32 s{S_WSUM}, s{S_WSUM}, s{e if o.logerr == 1 else g}")
    if o.ki or o.kig:
        a(f"""
  s_mul_i32 s{x}, s{e}, {o.ki}
  s_add_i32 s{S_INT}, s{S_INT}, s{x}
  s_mul_i32 s{x}, s{g}, {o.kig}
  s_add_i32 s{S_INT}, s{S_INT}, s{x}
  s_max_i32 s{S_INT}, s{S_INT}, {-o.imax * 512}
  s_min_i32 s{S_INT}, s{S_INT}, {o.imax * 512}
""")
    a(f"""
  s_cmp_lt_u32 s{S_I}, {o.ilate}
  s_cselect_b32 s{x}, {o.kp}, {o.kp2 if o.kp2 >= 0 else o.kp}
  s_mul_i32 s{e}, s{e}, s{x}
  s_movk_i32 s{x}, {o.kpg2 if o.kpg2 >= 0 else o.kpg}
  s_cmovk_i32 s{x}, {o.kpg}
  s_mul_i32 s{g}, s{g}, s{x}
  s_add_i32 s{e}, s{e}, s{g}
  s_add_i32 s{e}, s{e}, s{S_INT}
  s_cmp_lt_u32 s{S_I}, {o.iadd}
  s_movk_i32 s{x}, {int((o.w0 + o.wadd) * 512 + 256)}
  s_cmovk_i32 s{x}, {int(o.w0 * 512 + 256)}
  s_add_i32 s{e}, s{e}, s{x}
  s_ashr_i32 s{e}, s{e}, 9
  s_max_i32 s{e}, s{e}, 0
  s_min_i32 s{e}, s{e}, {nw - 1}
""")
    if o.stamp and not o.logerr:
        a(f"  s_add_u32 s{S_WSUM}, s{S_WSUM}, s{e}")
    a(f"""
  v_mov_b32 v{t}, s{e}
  v_mov_b32 v{t + 2}, {LDS_WIN}
  ds_write_b32 v{t + 2}, v{t}
  s_waitcnt lgkmcnt(0)
L_ctl_end:
  s_cmp_lt_u32 s{S_I}, {o.cend}
  s_cselect_b32 s{S_CTL}, s{S_CTL}, 0
  s_branch L_ctl_ret
""")


def diag(a, o):
    ts = lambda i: S_TS + 2 * i
    kind, idx = o.diag.split(":")
    idx = int(idx)
    a(f"""
  s_add_u32 s{S_T + 1}, s{ts(0)}, 8000
L_dg0:
  s_sleep 8
  s_memrealtime s[{S_T + 3}:{S_T + 4}]
  s_waitcnt lgkmcnt(0)
  s_sub_u32 s{S_T + 3}, s{S_T + 3}, s{S_T + 1}
  s_cmp_lt_i32 s{S_T + 3}, 0
  s_cbranch_scc1 L_dg0
  s_mov_b64 exec, 1
  s_not_b32 s{S_T}, s{ts(0)}
  v_mov_b32 v4, s{S_T}
  buffer_atomic_umax v4, v{VZ}, {sr(SD, 4)}, 0 offen offset:244 sc1
  v_mov_b32 v5, s{ts(idx)}
""")
    if o.diagx >= 0:
        a(f"""
  s_and_b32 s{S_T}, s2, 7
  s_cmp_eq_u32 s{S_T}, {o.diagx}
  s_cbranch_scc0 L_dgskip
""")
    a(f"""
  buffer_atomic_umax v5, v{VZ}, {sr(SD, 4)}, 0 offen offset:248 sc1
  buffer_atomic_add v5, v{VZ}, {sr(SD, 4)}, 0 offen offset:252 sc1
L_dgskip:
  s_or_b32 s{S_T}, s2, s{S_WAVE}
  s_cmp_lg_u32 s{S_T}, 0
  s_cbranch_scc1 L_end
  s_add_u32 s{S_T + 1}, s{ts(0)}, 19000
L_dg1:
  s_memrealtime s[{S_T + 3}:{S_T + 4}]
  s_waitcnt lgkmcnt(0)
  s_sub_u32 s{S_T + 3}, s{S_T + 3}, s{S_T + 1}
  s_cmp_lt_i32 s{S_T + 3}, 0
  s_cbranch_scc1 L_dg1
  buffer_load_dword v4, v{VZ}, {sr(SD, 4)}, 0 offen offset:244 sc1
  buffer_load_dword v5, v{VZ}, {sr(SD, 4)}, 0 offen offset:{248 if kind != "mean" else 252} sc1
  s_waitcnt vmcnt(0)
  v_readfirstlane_b32 s{S_T}, v4
  v_readfirstlane_b32 s{S_T + 1}, v5
  s_not_b32 s{S_T}, s{S_T}
""")
    sh = 10 if o.diagx < 0 else 7
    if kind == "zero":
        a(f"  s_mov_b32 s{S_T + 1}, 0")
    elif kind == "max":
        a(f"  s_sub_u32 s{S_T + 1}, s{S_T + 1}, s{S_T}")
    else:
        a(f"  s_lshl_b32 s{S_T + 2}, s{S_T}, {sh}")
        a(f"  s_sub_u32 s{S_T + 1}, s{S_T + 1}, s{S_T + 2}")
        a(f"  s_lshr_b32 s{S_T + 1}, s{S_T + 1}, {sh}")
    a(f"""
  s_min_u32 s{S_T + 1}, s{S_T + 1}, 10000
  s_add_u32 s{S_T + 1}, s{S_T + 1}, 20000
  s_sub_u32 s{S_T + 2}, s{ts(0)}, s{S_T}
  s_min_u32 s{S_T + 2}, s{S_T + 2}, 1000
  s_sub_u32 s{S_T}, s{ts(0)}, s{S_T + 2}
  s_add_u32 s{S_T + 1}, s{S_T + 1}, s{S_T}
L_dg2:
  s_memrealtime s[{S_T + 3}:{S_T + 4}]
  s_waitcnt lgkmcnt(0)
  s_sub_u32 s{S_T + 3}, s{S_T + 3}, s{S_T + 1}
  s_cmp_lt_i32 s{S_T + 3}, 0
  s_cbranch_scc1 L_dg2
""")


def build(o):
    a = Asm()
    a(HEADER)
    label = f"{NAME}_kernel"
    a(f"; @launch grid=(256,1,1) block=(320,1,1) lds={LDS_BYTES}")
    a('.amdgcn_target "amdgcn-amd-amdhsa--gfx950"')
    a(f"""
.text
.globl {label}
.p2align 8
.type {label},@function
{label}:
  s_cmp_ge_u32 s2, 256
  s_cbranch_scc1 L_end
  s_load_dwordx8 s[{S_ARG}:{S_ARG + 7}], s[0:1], 0
  s_load_dwordx4 s[{S_ARG + 8}:{S_ARG + 11}], s[0:1], 32
""")
    if o.skew:
        a(f"""
  s_memrealtime s[{S_TS}:{S_TS + 1}]
  s_getreg_b32 s{S_T}, hwreg(HW_REG_XCC_ID, 0, 4)
  s_lshl_b32 s{S_T}, s{S_T}, 2
  s_add_u32 s{S_T}, s{S_T}, 0xb00000
  s_waitcnt lgkmcnt(0)
  s_load_dword s{S_T + 1}, s[{S_ARG + 10}:{S_ARG + 11}], s{S_T}
  s_waitcnt lgkmcnt(0)
  s_min_u32 s{S_T + 1}, s{S_T + 1}, 1000
  s_add_u32 s{S_T + 1}, s{S_T + 1}, s{S_TS}
L_skew:
  s_memrealtime s[{S_T + 3}:{S_T + 4}]
  s_waitcnt lgkmcnt(0)
  s_sub_u32 s{S_T + 3}, s{S_T + 3}, s{S_T + 1}
  s_cmp_lt_i32 s{S_T + 3}, 0
  s_cbranch_scc1 L_skew
""")
    stamp(a, o, 0)
    a(f"  v_readfirstlane_b32 s{S_WAVE}, v0")
    if o.map == 0:
        a(f"""
  s_and_b32 s{S_T}, s2, 7
  s_lshr_b32 s{S_T + 1}, s2, 4
  s_lshl_b32 s{S_T + 1}, s{S_T + 1}, 3
  s_or_b32 s{S_PAIR}, s{S_T}, s{S_T + 1}
  s_bfe_u32 s{S_HALF}, s2, 0x10003
""")
    elif o.map == 1:
        a(f"""
  s_lshr_b32 s{S_PAIR}, s2, 1
  s_and_b32 s{S_HALF}, s2, 1
""")
    a(f"""
  s_lshr_b32 s{S_WAVE}, s{S_WAVE}, 6
  s_cmp_eq_u32 s{S_WAVE}, 0
""")
    if o.cpf:
        a(f"""
  s_cbranch_scc1 L_loader
  s_cmp_lg_u32 s{S_WAVE}, 4
  s_cbranch_scc1 L_compute
  s_getpc_b64 s[{S_T + 3}:{S_T + 4}]
L_pc:
  s_lshr_b32 s{S_T}, s2, 3
  s_lshl_b32 s{S_T}, s{S_T}, 9
  v_and_b32 v1, 3, v0
  v_lshl_add_u32 v1, v1, 7, s{S_T}
  v_min_u32 v1, L_code_end-L_pc-4, v1
  v_mov_b32 v3, s{S_T + 4}
  v_add_co_u32 v2, vcc, s{S_T + 3}, v1
  s_nop 1
  v_addc_co_u32 v3, vcc, 0, v3, vcc
  global_load_dword v{VDUM}, v[2:3], off
  s_branch L_compute
L_loader:
""")
    else:
        a("  s_cbranch_scc0 L_compute")
    loader(a, o)
    prologue(a, o)
    mainloop(a, o)
    epilogue(a, o)
    hooks(a, o)
    controller(a, o)
    a("L_code_end:")
    a(f"""
.section .rodata,"a"
.p2align 6
.amdhsa_kernel {label}
  .amdhsa_next_free_vgpr {NVGPR}
  .amdhsa_next_free_sgpr {NSGPR}
  .amdhsa_accum_offset {NVGPR}
  .amdhsa_group_segment_fixed_size 0
  .amdhsa_kernarg_size 48
  .amdhsa_user_sgpr_count 2
  .amdhsa_user_sgpr_kernarg_segment_ptr 1
  .amdhsa_system_sgpr_workgroup_id_x 1
.end_amdhsa_kernel
""")
    return a.text()


if __name__ == "__main__":
    ap = argparse.ArgumentParser()
    ap.add_argument("-o", default="cdna_kernels/" + NAME + ".s")
    ap.add_argument("--wins", default="17,18,19,20,21,22,23,24,26,28")
    ap.add_argument("--winit", type=int, default=21)
    ap.add_argument("--w0", type=float, default=4.0)
    ap.add_argument("--kp", type=int, default=48)
    ap.add_argument("--ki", type=int, default=0)
    ap.add_argument("--kpg", type=int, default=200)
    ap.add_argument("--kig", type=int, default=0)
    ap.add_argument("--imax", type=int, default=4)
    ap.add_argument("--kp2", type=int, default=-1)
    ap.add_argument("--kpg2", type=int, default=-1)
    ap.add_argument("--ilate", type=int, default=16)
    ap.add_argument("--wadd", type=float, default=0)
    ap.add_argument("--iadd", type=int, default=29)
    ap.add_argument("--bias", type=int, default=16)
    ap.add_argument("--lfirst", type=int, default=1)
    ap.add_argument("--gfirst", type=int, default=2)
    ap.add_argument("--gstep", type=int, default=1)
    ap.add_argument("--glast", type=int, default=26)
    ap.add_argument("--cstart", type=int, default=3)
    ap.add_argument("--cend", type=int, default=29)
    ap.add_argument("--noctl", action="store_true")
    ap.add_argument("--logerr", type=int, default=0)
    ap.add_argument("--hello", type=int, default=2)
    ap.add_argument("--check", type=int, default=20)
    ap.add_argument("--sent", type=int, default=24)
    ap.add_argument("--wtail", default="22")
    ap.add_argument("--bara", type=int, default=0)
    ap.add_argument("--rdy", type=int, default=28)
    ap.add_argument("--nprek", type=int, default=7)
    ap.add_argument("--cpos", type=int, default=31)
    ap.add_argument("--ppm", default="2,3")
    ap.add_argument("--bar1", type=int, default=31)
    ap.add_argument("--cpf", type=int, default=1)
    ap.add_argument("--skew", action="store_true")
    ap.add_argument("--lstamp", action="store_true")
    ap.add_argument("--aux", default="nt")
    ap.add_argument("--qaux", default="nt")
    ap.add_argument("--oaux", default="")
    ap.add_argument("--paux", default="sc1")
    ap.add_argument("--stamp", action="store_true")
    ap.add_argument("--st", default="0,8,16")
    ap.add_argument("--estamp", type=int, default=0)
    ap.add_argument("--gaux", default="sc1")
    ap.add_argument("--baux", default="nt")
    ap.add_argument("--path", default="s")
    ap.add_argument("--nl", type=int, default=3)
    ap.add_argument("--map", type=int, default=0)
    ap.add_argument("--rot", type=int, default=0)
    ap.add_argument("--x", default="")
    ap.add_argument("--faux", default="sc1")
    ap.add_argument("--bits", default="8,9,12,13,14,10")
    ap.add_argument("--split", type=int, default=11)
    ap.add_argument("--force", default="")
    ap.add_argument("--diag", default="")
    ap.add_argument("--diagx", type=int, default=-1)
    o = ap.parse_args()
    o.wins = [int(x) for x in o.wins.split(",")]
    o.st = [int(x) for x in o.st.split(",")]
    o.wtail = [int(x) for x in o.wtail.split(",")]
    NPRE_K = o.nprek
    o.ppm = [int(x) for x in o.ppm.split(",")]
    o.bits = [int(x) for x in o.bits.split(",")]
    rest = [b for b in range(8, 20) if b not in o.bits and b != o.split]
    assert rest == list(range(rest[0], rest[0] + 5))
    o.tstride, o.wrapbit = 1 << rest[0], rest[0] + 5
    o.stamp = o.stamp or bool(o.diag)
    fx = lambda s: (" " + s.replace(",", " ")) if s else ""
    o.aux, o.qaux, o.oaux, o.paux, o.gaux = fx(o.aux), fx(o.qaux), fx(o.oaux), fx(o.paux), fx(o.gaux)
    o.baux, o.faux = fx(o.baux), fx(o.faux)
    open(o.o, "w").write(build(o))
```

```python
import argparse
import math
import struct

NAME = "standalone__gqa_softmax__sampling"

HEADER = """; Kernarg layout for this problem (48 bytes, ptrs only, base s[0:1]):
"""


class Asm:
    def __init__(self):
        self.lines = []

    def __call__(self, s):
        if isinstance(s, (list, tuple)):
            for x in s:
                self(x)
            return
        for ln in s.strip("\n").split("\n"):
            if ln.strip():
                self.lines.append(ln)

    def text(self):
        return "\n".join(self.lines) + "\n"


class LdsTracker:
    def __init__(self, a):
        self.a, self.issued, self.done = a, 0, 0

    def need(self, n):
        assert n <= self.issued
        if n > self.done:
            self.a(f"  s_waitcnt lgkmcnt({self.issued - n})")
            self.done = n

    def issue(self, line):
        if self.issued - self.done >= 15:
            self.need(self.issued - 11)
        self.a(line)
        self.issued += 1


def vr(a, n=1):
    return f"v{a}" if n == 1 else f"v[{a}:{a + n - 1}]"


def sr(a, n):
    return f"s[{a}:{a + n - 1}]"


def f32hex(x):
    return "0x%08x" % struct.unpack("<I", struct.pack("<f", x))[0]


VQ = 4
VO = 20
VS = 52
VF = 84
VP = 148
VAL = (212, 214, 213, 215, 0, 1, 2, 3)
VKA = 216
VVA = 220
VM = 228
VL = 229
VT = 230
VPL = 239
VML = 240
VRDY = 241
VLANE = 242
VHS = 243
VZ = 244
VCT = 245
VCB = 246
VCA = 247
VFL = 248
VBOX = 252
VG0 = 253
VAT = 254
VOUT = 255
NVGPR = 256
VDA = 4
VDB = 8
VDT = 24

SA = 4
S_BB = 8
SQ = 12
SW = 16
S_WAVE = 20
S_I = 21
S_OFFA = 22
S_OFFB = 23
S_DL = 24
S_RD = 25
S_C = 26
S_PAIR = 40
S_ARG = 28
S_HALF = 41
S_T = 42
S_TS = 48
SD = 60
S_HOOK = 64
S_BLK = 65
S_KEEP = 66
S_SEND = 67
S_MODE = 68
S_OUT = 69
S_SH = 70
S_CTL = 71
S_REP = 72
S_REPV = 73
S_WSUM = 75
S_DW = 76
S_ID = 77
S_LOC = 78
S_SLOT = 79
S_MLO = 80
S_MLP = 81
S_FLO = 82
S_FLP = 83
S_MSK = 84
S_NMSK = 85
NSGPR = 96

UNIT = 32768
NS = 3
LDS_P = UNIT * NS
LDS_MODE = LDS_P + 3 * 16384
LDS_WIN = LDS_MODE + 4
LDS_BYTES = LDS_MODE + 64
BIAS = 4096

WS_DUMP = 0x0
WS_DML = 0x400000
WS_BLK = 0x500000
WS_REP = 0x600000
WS_LOC = 0x700000
REP_STRIDE = 4352
WS_STAMP = 0xC00000
WS_SIZE = 0x1000000
SPIN = 0x40000


def stamp(a, o, idx, wait=False):
    if o.stamp:
        a(f"  s_memrealtime s[{S_TS + 2 * idx}:{S_TS + 2 * idx + 1}]")
        if wait:
            a("  s_waitcnt lgkmcnt(0)")


def lbarrier(a, o, slot=None):
    if not o.lstamp:
        a("  s_barrier")
        return
    a("""
  s_memtime s[88:89]
  s_barrier
  s_memtime s[90:91]
  s_waitcnt lgkmcnt(0)
  s_sub_u32 s88, s90, s88
""")
    if slot is not None:
        a(f"  s_mov_b32 s{S_TS + 2 + slot}, s88")
    else:
        a(f"  s_add_u32 s{S_TS + 2}, s{S_TS + 2}, s88")


def add_imm(a, reg, inc):
    a(f"  s_addk_i32 {reg}, {inc}" if -32768 <= inc < 32768 else f"  s_add_u32 {reg}, {reg}, {inc}")


def spread(x, bits):
    return sum(((x >> i) & 1) << b for i, b in enumerate(bits))


def masked_inc(a, off):
    a(f"  s_or_b32 s{off}, s{off}, s{S_NMSK}")
    a(f"  s_add_u32 s{off}, s{off}, 1")
    a(f"  s_and_b32 s{off}, s{off}, s{S_MSK}")


def unit_body(a, o, w, barrier_at, first=False, mid=None):
    for g in range(8):
        if mid is not None and g == 7:
            a(mid)
        for p in range(4):
            n = 4 * g + p
            if first and n == min(w, 31):
                loader_late_setup(a, o)
            if not first or n >= w:
                a(f"  s_waitcnt vmcnt({w - 1})")
            elif p == 0:
                a("  s_nop 0")
            a(f"  buffer_load_dwordx4 v{VDA + p}, {sr(SA, 4)}, s{S_OFFA} offen offset:{1024 * p}{o.aux} lds")
            if n == barrier_at:
                lbarrier(a, o)
        if o.rsel and g & 1:
            masked_inc(a, S_OFFA)
        else:
            nxt = spread(g + 1, o.bits[4:7]) if g < 7 else o.ustride
            add_imm(a, f"s{S_OFFA}", nxt - spread(g, o.bits[4:7]))
        a("  s_addk_i32 m0, 4096")


def dispatch(a, lo, hi):
    if lo == hi:
        a(f"  s_branch L_ld_v{lo}")
        return
    mid = (lo + hi + 1) // 2
    a(f"  s_cmp_ge_u32 s{S_T}, {mid}")
    if mid == hi:
        a(f"  s_cbranch_scc1 L_ld_v{mid}")
        dispatch(a, lo, mid - 1)
        return
    a(f"  s_cbranch_scc1 L_dsp_{mid}_{hi}")
    dispatch(a, lo, mid - 1)
    a(f"L_dsp_{mid}_{hi}:")
    dispatch(a, mid, hi)


def loader_late_setup(a, o):
    b = o.bits
    pconst = [spread(p, b[2:4]) - 1024 * p for p in range(4)]
    a(f"""
  s_add_u32 s{S_BB}, s{S_ARG + 4}, s{S_T}
  s_addc_u32 s{S_BB + 1}, s{S_ARG + 5}, s{S_T + 2}
  v_lshlrev_b32 v12, 1, v3
  v_xor_b32 v12, v2, v12
  v_lshl_add_u32 v{VDB}, v12, 4, v1
  v_xor_b32 v13, 8, v12
  v_lshl_add_u32 v{VDB + 1}, v13, 4, v1
  v_add_u32 v{VDB + 2}, {pconst[2]}, v{VDB}
  v_add_u32 v{VDB + 3}, {pconst[3]}, v{VDB + 1}
  v_add_u32 v{VDB + 1}, {pconst[1]}, v{VDB + 1}
  v_mov_b32 v12, {LDS_WIN}
  s_mov_b32 s{S_I}, 1
  s_mov_b32 s{SQ}, s{S_ARG + 6}
  s_mov_b32 s{SQ + 1}, s{S_ARG + 7}
  s_mov_b32 s{SQ + 2}, 0x200000
  s_mov_b32 s{SQ + 3}, 0x20000
  s_lshl_b32 s{S_KEEP}, s{S_PAIR}, 14
  s_lshl_b32 s{S_T + 3}, s{S_HALF}, 7
  s_or_b32 s{S_KEEP}, s{S_KEEP}, s{S_T + 3}
  v_lshlrev_b32 v14, 8, v0
  s_mov_b32 s{SW}, s{S_ARG + 10}
  s_mov_b32 s{SW + 1}, s{S_ARG + 11}
  s_mov_b32 s{SW + 2}, {WS_SIZE}
  s_mov_b32 s{SW + 3}, 0x20000
  s_lshl_b32 s{S_BLK}, s{S_PAIR}, 11
  s_add_u32 s{S_BLK}, s{S_BLK}, {WS_BLK}
  v_lshlrev_b32 v15, 5, v0
  v_and_b32 v18, 7, v0
  v_lshlrev_b32 v19, 1, v3
  v_xor_b32 v18, v18, v19
  v_lshl_add_u32 v18, v18, 4, s{S_T + 1}
  v_bfe_u32 v19, v0, 3, 1
  v_lshl_add_u32 v18, v19, {b[0]}, v18
  v_bfe_u32 v19, v0, 4, 1
  v_lshl_add_u32 v18, v19, {b[1]}, v18
  v_lshrrev_b32 v19, 5, v0
  v_lshl_add_u32 v18, v19, {b[2]}, v18
  v_add_u32 v{VDT + 4}, s{S_T + 3}, v18
""")
    for p in range(1, 4):
        a(f"  v_add_u32 v{VDT + 4 + p}, {spread(p, b[3:5]) - 1024 * p}, v{VDT + 4}")
    for p in range(4):
        a(f"  v_xor_b32 v{VDT + p}, 128, v{VDT + 4 + p}")
    if o.lstamp:
        a(f"  s_mov_b32 s{S_TS + 2}, 0")


def loader(a, o):
    wins, b = o.wins, o.bits
    multi = len(wins) > 1
    nfull = 32 - o.tu
    a(f"""
  s_setprio 3
  v_and_b32 v2, 15, v0
  v_lshrrev_b32 v3, 4, v0
  s_lshl_b32 s{S_T + 1}, s{S_HALF}, {o.split}
  s_addk_i32 s{S_T + 1}, {BIAS}
""")
    if b[1] == b[0] + 1:
        a(f"  v_lshl_add_u32 v1, v3, {b[0]}, s{S_T + 1}")
    else:
        a(f"""
  v_and_b32 v1, 1, v3
  v_lshl_add_u32 v1, v1, {b[0]}, s{S_T + 1}
  v_lshrrev_b32 v12, 5, v0
  v_lshl_add_u32 v1, v12, {b[1]}, v1
""")
    a("  v_xor_b32 v12, v2, v3")
    for p in range(4):
        c = spread(p, b[2:4]) - 1024 * p
        if p:
            a(f"  v_xor_b32 v13, {4 * p}, v12")
        a(f"  v_lshl_add_u32 v{VDA + p}, v{13 if p else 12}, 4, v1")
        if c:
            a(f"  v_add_u32 v{VDA + p}, {c}, v{VDA + p}")
    a(f"""
  s_mov_b32 s{SA + 2}, {0x100000 + BIAS}
  s_mov_b32 s{SA + 3}, 0x20000
  s_mov_b32 m0, 0
""")
    if o.rsel:
        assert b[6] == b[5] + 1
        mask = (3 << b[5]) | (15 * o.ustride)
        a(f"  s_mov_b32 s{S_MSK}, {hex(mask)}")
        a(f"  s_not_b32 s{S_NMSK}, s{S_MSK}")
        for k, sh in enumerate(o.rsel):
            a(f"  s_lshr_b32 s{S_OFFA if k == 0 else S_OFFB}, s{S_PAIR}, {sh}")
            if k:
                a(f"  s_add_u32 s{S_OFFA}, s{S_OFFA}, s{S_OFFB}")
        a(f"  s_and_b32 s{S_OFFA}, s{S_OFFA}, 3")
        a(f"  s_lshl_b32 s{S_OFFA}, s{S_OFFA}, {b[5]}")
    else:
        a(f"  s_mov_b32 s{S_OFFA}, 0")
    a(f"""
  s_mov_b32 s{S_OFFB}, s{S_OFFA}
  s_lshl_b32 s{S_T}, s{S_PAIR}, 20
  s_sub_u32 s{S_T}, s{S_T}, {BIAS}
  s_subb_u32 s{S_T + 2}, 0, 0
  s_waitcnt lgkmcnt(0)
  s_add_u32 s{SA}, s{S_ARG + 2}, s{S_T}
  s_addc_u32 s{SA + 1}, s{S_ARG + 3}, s{S_T + 2}
""")
    first = wins.index(o.winit)
    unit_body(a, o, o.winit, None, first=True)
    if o.nq == 1:
        a(f"  v_mov_b32 v13, {first}")
        a("  s_branch L_ld_swap")
    order = [first] + [i for i in range(len(wins)) if i != first]
    for vi in order:
        w = wins[vi]
        a(f"L_ld_v{vi}:")
        rd = "  ds_read_b32 v13, v12"
        early = w - 1 < 28
        unit_body(a, o, w, w - 1, mid=rd if multi and early else None)
        if multi and not early:
            a(rd)
        a(f"""
  s_cmp_ge_u32 m0, {UNIT * NS}
  s_cselect_b32 m0, 0, m0
  s_add_u32 s{S_I}, s{S_I}, 1
  s_and_b32 s{S_T}, s{S_I}, {o.run - 1}
  s_cbranch_scc0 L_ld_swap
  s_cmp_eq_u32 s{S_I}, {nfull}
  s_cbranch_scc1 L_ld_tail
""")
        if multi:
            a(f"""
  s_waitcnt lgkmcnt(0)
  v_readfirstlane_b32 s{S_T}, v13
  s_cmp_eq_u32 s{S_T}, {vi}
  s_cbranch_scc1 L_ld_v{vi}
  s_branch L_ld_dispatch
""")
        else:
            a(f"  s_branch L_ld_v{vi}")
    a(f"""
L_ld_swap:
  s_mov_b64 s[{S_T + 4}:{S_T + 5}], s[{SA}:{SA + 1}]
  s_mov_b64 s[{SA}:{SA + 1}], s[{S_BB}:{S_BB + 1}]
  s_mov_b64 s[{S_BB}:{S_BB + 1}], s[{S_T + 4}:{S_T + 5}]
  s_mov_b32 s{S_T}, s{S_OFFA}
  s_mov_b32 s{S_OFFA}, s{S_OFFB}
  s_mov_b32 s{S_OFFB}, s{S_T}
""")
    for p in range(4):
        a(f"  v_swap_b32 v{VDA + p}, v{VDB + p}")
    if nfull % o.nq == 0:
        a(f"  s_cmp_eq_u32 s{S_I}, {nfull}")
        a("  s_cbranch_scc1 L_ld_tail")
    if multi:
        a(f"""
  s_waitcnt lgkmcnt(0)
  v_readfirstlane_b32 s{S_T}, v13
L_ld_dispatch:
""")
    dispatch(a, 0, len(wins) - 1)
    w = o.wtail
    npre = 2
    total = 32 * o.tu
    preread = f"""
  buffer_load_dword v16, v14, {sr(SQ, 4)}, s{S_KEEP} offen{o.paux}
  buffer_load_dword v17, v15, {sr(SW, 4)}, s{S_BLK} offen{o.paux}
"""
    assert o.prepos <= w - 1
    marks = [0] + list(range(16, total, 16)) + [total - 8, total]
    a(f"""
L_ld_tail:
  s_mov_b32 s{S_OFFB}, s{S_OFFA}
""")
    slot = lambda k: max(1, k + 6 - len(marks))
    for g in range(total // 4):
        off = S_OFFA if g < total // 8 else S_OFFB
        for p in range(4):
            n = 4 * g + p
            if n == total - o.prepos:
                a(preread)
            a(f"  s_waitcnt vmcnt({w - 1 + (npre if n >= total - o.prepos else 0)})")
            a(f"  buffer_load_dwordx4 v{VDT + p + (0 if off == S_OFFA else 4)}, {sr(SA, 4)}, s{off} offen offset:{1024 * p}{o.aux} lds")
            if n - (w - 1) in marks:
                lbarrier(a, o, slot(marks.index(n - (w - 1))))
        if (g + 1) % (total // 8) and o.rsel:
            masked_inc(a, off)
        elif (g + 1) % (total // 8):
            nxt = spread((g & 3) + 1, b[5:7]) if g & 3 < 3 else o.ustride
            add_imm(a, f"s{off}", nxt - spread(g & 3, b[5:7]))
        if g + 1 < total // 4:
            a("  s_addk_i32 m0, 4096")
    if o.prepos == 0:
        a(preread)
    for k, m in enumerate(marks):
        if m + w - 1 >= total:
            left = total - m
            a(f"  s_waitcnt vmcnt({left + (npre if left >= o.prepos else 0)})")
            lbarrier(a, o, slot(k))
    if o.lstamp:
        a(f"  s_lshl_b32 s{S_T}, s2, 5")
        a(f"  s_add_u32 s{S_T}, s{S_T}, {WS_STAMP + 32768}")
        for k in range(8):
            a(f"  v_mov_b32 v{32 + k}, s{S_TS + k}")
        a("  v_mov_b32 v40, 0")
        a(f"  buffer_store_dwordx4 v[32:35], v40, {sr(SW, 4)}, s{S_T} offen")
        a(f"  buffer_store_dwordx4 v[36:39], v40, {sr(SW, 4)}, s{S_T} offen offset:16")
    a("  s_endpgm")


def mfma(d, x, y, c):
    return f"  v_mfma_f32_16x16x32_bf16 {vr(d, 4)}, {vr(x, 4)}, {vr(y, 4)}, {'0' if c is None else vr(c, 4)}"


def scale_o(lo, n, al):
    return [f"  v_pk_mul_f32 {vr(r, 2)}, {vr(r, 2)}, {vr(al, 2)} op_sel_hi:[1,0]" for r in range(lo, lo + n, 2)]


def fma_o(lo, n, al, add):
    return [f"  v_pk_fma_f32 {vr(lo + r, 2)}, {vr(lo + r, 2)}, {vr(al, 2)}, {vr(add + r, 2)} op_sel_hi:[1,0,1]" for r in range(0, n, 2)]


def xlane_ops(op, reg, t0, t1):
    return [
        f"  v_mov_b32 v{t0}, v{reg}",
        f"  v_mov_b32 v{t1}, v{reg}",
        "  s_nop 1",
        f"  v_permlane32_swap_b32 v{t0}, v{t1}",
        f"  {op} v{t0}, v{t0}, v{t1}",
        f"  v_mov_b32 v{t1}, v{t0}",
        "  s_nop 1",
        f"  v_permlane16_swap_b32 v{t0}, v{t1}",
        f"  {op} v{reg}, v{t0}, v{t1}",
    ]


def shift_p():
    return [f"  v_mov_b64 {vr(VP + r, 2)}, {vr(VP + 16 + r, 2)}" for r in range(0, 48, 2)]


def shift_al():
    return [f"  v_mov_b32 v{VAL[k]}, v{VAL[k + 1]}" for k in range(7)]


def copy16(dst, src):
    return [f"  v_mov_b64 {vr(dst + r, 2)}, {vr(src + r, 2)}" for r in range(0, 16, 2)]


def next_slot():
    return [
        f"  s_add_u32 s{S_RD}, s{S_RD}, 1",
        f"  s_cmp_eq_u32 s{S_RD}, {NS}",
        f"  s_cselect_b32 s{S_RD}, 0, s{S_RD}",
        f"  s_mov_b32 s{S_DL}, {UNIT}",
        f"  s_cmov_b32 s{S_DL}, {-(NS - 1) * UNIT}",
    ]


def adv(r):
    return f"  v_add_u32 v{r}, s{S_DL}, v{r}"


def weight_ops(m2, l2, wa, wb):
    return [
        f"  v_max_f32 v{wb + 1}, v{VM}, v{m2}",
        f"  v_sub_f32 v{wa}, v{VM}, v{wb + 1}",
        f"  v_sub_f32 v{wb}, v{m2}, v{wb + 1}",
        f"  v_exp_f32 v{wa}, v{wa}",
        f"  v_exp_f32 v{wb}, v{wb}",
        f"  v_mul_f32 v{wa + 1}, v{VL}, v{wa}",
        f"  v_mul_f32 v{wb + 1}, v{l2}, v{wb}",
        f"  v_add_f32 v{wa + 1}, v{wa + 1}, v{wb + 1}",
        f"  v_rcp_f32 v{wa + 1}, v{wa + 1}",
        "  s_nop 0",
        f"  v_mul_f32 v{wa}, v{wa}, v{wa + 1}",
        f"  v_mul_f32 v{wb}, v{wb}, v{wa + 1}",
    ]


def unpack_ops(pk, tmp):
    v = []
    for h in range(8):
        v.append(f"  v_lshlrev_b32 v{tmp + 2 * h}, 16, v{pk + h}")
        v.append(f"  v_and_b32 v{tmp + 2 * h + 1}, 0xffff0000, v{pk + h}")
    return v


def merge_half(a, o, own, w_own, w_oth, tmp, dst, soff):
    a(scale_o(tmp, 16, w_oth))
    for m in range(2):
        a(fma_o(own + 8 * m, 8, w_own, tmp + 8 * m))
        d = dst + 4 * m
        for h in (0, 2, 1, 3):
            a(f"  v_cvt_pk_bf16_f32 v{d + h}, v{own + 8 * m + 2 * h}, v{own + 8 * m + 2 * h + 1}")
        a(f"  v_permlane16_swap_b32 v{d}, v{d + 2}")
        a("  s_nop 0")
        a(f"  v_permlane16_swap_b32 v{d + 1}, v{d + 3}")
        a(f"  buffer_store_dwordx4 {vr(d, 4)}, v{VOUT}, {sr(SQ, 4)}, s{soff} offen offset:{64 * m}{o.oaux}")


def prologue(a, o):
    c = (128 ** -0.5) * math.log2(math.e)
    multi = len(o.wins) > 1
    a(f"""
L_compute:
  s_sub_u32 s{S_WAVE}, s{S_WAVE}, 1
  v_and_b32 v{VLANE}, 63, v0
  v_and_b32 v2, 15, v0
  v_bfe_u32 v3, v0, 4, 2
  s_mov_b32 s{SQ + 2}, 0x200000
  s_mov_b32 s{SQ + 3}, 0x20000
  s_mov_b32 s{SW + 2}, {WS_SIZE}
  s_mov_b32 s{SW + 3}, 0x20000
  s_mov_b32 s{SD + 2}, 256
  s_mov_b32 s{SD + 3}, 0x20000
  s_lshl_b32 s{S_T}, s{S_PAIR}, 2
  s_add_u32 s{S_T}, s{S_T}, s{S_WAVE}
  s_lshl_b32 s{S_OUT}, s{S_T}, 12
  s_lshl_b32 s{S_BLK}, s{S_T}, 9
  s_add_u32 s{S_BLK}, s{S_BLK}, {WS_BLK}
  s_lshl_b32 s{S_T}, s{S_HALF}, 7
  s_add_u32 s{S_KEEP}, s{S_OUT}, s{S_T}
  s_xor_b32 s{S_SEND}, s{S_KEEP}, 128
  v_lshlrev_b32 v{VT}, 8, v2
  v_lshl_add_u32 v{VBOX}, v3, 4, v{VT}
  v_mov_b32 v{VZ}, 0
  v_min_u32 v{VCA}, 32, v{VLANE}
  v_lshlrev_b32 v{VCA}, 2, v{VCA}
  s_getreg_b32 s{S_ID}, hwreg(HW_REG_XCC_ID, 0, 4)
  s_mul_i32 s{S_LOC}, s{S_ID}, {REP_STRIDE}
  s_add_u32 s{S_LOC}, s{S_LOC}, {WS_LOC}
  s_or_b32 s{S_ID}, s{S_ID}, 16
  s_lshr_b32 s{S_SLOT}, s2, 3
  s_mul_i32 s{S_REPV}, s{S_SLOT}, {REP_STRIDE}
  s_add_u32 s{S_REPV}, s{S_REPV}, {WS_REP}
  s_mul_i32 s{S_REP}, s{S_SLOT}, {o.gstep}
  s_add_u32 s{S_REP}, s{S_REP}, {o.gfirst}
  s_cmp_le_u32 s{S_REP}, {o.glast}
  s_cselect_b32 s{S_REP}, s{S_REP}, 64
  s_cmp_eq_u32 s{S_WAVE}, 1
  s_cselect_b32 s{S_CTL}, {1 if multi else 0}, 0
  s_waitcnt lgkmcnt(0)
  s_mov_b32 s{SQ}, s{S_ARG}
  s_mov_b32 s{SQ + 1}, s{S_ARG + 1}
  s_mov_b32 s{SW}, s{S_ARG + 10}
  s_mov_b32 s{SW + 1}, s{S_ARG + 11}
  s_mov_b32 s{SD}, s{S_ARG + 8}
  s_mov_b32 s{SD + 1}, s{S_ARG + 9}
""")
    for s in range(4):
        a(f"  buffer_load_dwordx4 {vr(VQ + 4 * s, 4)}, v{VBOX}, {sr(SQ, 4)}, s{S_OUT} offen offset:{64 * s}{o.qaux}")
    a(f"""
  buffer_load_dwordx4 {vr(VFL, 4)}, v{VZ}, {sr(SW, 4)}, s{S_BLK} offen offset:256 sc1
  s_cmp_eq_u32 s{S_CTL}, 0
  s_cbranch_scc1 L_nobase
  buffer_load_dword v{VCB}, v{VCA}, {sr(SW, 4)}, s{S_LOC} offen sc1
  buffer_load_dword v{VG0}, v{VZ}, {sr(SW, 4)}, s{S_REPV} offen nt
L_nobase:
  v_mov_b32 v{VT + 3}, {LDS_WIN}
  v_mov_b32 v{VT + 4}, {o.wins.index(o.winit)}
  ds_write_b32 v{VT + 3}, v{VT + 4}
  s_and_b32 s{S_SH}, s{S_PAIR}, 3
  s_lshl_b32 s{S_SH}, s{S_SH}, 3
  s_and_b32 s{S_DW}, s{S_PAIR}, 0x7c
  v_xor_b32 v{VT + 1}, v2, v3
""")
    for s in range(4):
        a(f"  v_xor_b32 v{VT + 3}, {4 * s}, v{VT + 1}")
        a(f"  v_lshl_add_u32 v{VKA + s}, v{VT + 3}, 4, v{VT}")
    a(f"""
  s_lshl_b32 s{S_T}, s{S_HALF}, 3
  s_xor_b32 s{S_T}, s{S_T}, 8
  v_bfe_u32 v{VT}, v0, 2, 4
  v_and_b32 v{VT + 1}, 7, v{VT}
  v_lshlrev_b32 v{VT + 1}, 1, v{VT + 1}
  v_xor_b32 v{VT + 1}, s{S_T}, v{VT + 1}
  v_lshlrev_b32 v{VT}, 8, v{VT}
  v_and_b32 v{VT + 3}, 3, v0
  v_lshl_add_u32 v{VT}, v{VT + 3}, 3, v{VT}
""")
    for j in range(8):
        a(f"  v_xor_b32 v{VT + 3}, {2 * j}, v{VT + 1}")
        a(f"  v_lshl_add_u32 v{VVA + j}, v{VT + 3}, 4, v{VT}")
    for r in range(0, 32, 2):
        a(f"  v_mov_b64 {vr(VO + r, 2)}, 0")
    a(f"""
  v_mov_b32 v{VM}, 0xff800000
  v_mov_b32 v{VL}, 0
  v_mov_b32 v{VCT}, 0
  v_lshlrev_b32 v{VML}, 3, v2
  s_lshl_b32 s{S_T}, s{S_WAVE}, 12
  s_add_u32 s{S_T}, s{S_T}, {LDS_P}
  v_lshl_add_u32 v{VPL}, v{VLANE}, 4, s{S_T}
  s_mov_b32 s{S_C}, {f32hex(c)}
  s_mov_b32 s{S_C + 1}, s{S_C}
  s_mov_b32 s{S_RD}, 0
  s_mov_b32 s{S_I}, 0
  s_cmp_eq_u32 s{S_WAVE}, 0
  s_cselect_b32 s{S_HOOK}, {o.hello}, {o.sent}
  s_mov_b32 s{SQ}, s{S_ARG + 6}
  s_mov_b32 s{SQ + 1}, s{S_ARG + 7}
  s_lshl_b32 s{S_T}, s{S_HALF}, 7
  s_add_u32 s{S_MLO}, s{S_BLK}, s{S_T}
  s_xor_b32 s{S_MLP}, s{S_MLO}, 128
  s_lshl_b32 s{S_T}, s{S_HALF}, 2
  s_add_u32 s{S_FLO}, s{S_BLK}, s{S_T}
  s_xor_b32 s{S_FLP}, s{S_FLO}, 4
""")
    if o.stamp:
        a(f"  s_mov_b32 s{S_WSUM}, 0")
    a("  s_waitcnt lgkmcnt(0)")


def k_body(a, o):
    t0, t1, mx = VT, VT + 1, VT + 2
    al = VAL[7]
    pnew = VF
    lds = LdsTracker(a)
    reads = [f"  ds_read_b128 {vr(VF + 4 * (n % 16), 4)}, v{VKA + n % 4} offset:{4096 * (n // 4)}" for n in range(32)]
    fill = shift_al() + next_slot()
    for n in range(o.nprek):
        lds.issue(reads[n])
        if n >= 1:
            for _ in range(2):
                if fill:
                    a(fill.pop(0))
    a(fill)
    pend = reads[o.nprek:]
    mxs = [f"  v_max3_f32 v{mx}, v{VS}, v{VS + 1}, v{VS + 2}"]
    mxs += [f"  v_max3_f32 v{mx}, v{mx}, v{VS + r}, v{VS + r + 1}" for r in range(3, 31, 2)]
    k = 0
    pads = [adv(VVA + j) for j in range(8)]
    for n in range(32):
        t, s = divmod(n, 4)
        if s == 0:
            lds.need(n + 4)
        a(mfma(VS + 4 * t, VF + 4 * (n % 16), VQ + 4 * s, None if s == 0 else VS + 4 * t))
        if pend:
            lds.issue(pend.pop(0))
        elif pads:
            a(pads.pop(0))
        if t >= 2 and s in (1, 3) and 2 * k + 2 < 4 * (t - 1):
            a(mxs[k]); k += 1
    a(pads)
    a([adv(VKA + s) for s in range(4)])
    while 2 * k + 2 < 28:
        a(mxs[k]); k += 1
    a("  s_nop 2")
    a(mxs[k:])
    a(f"""
  v_max_f32 v{t0}, v{mx}, v{VS + 31}
  v_max_f32 v{t1}, v{mx}, v{VS + 31}
  s_nop 1
  v_permlane32_swap_b32 v{t0}, v{t1}
  v_max_f32 v{mx}, v{t0}, v{t1}
  v_max_f32 v{t1}, v{t0}, v{t1}
  s_nop 1
  v_permlane16_swap_b32 v{mx}, v{t1}
  v_max_f32 v{mx}, v{mx}, v{t1}
  v_mul_f32 v{mx}, s{S_C}, v{mx}
  v_max_f32 v{mx}, v{mx}, v{VM}
  v_sub_f32 v{al}, v{VM}, v{mx}
  v_mov_b32 v{VM}, v{mx}
  v_exp_f32 v{al}, v{al}
""")
    for r in range(0, 32, 2):
        a(f"  v_pk_fma_f32 {vr(VS + r, 2)}, {vr(VS + r, 2)}, s[{S_C}:{S_C + 1}], {vr(mx, 2)} op_sel_hi:[1,1,0] neg_lo:[0,0,1] neg_hi:[0,0,1]")
    for r in range(32):
        a(f"  v_exp_f32 v{VS + r}, v{VS + r}")
    for r in range(16):
        a(f"  v_cvt_pk_bf16_f32 v{pnew + r}, v{VS + 2 * r}, v{VS + 2 * r + 1}")
    for step in (16, 8, 4, 2):
        for r in range(0, step, 2):
            a(f"  v_pk_add_f32 {vr(VS + r, 2)}, {vr(VS + r, 2)}, {vr(VS + r + step, 2)}")
    a(f"  v_add_f32 v{VS}, v{VS}, v{VS + 1}")
    a(f"  v_fma_f32 v{VL}, v{VL}, v{al}, v{VS}")
    a(f"""
  s_and_b32 s{S_T}, s{S_I}, 7
  s_add_u32 s{S_I}, s{S_I}, 1
  s_cmp_ge_u32 s{S_T}, 4
  s_cbranch_scc1 L_park2
""")
    a(shift_p() + copy16(VP + 48, pnew))
    a(f"""
  s_branch L_loop
L_park2:
  s_cmp_eq_u32 s{S_T}, 7
  s_cbranch_scc1 L_park3
""")
    for k in range(4):
        a(f"  ds_write_b128 v{VPL}, {vr(pnew + 4 * k, 4)} offset:{1024 * k}")
    a(f"""
  v_add_u32 v{VPL}, 16384, v{VPL}
  s_waitcnt lgkmcnt(0)
  s_branch L_loop
L_park3:
  v_subrev_u32 v{VPL}, {3 * 16384}, v{VPL}
""")
    a(copy16(VS, pnew))
    a("  s_branch L_loop")


def pv_block(a, items, fill=(), head=(), valu=(), per=0):
    lds = LdsTracker(a)
    reads = [f"  ds_read_b64_tr_b16 {vr(VF + 4 * (n % 16) + 2 * t, 2)}, v{ad} offset:{off + t * step}"
             for n, (ad, off, step, _, _) in enumerate(items) for t in range(2)]
    fill, valu = list(fill), list(valu)
    for n, r in enumerate(reads[:12]):
        lds.issue(r)
        if n >= 2:
            for _ in range(2):
                if fill:
                    a(fill.pop(0))
    a(fill)
    a(head)
    pend = reads[12:]
    for n, (_, _, _, acc, p) in enumerate(items):
        if len(items) <= 16 or n % 2 == 0:
            lds.need(min(len(reads), 2 * (n + 1) if len(items) <= 16 else 2 * (n + 2)))
        a(mfma(acc, VF + 4 * (n % 16), p, acc))
        for _ in range(2):
            if pend:
                lds.issue(pend.pop(0))
        for _ in range(per):
            if valu:
                a(valu.pop(0))
    a(valu)


def v_body(a, o):
    items = [(VVA + j, 8192 * kb, 4096, VO + 4 * j, VP + 4 * kb) for kb in range(4) for j in range(8)]
    pv_block(a, items, fill=scale_o(VO, 32, VAL[0]) + next_slot())
    a([adv(VKA + s) for s in range(4)] + [adv(VVA + j) for j in range(8)])
    a(shift_al() + shift_p())
    a(f"""
  s_and_b32 s{S_T}, s{S_I}, 7
  s_add_u32 s{S_I}, s{S_I}, 1
  s_cmp_gt_u32 s{S_T}, 3
  s_cbranch_scc1 L_refilled
  s_cmp_eq_u32 s{S_T}, 3
  s_cbranch_scc1 L_refill2
""")
    for k in range(4):
        a(f"  ds_read_b128 {vr(VP + 48 + 4 * k, 4)}, v{VPL} offset:{1024 * k}")
    a(f"""
  v_add_u32 v{VPL}, 16384, v{VPL}
  s_waitcnt lgkmcnt(0)
  s_branch L_loop
L_refill2:
  v_subrev_u32 v{VPL}, {3 * 16384}, v{VPL}
""")
    a(copy16(VP + 48, VS))
    a("L_refilled:")


def cycle_probe(a, o, tag):
    if o.estamp == 4:
        a(f"""
  s_memtime s[90:91]
  s_waitcnt lgkmcnt(0)
  s_sub_u32 s{S_TS + (6 if tag == "k" else 8)}, s90, s88
""")


def mainloop(a, o):
    a(f"""
L_loop:
  s_cmp_lg_u32 s{S_CTL}, 0
  s_barrier
  s_waitcnt vmcnt(0)
  s_cbranch_scc1 L_ctl
L_ctl_ret:
  s_cmp_eq_u32 s{S_I}, s{S_HOOK}
  s_cbranch_scc1 L_hook
L_hook_ret:
""")
    if o.stamp and not o.estamp:
        for idx, it in ((3, o.st[0]), (4, o.st[1]), (5, o.st[2])):
            a(f"  s_cmp_lg_u32 s{S_I}, {it}")
            a(f"  s_cbranch_scc1 L_nostamp{idx}")
            stamp(a, o, idx, True)
            a(f"L_nostamp{idx}:")
    if o.estamp == 4:
        a("  s_memtime s[88:89]")
        a("  s_waitcnt lgkmcnt(0)")
    a(f"""
  s_bitcmp1_b32 s{S_I}, {o.run.bit_length() - 1}
  s_cbranch_scc1 L_vbody
""")
    k_body(a, o)
    a("L_vbody:")
    v_body(a, o)
    a(f"""
  s_cmp_lt_u32 s{S_I}, {32 - o.tu}
  s_cbranch_scc1 L_loop
""")


def epilogue(a, o):
    m2, l2, mm = VT, VT + 1, VT + 2
    wa, wb = VT + 4, VT + 6
    PK, B2, tmp, dst = VS, VS + 8, VP + 32, VS + 24
    snd = VP + 48

    def fetch(ml, pk):
        return f"""
  buffer_load_dwordx2 {vr(ml, 2)}, v{VML}, {sr(SW, 4)}, s{S_MLP} offen sc1
  buffer_load_dwordx4 {vr(pk, 4)}, v{VBOX}, {sr(SQ, 4)}, s{S_KEEP} offen sc1
  buffer_load_dwordx4 {vr(pk + 4, 4)}, v{VBOX}, {sr(SQ, 4)}, s{S_KEEP} offen offset:64 sc1
"""
    check = [
        f"  v_max3_u32 v{mm}, v{m2}, v{l2}, v{PK}",
        f"  v_max3_u32 v{mm + 1}, v{PK + 1}, v{PK + 2}, v{PK + 3}",
        f"  v_max3_u32 v{mm}, v{mm}, v{PK + 4}, v{PK + 5}",
        f"  v_max3_u32 v{mm + 1}, v{mm + 1}, v{PK + 6}, v{PK + 7}",
        f"  v_max_u32 v{mm}, v{mm}, v{mm + 1}",
        f"  v_cmp_eq_u32 vcc, -1, v{mm}",
    ]
    ready = f"""
  v_cmp_ne_u32 vcc, v{VFL + 1}, v{VRDY}
  s_cbranch_vccz L_notready
L_ready:
{fetch(m2, PK)}
L_nofetch:
"""

    def part(q, u, acc, kbs):
        return [(VKA + jj, 16384 * q + 4096 * kb, 2048, acc + 4 * jj, VP + 16 * u + 4 * kb) for kb in kbs for jj in range(4)]

    a(f"""
  v_bfe_u32 v{VT + 4}, v{VLANE}, 3, 2
  v_lshlrev_b32 v{VT + 4}, 1, v{VT + 4}
  v_lshrrev_b32 v{VT + 3}, 2, v{VLANE}
  v_lshlrev_b32 v{VT + 3}, 7, v{VT + 3}
  v_and_b32 v{VT + 5}, 3, v{VLANE}
  v_lshl_add_u32 v{VT + 3}, v{VT + 5}, 3, v{VT + 3}
""")
    base = ((32 - o.tu) % NS) * UNIT
    if base:
        a(f"  v_add_u32 v{VT + 3}, {base}, v{VT + 3}")
    for jj in range(4):
        a(f"  v_xor_b32 v{VT + 5}, {2 * jj}, v{VT + 4}")
        a(f"  v_lshl_add_u32 v{VKA + jj}, v{VT + 5}, 4, v{VT + 3}")
    a(scale_o(VO, 32, VAL[0]))
    a(xlane_ops("v_add_f32", VL, VT, VT + 1))
    a(f"""
  v_min_u32 v{VM}, -2, v{VM}
  v_min_u32 v{VL}, -2, v{VL}
  buffer_store_dwordx2 {vr(VM, 2)}, v{VML}, {sr(SW, 4)}, s{S_MLO} offen
  v_lshlrev_b32 v{VOUT}, 5, v{VML}
  v_bfe_u32 v{VT + 3}, v{VLANE}, 4, 1
  v_lshl_add_u32 v{VOUT}, v{VT + 3}, 5, v{VOUT}
  v_lshrrev_b32 v{VT + 3}, 5, v{VLANE}
  v_lshl_add_u32 v{VOUT}, v{VT + 3}, 4, v{VOUT}
  s_mov_b32 s{S_I}, {SPIN}
  s_cmp_lg_u32 s{S_MODE}, 0
""")
    for u in range(o.tu):
        a("  s_barrier")
        pv_block(a, part(u, u, VO, range(4)))
        if u + 1 < o.tu:
            a("  s_nop 2")
            a(scale_o(VO, 16, VAL[u + 1]))
    a("  s_nop 1")
    a("  s_cbranch_scc1 L_nosend")
    for m in range(2):
        for r in range(4):
            a(f"  v_cvt_pk_bf16_f32 v{snd + 4 * m + r}, v{VO + 8 * m + 2 * r}, v{VO + 8 * m + 2 * r + 1}")
        for r in range(4):
            a(f"  v_min_u32 v{snd + 4 * m + r}, -2, v{snd + 4 * m + r}")
        a(f"  buffer_store_dwordx4 {vr(snd + 4 * m, 4)}, v{VBOX}, {sr(SQ, 4)}, s{S_SEND} offen offset:{64 * m}")
    a("L_nosend:")
    if o.estamp == 1:
        stamp(a, o, 3, True)
    for u in range(o.tu - 1):
        a("  s_barrier")
        pv_block(a, part(o.tu + u, u, VO + 16, range(4)))
        a("  s_nop 2")
        a(scale_o(VO + 16, 16, VAL[u + 1]))
    last = o.tu - 1
    if o.fetch != "d":
        a(ready)
    a("  s_barrier")
    pv_block(a, part(o.tu + last, last, VO + 16, (0, 1)))
    if o.fetch == "d":
        a(ready)
    if o.fetch == "cd":
        a(fetch(B2 + 8, B2))
    if o.estamp == 1:
        stamp(a, o, 4, True)
    a(f"  s_cmp_lg_u32 s{S_MODE}, 0")
    a("  s_barrier")
    stamp(a, o, 1, True)
    prep = weight_ops(m2, l2, wa, wb) + unpack_ops(PK, tmp)
    wait = f"  s_waitcnt vmcnt({3 if o.fetch == 'cd' else 0})"
    pv_block(a, part(o.tu + last, last, VO + 16, (2, 3)), head=[wait] + check, valu=prep, per=4)
    a("""
  s_cbranch_scc1 L_generic
  s_cbranch_vccnz L_retry
L_merge:
""")
    if o.estamp == 1:
        stamp(a, o, 5)
    merge_half(a, o, VO + 16, wa, wb, tmp, dst, S_KEEP)
    a("L_done:")
    if o.stamp:
        a("  s_waitcnt vmcnt(0)")
        stamp(a, o, 2, True)
        a(f"""
  s_lshl_b32 s{S_T}, s2, 2
  s_add_u32 s{S_T}, s{S_T}, s{S_WAVE}
  s_lshl_b32 s{S_T}, s{S_T}, 5
  s_add_u32 s{S_T}, s{S_T}, {WS_STAMP}
  v_mov_b32 v4, s{S_TS}
  v_mov_b32 v5, s{S_TS + 2}
  v_mov_b32 v6, s{S_TS + 4}
  s_and_b32 s{S_T + 1}, s{S_ID}, 15
  s_lshl_b32 s{S_T + 2}, s{S_MODE}, 4
  s_or_b32 s{S_T + 1}, s{S_T + 1}, s{S_T + 2}
  v_mov_b32 v7, s{S_T + 1}
  buffer_store_dwordx4 v[4:7], v{VZ}, {sr(SW, 4)}, s{S_T} offen
  v_mov_b32 v12, s{S_TS + 6}
  v_mov_b32 v13, s{S_TS + 8}
  v_mov_b32 v14, s{S_TS + 10}
  v_mov_b32 v15, s{S_WSUM}
  buffer_store_dwordx4 v[12:15], v{VZ}, {sr(SW, 4)}, s{S_T} offen offset:16
""")
    a("""
L_end:
  s_endpgm
L_retry:
""")
    if o.fetch == "cd":
        a("  s_waitcnt vmcnt(0)")
        a(f"  v_mov_b64 {vr(m2, 2)}, {vr(B2 + 8, 2)}")
        for r in range(0, 8, 2):
            a(f"  v_mov_b64 {vr(PK + r, 2)}, {vr(B2 + r, 2)}")
        a("  s_branch L_recheck")
    a("L_refetch:")
    a(fetch(m2, PK))
    a(f"""
  s_sub_u32 s{S_I}, s{S_I}, 1
  s_cbranch_scc1 L_end
  s_waitcnt vmcnt(0)
L_recheck:
""")
    a(check)
    a("  s_cbranch_vccnz L_refetch")
    a(prep)
    a(f"""
  s_branch L_merge
L_notready:
  s_cmp_lg_u32 s{S_MODE}, 0
  s_cbranch_scc1 L_nofetch
  buffer_load_dword v{VRDY}, v{VZ}, {sr(SW, 4)}, s{S_FLP} offen offset:256 sc1
  buffer_load_dword v{VT + 3}, v{VZ}, {sr(SD, 4)}, s{S_DW} offen sc1
  s_sub_u32 s{S_I}, s{S_I}, 1
  s_cbranch_scc1 L_end
  s_waitcnt vmcnt(0)
  v_cmp_ne_u32 vcc, v{VFL + 1}, v{VRDY}
  s_cbranch_vccnz L_ready
  v_bfe_u32 v{VT + 3}, v{VT + 3}, s{S_SH}, 1
  v_cmp_ne_u32 vcc, 0, v{VT + 3}
  s_cbranch_vccz L_notready
  s_mov_b32 s{S_MODE}, 2
  s_branch L_nofetch
""")
    a(f"""
L_generic:
  s_waitcnt vmcnt(0)
  s_lshl_b32 s{S_T}, s{S_PAIR}, 2
  s_add_u32 s{S_T}, s{S_T}, s{S_WAVE}
  s_lshl_b32 s{S_T + 1}, s{S_T}, 13
  s_add_u32 s{S_T + 3}, s{S_T + 1}, 4096
  s_lshl_b32 s{S_T + 2}, s{S_T}, 9
  s_add_u32 s{S_T + 2}, s{S_T + 2}, {WS_DML}
  s_lshl_b32 s{S_T + 4}, 2, s{S_SH}
  v_lshlrev_b32 v{VT + 8}, 4, v{VLANE}
  v_lshlrev_b32 v{VT + 3}, 3, v{VLANE}
  s_cmp_eq_u32 s{S_MODE}, 1
  s_cbranch_scc0 L_second
  buffer_store_dwordx2 {vr(VM, 2)}, v{VT + 3}, {sr(SW, 4)}, s{S_T + 2} offen sc1
""")
    for j in range(8):
        so = S_T + 1 if j < 4 else S_T + 3
        a(f"  buffer_store_dwordx4 {vr(VO + 4 * j, 4)}, v{VT + 8}, {sr(SW, 4)}, s{so} offen offset:{1024 * (j & 3)} sc1")
    a(f"""
  s_waitcnt vmcnt(0)
  s_barrier
  s_cmp_eq_u32 s{S_WAVE}, 0
  s_cbranch_scc0 L_done
  v_mov_b32 v{VT}, s{S_T + 4}
  s_mov_b64 exec, 1
  buffer_atomic_or v{VT}, v{VZ}, {sr(SD, 4)}, s{S_DW} offen sc1
  s_mov_b64 exec, -1
  s_branch L_done
L_second:
  buffer_load_dword v{VT}, v{VZ}, {sr(SD, 4)}, s{S_DW} offen sc1
  s_sub_u32 s{S_I}, s{S_I}, 1
  s_cbranch_scc1 L_end
  s_waitcnt vmcnt(0)
  v_and_b32 v{VT}, s{S_T + 4}, v{VT}
  v_cmp_ne_u32 vcc, 0, v{VT}
  s_cbranch_vccz L_second
  buffer_load_dwordx2 {vr(m2, 2)}, v{VT + 3}, {sr(SW, 4)}, s{S_T + 2} offen sc1
""")
    for j in range(8):
        so = S_T + 1 if j < 4 else S_T + 3
        a(f"  buffer_load_dwordx4 {vr(VF + 4 * j, 4)}, v{VT + 8}, {sr(SW, 4)}, s{so} offen offset:{1024 * (j & 3)} sc1")
    a("  s_waitcnt vmcnt(0)")
    a(weight_ops(m2, l2, wa, wb))
    for r in range(8):
        a(f"  v_cvt_pk_bf16_f32 v{PK + r}, v{VF + 2 * r}, v{VF + 2 * r + 1}")
        a(f"  v_cvt_pk_bf16_f32 v{B2 + r}, v{VO + 2 * r}, v{VO + 2 * r + 1}")
    a(unpack_ops(PK, tmp))
    merge_half(a, o, VO + 16, wa, wb, tmp, dst, S_KEEP)
    a(unpack_ops(B2, tmp))
    merge_half(a, o, VF + 16, wb, wa, tmp, snd, S_SEND)
    a("  s_branch L_done")


def hooks(a, o):
    b = S_T
    a(f"""
L_hook:
  s_cmp_ge_u32 s{S_I}, {o.sent}
  s_cbranch_scc1 L_hook4
  s_mov_b64 exec, 1
  s_cmp_eq_u32 s{S_I}, {o.hello}
  s_cbranch_scc0 L_hook2
""")
    if o.force == "late":
        a(f"""
  s_cmp_eq_u32 s{S_HALF}, 0
  s_cbranch_scc1 L_nodelay
  s_lshl_b32 s{b + 1}, 1, s{S_SH}
  s_mov_b32 s{b + 2}, {SPIN}
L_delay:
  buffer_load_dword v{VT}, v{VZ}, {sr(SD, 4)}, s{S_DW} offen sc1
  s_sub_u32 s{b + 2}, s{b + 2}, 1
  s_cbranch_scc1 L_nodelay
  s_waitcnt vmcnt(0)
  v_and_b32 v{VT}, s{b + 1}, v{VT}
  v_cmp_ne_u32 vcc, 0, v{VT}
  s_cbranch_vccz L_delay
L_nodelay:
""")
    a(f"""
  s_cmp_eq_u32 s{S_HALF}, 0
  s_cbranch_scc1 L_hook_noswap
  v_swap_b32 v{VFL + 2}, v{VFL + 3}
L_hook_noswap:
  v_add_u32 v{VFL + 2}, s{S_ID}, v{VFL + 2}
  buffer_store_dword v{VFL + 2}, v{VZ}, {sr(SW, 4)}, s{S_FLO} offen offset:264
  s_mov_b32 s{S_HOOK}, {o.check}
  s_branch L_hook_out
L_hook2:
  s_cmp_eq_u32 s{S_I}, {o.check}
  s_cbranch_scc0 L_hook3
  buffer_load_dword v{VHS}, v{VZ}, {sr(SW, 4)}, s{S_FLP} offen offset:264 sc1
  s_mov_b32 s{S_HOOK}, {o.check + 1}
  s_branch L_hook_out
L_hook3:
  v_sub_u32 v{VHS}, v{VHS}, v{VFL + 3}
  v_cmp_eq_u32 vcc, s{S_ID}, v{VHS}
  v_mov_b32 v{VHS}, 0
  s_cbranch_vccnz L_hook_mode
  s_lshl_b32 s{b}, 1, s{S_SH}
  v_mov_b32 v{VHS}, s{b}
  buffer_atomic_or v{VHS}, v{VZ}, {sr(SD, 4)}, s{S_DW} offen sc0 sc1
  s_waitcnt vmcnt(0)
  v_bfe_u32 v{VHS}, v{VHS}, s{S_SH}, 1
  v_add_u32 v{VHS}, 1, v{VHS}
L_hook_mode:
  v_mov_b32 v{VT}, {LDS_MODE}
  ds_write_b32 v{VT}, v{VHS}
  s_mov_b32 s{S_HOOK}, {o.sent}
  s_waitcnt lgkmcnt(0)
L_hook_out:
  s_mov_b64 exec, -1
  s_branch L_hook_ret
L_hook4:
  s_cmp_eq_u32 s{S_I}, {o.sent}
  s_cbranch_scc0 L_hook5
  v_mov_b32 v{VT}, {LDS_MODE}
  ds_read_b32 v{VHS}, v{VT}
  s_cmp_eq_u32 s{S_HALF}, 0
  s_cbranch_scc1 L_hook_noswap2
  v_swap_b32 v{VFL}, v{VFL + 1}
L_hook_noswap2:
  v_add_u32 v{VFL}, 1, v{VFL}
  v_mov_b32 v{VRDY}, v{VFL + 1}
  v_mov_b64 {vr(VT + 4, 2)}, -1
  v_mov_b64 {vr(VT + 6, 2)}, -1
  s_waitcnt lgkmcnt(0)
  v_readfirstlane_b32 s{S_MODE}, v{VHS}
  s_cmp_lg_u32 s{S_MODE}, 0
  s_cbranch_scc1 L_hook_ret
  buffer_store_dwordx4 {vr(VT + 4, 4)}, v{VBOX}, {sr(SQ, 4)}, s{S_SEND} offen
  buffer_store_dwordx4 {vr(VT + 4, 4)}, v{VBOX}, {sr(SQ, 4)}, s{S_SEND} offen offset:64
  buffer_store_dwordx2 {vr(VT + 4, 2)}, v{VML}, {sr(SW, 4)}, s{S_MLO} offen
  s_mov_b32 s{S_HOOK}, {o.sent + 1}
  s_branch L_hook_ret
L_hook5:
  s_cmp_eq_u32 s{S_I}, {o.sent + 1}
  s_cbranch_scc0 L_hook6
  buffer_store_dword v{VFL}, v{VZ}, {sr(SW, 4)}, s{S_FLO} offen offset:256
  s_mov_b32 s{S_HOOK}, {o.rdy}
  s_branch L_hook_ret
L_hook6:
  buffer_load_dword v{VRDY}, v{VZ}, {sr(SW, 4)}, s{S_FLP} offen offset:256 sc1
  s_branch L_hook_ret
""")


def controller(a, o):
    nw = len(o.wins)
    x, e, g = S_T, S_T + 1, S_T + 2
    t = VT
    a(f"""
L_ctl:
  v_sub_u32 v{t}, v{VCT}, v{VCB}
  s_add_u32 s{x}, s{S_I}, 1
  v_add_u32 v{t + 1}, s{x}, v{VCB}
""")
    if o.lfirst:
        a(f"  s_cmp_lt_u32 s{S_I}, {o.lfirst}")
        a("  s_cbranch_scc1 L_ctl_nopub")
    a(f"""
  s_lshl_b64 exec, 1, s{S_SLOT}
  buffer_store_dword v{t + 1}, v{VCA}, {sr(SW, 4)}, s{S_LOC} offen
L_ctl_nopub:
  s_sub_u32 s{x}, s{S_I}, s{S_REP}
  s_cmp_gt_u32 s{x}, 1
  s_cbranch_scc1 L_ctl_nolead
  s_lshl_b64 exec, 1, 32
  s_cmp_eq_u32 s{x}, 0
  s_cbranch_scc0 L_ctl_rank
  v_mov_b32 v{VAT}, 1
  buffer_atomic_add v{VAT}, v{VZ}, {sr(SW, 4)}, s{S_REPV} offen sc0 sc1
  s_branch L_ctl_nolead
L_ctl_rank:
  v_sub_u32 v{VAT}, v{VAT}, v{VG0}
  v_lshl_add_u32 v{VAT}, v{VAT}, 1, v{VCB}
  v_subrev_u32 v{VAT}, 7, v{VAT}
  buffer_store_dword v{VAT}, v{VCA}, {sr(SW, 4)}, s{S_LOC} offen
L_ctl_nolead:
  s_mov_b64 exec, -1
  buffer_load_dword v{VCT}, v{VCA}, {sr(SW, 4)}, s{S_LOC} offen sc1
  s_cmp_lt_u32 s{S_I}, {o.cstart}
  s_cbranch_scc1 L_ctl_ret
  v_cmp_ne_u32 vcc, 0, v{t}
  v_readlane_b32 s{g}, v{t}, 32
  v_add_u32_dpp v{t}, v{t}, v{t} row_shr:1 row_mask:0xf bank_mask:0xf bound_ctrl:1
  s_nop 1
  v_add_u32_dpp v{t}, v{t}, v{t} row_shr:2 row_mask:0xf bank_mask:0xf bound_ctrl:1
  s_nop 1
  v_add_u32_dpp v{t}, v{t}, v{t} row_shr:4 row_mask:0xf bank_mask:0xf bound_ctrl:1
  s_nop 1
  v_add_u32_dpp v{t}, v{t}, v{t} row_shr:8 row_mask:0xf bank_mask:0xf bound_ctrl:1
  s_cmp_eq_u32 vcc_lo, -1
  s_cbranch_scc0 L_ctl_end
  v_readlane_b32 s{x}, v{t}, 15
  v_readlane_b32 s{e}, v{t}, 31
  s_max_i32 s{g}, s{g}, -7
  s_min_i32 s{g}, s{g}, 7
  s_add_u32 s{x}, s{x}, s{e}
  s_lshl_b32 s{e}, s{S_I}, 5
  s_sub_i32 s{e}, s{x}, s{e}
  s_add_i32 s{e}, s{e}, {32 - o.bias}
  s_max_i32 s{e}, s{e}, -128
  s_min_i32 s{e}, s{e}, 128
  s_mul_i32 s{e}, s{e}, {o.kp}
  s_cmp_lt_u32 s{S_I}, {o.ilate}
  s_movk_i32 s{x}, {o.kpg}
  s_cmovk_i32 s{x}, {o.kpg1 or o.kpg}
  s_mul_i32 s{g}, s{g}, s{x}
  s_add_i32 s{e}, s{e}, s{g}
  s_add_i32 s{e}, s{e}, {int(o.w0 * 512 + 256)}
  s_ashr_i32 s{e}, s{e}, 9
  s_max_i32 s{e}, s{e}, 0
  s_min_i32 s{e}, s{e}, {nw - 1}
""")
    if o.stamp:
        a(f"  s_add_u32 s{S_WSUM}, s{S_WSUM}, s{e}")
    a(f"""
  v_mov_b32 v{t}, s{e}
  v_mov_b32 v{t + 2}, {LDS_WIN}
  ds_write_b32 v{t + 2}, v{t}
  s_waitcnt lgkmcnt(0)
L_ctl_end:
  s_cmp_lt_u32 s{S_I}, {o.cend}
  s_cselect_b32 s{S_CTL}, s{S_CTL}, 0
  s_branch L_ctl_ret
""")


def build(o):
    a = Asm()
    a(HEADER)
    label = f"{NAME}_kernel"
    a(f"; @launch grid=(256,1,1) block=(320,1,1) lds={LDS_BYTES}")
    a('.amdgcn_target "amdgcn-amd-amdhsa--gfx950"')
    a(f"""
.text
.globl {label}
.p2align 8
.type {label},@function
{label}:
  s_load_dwordx8 s[{S_ARG}:{S_ARG + 7}], s[0:1], 0
  s_load_dwordx4 s[{S_ARG + 8}:{S_ARG + 11}], s[0:1], 32
  s_cmp_ge_u32 s2, 256
  s_cbranch_scc1 L_end
""")
    if o.skew:
        a(f"""
  s_memrealtime s[{S_TS}:{S_TS + 1}]
  s_getreg_b32 s{S_T}, hwreg(HW_REG_XCC_ID, 0, 4)
  s_lshl_b32 s{S_T}, s{S_T}, 2
  s_add_u32 s{S_T}, s{S_T}, 0xb00000
  s_waitcnt lgkmcnt(0)
  s_load_dword s{S_T + 1}, s[{S_ARG + 10}:{S_ARG + 11}], s{S_T}
  s_waitcnt lgkmcnt(0)
  s_min_u32 s{S_T + 1}, s{S_T + 1}, 1000
  s_add_u32 s{S_T + 1}, s{S_T + 1}, s{S_TS}
L_skew:
  s_memrealtime s[{S_T + 2}:{S_T + 3}]
  s_waitcnt lgkmcnt(0)
  s_sub_u32 s{S_T + 2}, s{S_T + 2}, s{S_T + 1}
  s_cmp_lt_i32 s{S_T + 2}, 0
  s_cbranch_scc1 L_skew
""")
    stamp(a, o, 0)
    a(f"  v_readfirstlane_b32 s{S_WAVE}, v0")
    if o.map == 0:
        a(f"""
  s_and_b32 s{S_T}, s2, 7
  s_lshr_b32 s{S_T + 1}, s2, 4
  s_lshl_b32 s{S_T + 1}, s{S_T + 1}, 3
  s_or_b32 s{S_PAIR}, s{S_T}, s{S_T + 1}
  s_bfe_u32 s{S_HALF}, s2, 0x10003
""")
    else:
        a(f"""
  s_lshr_b32 s{S_PAIR}, s2, 1
  s_and_b32 s{S_HALF}, s2, 1
""")
    a(f"""
  s_lshr_b32 s{S_WAVE}, s{S_WAVE}, 6
  s_cmp_eq_u32 s{S_WAVE}, 0
""")
    if o.cpf:
        a(f"""
  s_cbranch_scc1 L_loader
  s_cmp_lg_u32 s{S_WAVE}, 4
  s_cbranch_scc1 L_compute
  s_getpc_b64 s[{S_T + 2}:{S_T + 3}]
L_pc:
  s_lshr_b32 s{S_T}, s2, 3
  s_lshl_b32 s{S_T}, s{S_T}, 9
  v_and_b32 v1, 3, v0
  v_lshl_add_u32 v1, v1, 7, s{S_T}
  v_min_u32 v1, L_code_end-L_pc-4, v1
  v_mov_b32 v3, s{S_T + 3}
  v_add_co_u32 v2, vcc, s{S_T + 2}, v1
  s_nop 1
  v_addc_co_u32 v3, vcc, 0, v3, vcc
  global_load_dword v{VOUT}, v[2:3], off
  s_branch L_compute
L_loader:
""")
    else:
        a("  s_cbranch_scc0 L_compute")
    loader(a, o)
    prologue(a, o)
    mainloop(a, o)
    epilogue(a, o)
    hooks(a, o)
    controller(a, o)
    a(f"""
L_code_end:
.section .rodata,"a"
.p2align 6
.amdhsa_kernel {label}
  .amdhsa_next_free_vgpr {NVGPR}
  .amdhsa_next_free_sgpr {NSGPR}
  .amdhsa_accum_offset {NVGPR}
  .amdhsa_group_segment_fixed_size 0
  .amdhsa_kernarg_size 48
  .amdhsa_user_sgpr_count 2
  .amdhsa_user_sgpr_kernarg_segment_ptr 1
  .amdhsa_system_sgpr_workgroup_id_x 1
.end_amdhsa_kernel
""")
    return a.text()


if __name__ == "__main__":
    ap = argparse.ArgumentParser()
    ap.add_argument("-o", default="cdna_kernels/" + NAME + ".s")
    ap.add_argument("--nq", type=int, default=8)
    ap.add_argument("--run", type=int, default=0)
    ap.add_argument("--tu", type=int, default=2)
    ap.add_argument("--wins", default="17,18,19,20,21,22,23,24,26,28")
    ap.add_argument("--winit", type=int, default=21)
    ap.add_argument("--wtail", type=int, default=22)
    ap.add_argument("--w0", type=float, default=4.5)
    ap.add_argument("--kp", type=int, default=48)
    ap.add_argument("--kpg", type=int, default=200)
    ap.add_argument("--bias", type=int, default=16)
    ap.add_argument("--kpg1", type=int, default=0)
    ap.add_argument("--ilate", type=int, default=7)
    ap.add_argument("--lfirst", type=int, default=0)
    ap.add_argument("--gfirst", type=int, default=1)
    ap.add_argument("--gstep", type=int, default=1)
    ap.add_argument("--glast", type=int, default=25)
    ap.add_argument("--cstart", type=int, default=2)
    ap.add_argument("--cend", type=int, default=-1)
    ap.add_argument("--hello", type=int, default=1)
    ap.add_argument("--check", type=int, default=19)
    ap.add_argument("--sent", type=int, default=24)
    ap.add_argument("--rdy", type=int, default=28)
    ap.add_argument("--prepos", type=int, default=0)
    ap.add_argument("--fetch", default="cd")
    ap.add_argument("--nprek", type=int, default=8)
    ap.add_argument("--cpf", type=int, default=1)
    ap.add_argument("--bits", default="12,13,14,8,9,10,11")
    ap.add_argument("--split", type=int, default=15)
    ap.add_argument("--rsel", default="")
    ap.add_argument("--aux", default="nt")
    ap.add_argument("--qaux", default="nt")
    ap.add_argument("--oaux", default="")
    ap.add_argument("--paux", default="sc1")
    ap.add_argument("--stamp", action="store_true")
    ap.add_argument("--skew", action="store_true")
    ap.add_argument("--lstamp", action="store_true")
    ap.add_argument("--st", default="0,8,16")
    ap.add_argument("--estamp", type=int, default=0)
    ap.add_argument("--map", type=int, default=0)
    ap.add_argument("--force", default="")
    o = ap.parse_args()
    o.wins = [int(x) for x in o.wins.split(",")]
    o.st = [int(x) for x in o.st.split(",")]
    o.bits = [int(x) for x in o.bits.split(",")]
    rest = [b for b in range(8, 20) if b not in o.bits and b != o.split]
    assert rest == list(range(rest[0], rest[0] + 4))
    o.ustride = 1 << rest[0]
    o.rsel = [int(x) for x in o.rsel.split(",")] if o.rsel else []
    o.run = o.run or o.nq
    assert o.tu <= o.nq and o.rdy <= 30 - o.tu
    if o.cend < 0:
        o.cend = 29 - o.tu
    fx = lambda s: (" " + s.replace(",", " ")) if s else ""
    o.aux, o.qaux, o.oaux, o.paux = fx(o.aux), fx(o.qaux), fx(o.oaux), fx(o.paux)
    open(o.o, "w").write(build(o))
```

```python
import argparse
import math
import struct

NAME = "standalone__gqa_softmax__sampling"

HEADER = """; Kernarg layout for this problem (48 bytes, ptrs only, base s[0:1]):
"""


class Asm:
    def __init__(self):
        self.lines = []

    def __call__(self, s):
        if isinstance(s, (list, tuple)):
            for x in s:
                self(x)
            return
        for ln in s.strip("\n").split("\n"):
            if ln.strip():
                self.lines.append(ln)

    def text(self):
        return "\n".join(self.lines) + "\n"


class LdsTracker:
    def __init__(self, a):
        self.a, self.issued, self.done = a, 0, 0

    def need(self, n):
        assert n <= self.issued
        if n > self.done:
            self.a(f"  s_waitcnt lgkmcnt({self.issued - n})")
            self.done = n

    def issue(self, line):
        if self.issued - self.done >= 15:
            self.need(self.issued - 11)
        self.a(line)
        self.issued += 1


def vr(a, n=1):
    return f"v{a}" if n == 1 else f"v[{a}:{a + n - 1}]"


def sr(a, n):
    return f"s[{a}:{a + n - 1}]"


def f32hex(x):
    return "0x%08x" % struct.unpack("<I", struct.pack("<f", x))[0]


VQ = 4
VO = 20
VS = 52
VF = 84
VP = 148
VAL = (212, 214, 213, 215, 0, 1, 2, 3)
VKA = 216
VVA = 220
VM = 228
VL = 229
VT = 230
VPL = 239
VML = 240
VRDY = 241
VLANE = 242
VHS = 243
VZ = 244
VCT = 245
VCB = 246
VCA = 247
VFL = 248
VBOX = 252
VG0 = 253
VAT = 254
VOUT = 255
NVGPR = 256
VDA = 4
VDB = 8
VDT = 24

SA = 4
S_BB = 8
SQ = 12
SW = 16
S_WAVE = 20
S_I = 21
S_OFFA = 22
S_OFFB = 23
S_DL = 24
S_RD = 25
S_C = 26
S_PAIR = 40
S_ARG = 28
S_HALF = 41
S_T = 42
S_TS = 48
SD = 60
S_HOOK = 64
S_BLK = 65
S_KEEP = 66
S_SEND = 67
S_MODE = 68
S_OUT = 69
S_SH = 70
S_CTL = 71
S_REP = 72
S_REPV = 73
S_WSUM = 75
S_DW = 76
S_ID = 77
S_LOC = 78
S_SLOT = 79
S_MLO = 80
S_MLP = 81
S_FLO = 82
S_FLP = 83
S_MSK = 84
S_NMSK = 85
NSGPR = 96

UNIT = 32768
NS = 3
LDS_P = UNIT * NS
LDS_MODE = LDS_P + 3 * 16384
LDS_WIN = LDS_MODE + 4
LDS_BYTES = LDS_MODE + 64
BIAS = 4096

WS_DUMP = 0x0
WS_DML = 0x400000
WS_BLK = 0x500000
WS_REP = 0x600000
WS_LOC = 0x700000
REP_STRIDE = 4352
WS_STAMP = 0xC00000
WS_SIZE = 0x1000000
SPIN = 0x40000


def stamp(a, o, idx, wait=False):
    if o.stamp:
        a(f"  s_memrealtime s[{S_TS + 2 * idx}:{S_TS + 2 * idx + 1}]")
        if wait:
            a("  s_waitcnt lgkmcnt(0)")


def lbarrier(a, o, slot=None):
    if not o.lstamp:
        a("  s_barrier")
        return
    a("""
  s_memtime s[88:89]
  s_barrier
  s_memtime s[90:91]
  s_waitcnt lgkmcnt(0)
  s_sub_u32 s88, s90, s88
""")
    if slot is not None:
        a(f"  s_mov_b32 s{S_TS + 2 + slot}, s88")
    else:
        a(f"  s_add_u32 s{S_TS + 2}, s{S_TS + 2}, s88")


def sstamp(a, o, k):
    if o.sstamp:
        a(f"  s_memrealtime s[{86 + 2 * k}:{87 + 2 * k}]")


def add_imm(a, reg, inc):
    a(f"  s_addk_i32 {reg}, {inc}" if -32768 <= inc < 32768 else f"  s_add_u32 {reg}, {reg}, {inc}")


def spread(x, bits):
    return sum(((x >> i) & 1) << b for i, b in enumerate(bits))


def masked_inc(a, off):
    a(f"  s_or_b32 s{off}, s{off}, s{S_NMSK}")
    a(f"  s_add_u32 s{off}, s{off}, 1")
    a(f"  s_and_b32 s{off}, s{off}, s{S_MSK}")


def unit_body(a, o, w, barrier_at, first=False, mid=None):
    for g in range(8):
        if mid is not None and g == 7:
            a(mid)
        for p in range(4):
            n = 4 * g + p
            if first and n == min(w, 31):
                sstamp(a, o, 1)
                loader_late_setup(a, o)
                sstamp(a, o, 2)
            if not first or n >= w:
                a(f"  s_waitcnt vmcnt({w - 1})")
                if first and n == w:
                    sstamp(a, o, 3)
            elif p == 0:
                a("  s_nop 0")
            a(f"  buffer_load_dwordx4 v{VDA + p}, {sr(SA, 4)}, s{S_OFFA} offen offset:{1024 * p}{o.aux} lds")
            if n == barrier_at:
                lbarrier(a, o)
        if o.rsel and g & 1:
            masked_inc(a, S_OFFA)
        else:
            nxt = spread(g + 1, o.bits[4:7]) if g < 7 else o.ustride
            add_imm(a, f"s{S_OFFA}", nxt - spread(g, o.bits[4:7]))
        a("  s_addk_i32 m0, 4096")


def dispatch(a, lo, hi):
    if lo == hi:
        a(f"  s_branch L_ld_v{lo}")
        return
    mid = (lo + hi + 1) // 2
    a(f"  s_cmp_ge_u32 s{S_T}, {mid}")
    if mid == hi:
        a(f"  s_cbranch_scc1 L_ld_v{mid}")
        dispatch(a, lo, mid - 1)
        return
    a(f"  s_cbranch_scc1 L_dsp_{mid}_{hi}")
    dispatch(a, lo, mid - 1)
    a(f"L_dsp_{mid}_{hi}:")
    dispatch(a, mid, hi)


def loader_late_setup(a, o):
    b = o.bits
    pconst = [spread(p, b[2:4]) - 1024 * p for p in range(4)]
    a(f"""
  s_add_u32 s{S_BB}, s{S_ARG + 4}, s{S_T}
  s_addc_u32 s{S_BB + 1}, s{S_ARG + 5}, s{S_T + 2}
  v_lshlrev_b32 v12, 1, v3
  v_xor_b32 v12, v2, v12
  v_lshl_add_u32 v{VDB}, v12, 4, v1
  v_xor_b32 v13, 8, v12
  v_lshl_add_u32 v{VDB + 1}, v13, 4, v1
  v_add_u32 v{VDB + 2}, {pconst[2]}, v{VDB}
  v_add_u32 v{VDB + 3}, {pconst[3]}, v{VDB + 1}
  v_add_u32 v{VDB + 1}, {pconst[1]}, v{VDB + 1}
  v_mov_b32 v12, {LDS_WIN}
  s_mov_b32 s{S_I}, 1
  s_mov_b32 s{SQ}, s{S_ARG + 6}
  s_mov_b32 s{SQ + 1}, s{S_ARG + 7}
  s_mov_b32 s{SQ + 2}, 0x200000
  s_mov_b32 s{SQ + 3}, 0x20000
  s_lshl_b32 s{S_KEEP}, s{S_PAIR}, 14
  s_lshl_b32 s{S_T + 3}, s{S_HALF}, 7
  s_or_b32 s{S_KEEP}, s{S_KEEP}, s{S_T + 3}
  v_lshlrev_b32 v14, 8, v0
  s_mov_b32 s{SW}, s{S_ARG + 10}
  s_mov_b32 s{SW + 1}, s{S_ARG + 11}
  s_mov_b32 s{SW + 2}, {WS_SIZE}
  s_mov_b32 s{SW + 3}, 0x20000
  s_lshl_b32 s{S_BLK}, s{S_PAIR}, 11
  s_add_u32 s{S_BLK}, s{S_BLK}, {WS_BLK}
  v_lshlrev_b32 v15, 5, v0
  v_and_b32 v18, 7, v0
  v_lshlrev_b32 v19, 1, v3
  v_xor_b32 v18, v18, v19
  v_lshl_add_u32 v18, v18, 4, s{S_T + 1}
  v_bfe_u32 v19, v0, 3, 1
  v_lshl_add_u32 v18, v19, {b[0]}, v18
  v_bfe_u32 v19, v0, 4, 1
  v_lshl_add_u32 v18, v19, {b[1]}, v18
  v_lshrrev_b32 v19, 5, v0
  v_lshl_add_u32 v18, v19, {b[2]}, v18
  v_add_u32 v{VDT + 4}, s{S_T + 3}, v18
""")
    for p in range(1, 4):
        a(f"  v_add_u32 v{VDT + 4 + p}, {spread(p, b[3:5]) - 1024 * p}, v{VDT + 4}")
    for p in range(4):
        a(f"  v_xor_b32 v{VDT + p}, 128, v{VDT + 4 + p}")
    if o.lstamp:
        a(f"  s_mov_b32 s{S_TS + 2}, 0")


def loader(a, o):
    wins, b = o.wins, o.bits
    multi = len(wins) > 1
    nfull = 32 - o.tu
    a(f"""
  s_setprio 3
  v_and_b32 v2, 15, v0
  v_lshrrev_b32 v3, 4, v0
  s_lshl_b32 s{S_T + 1}, s{S_HALF}, {o.split}
  s_addk_i32 s{S_T + 1}, {BIAS}
""")
    if b[1] == b[0] + 1:
        a(f"  v_lshl_add_u32 v1, v3, {b[0]}, s{S_T + 1}")
    else:
        a(f"""
  v_and_b32 v1, 1, v3
  v_lshl_add_u32 v1, v1, {b[0]}, s{S_T + 1}
  v_lshrrev_b32 v12, 5, v0
  v_lshl_add_u32 v1, v12, {b[1]}, v1
""")
    a("  v_xor_b32 v12, v2, v3")
    for p in range(4):
        c = spread(p, b[2:4]) - 1024 * p
        if p:
            a(f"  v_xor_b32 v13, {4 * p}, v12")
        a(f"  v_lshl_add_u32 v{VDA + p}, v{13 if p else 12}, 4, v1")
        if c:
            a(f"  v_add_u32 v{VDA + p}, {c}, v{VDA + p}")
    a(f"""
  s_mov_b32 s{SA + 2}, {0x100000 + BIAS}
  s_mov_b32 s{SA + 3}, 0x20000
  s_mov_b32 m0, 0
""")
    if o.rsel:
        assert b[6] == b[5] + 1
        mask = (3 << b[5]) | (15 * o.ustride)
        a(f"  s_mov_b32 s{S_MSK}, {hex(mask)}")
        a(f"  s_not_b32 s{S_NMSK}, s{S_MSK}")
        for k, sh in enumerate(o.rsel):
            a(f"  s_lshr_b32 s{S_OFFA if k == 0 else S_OFFB}, s{S_PAIR}, {sh}")
            if k:
                a(f"  s_add_u32 s{S_OFFA}, s{S_OFFA}, s{S_OFFB}")
        a(f"  s_and_b32 s{S_OFFA}, s{S_OFFA}, 3")
        a(f"  s_lshl_b32 s{S_OFFA}, s{S_OFFA}, {b[5]}")
    else:
        a(f"  s_mov_b32 s{S_OFFA}, 0")
    a(f"""
  s_mov_b32 s{S_OFFB}, s{S_OFFA}
  s_lshl_b32 s{S_T}, s{S_PAIR}, 20
  s_sub_u32 s{S_T}, s{S_T}, {BIAS}
  s_subb_u32 s{S_T + 2}, 0, 0
  s_waitcnt lgkmcnt(0)
  s_add_u32 s{SA}, s{S_ARG + 2}, s{S_T}
  s_addc_u32 s{SA + 1}, s{S_ARG + 3}, s{S_T + 2}
""")
    first = wins.index(o.winit)
    sstamp(a, o, 0)
    unit_body(a, o, o.winit, None, first=True)
    sstamp(a, o, 4)
    if o.nq == 1:
        a(f"  v_mov_b32 v13, {first}")
        a("  s_branch L_ld_swap")
    order = [first] + [i for i in range(len(wins)) if i != first]
    for vi in order:
        w = wins[vi]
        a(f"L_ld_v{vi}:")
        rd = "  ds_read_b32 v13, v12"
        early = w - 1 < 28
        unit_body(a, o, w, w - 1, mid=rd if multi and early else None)
        if multi and not early:
            a(rd)
        a(f"""
  s_cmp_ge_u32 m0, {UNIT * NS}
  s_cselect_b32 m0, 0, m0
  s_add_u32 s{S_I}, s{S_I}, 1
  s_and_b32 s{S_T}, s{S_I}, {o.run - 1}
  s_cbranch_scc0 L_ld_swap
  s_cmp_eq_u32 s{S_I}, {nfull}
  s_cbranch_scc1 L_ld_tail
""")
        if multi:
            a(f"""
  s_waitcnt lgkmcnt(0)
  v_readfirstlane_b32 s{S_T}, v13
  s_cmp_eq_u32 s{S_T}, {vi}
  s_cbranch_scc1 L_ld_v{vi}
  s_branch L_ld_dispatch
""")
        else:
            a(f"  s_branch L_ld_v{vi}")
    a(f"""
L_ld_swap:
  s_mov_b64 s[{S_T + 4}:{S_T + 5}], s[{SA}:{SA + 1}]
  s_mov_b64 s[{SA}:{SA + 1}], s[{S_BB}:{S_BB + 1}]
  s_mov_b64 s[{S_BB}:{S_BB + 1}], s[{S_T + 4}:{S_T + 5}]
  s_mov_b32 s{S_T}, s{S_OFFA}
  s_mov_b32 s{S_OFFA}, s{S_OFFB}
  s_mov_b32 s{S_OFFB}, s{S_T}
""")
    for p in range(4):
        a(f"  v_swap_b32 v{VDA + p}, v{VDB + p}")
    if nfull % o.nq == 0:
        a(f"  s_cmp_eq_u32 s{S_I}, {nfull}")
        a("  s_cbranch_scc1 L_ld_tail")
    if multi:
        a(f"""
  s_waitcnt lgkmcnt(0)
  v_readfirstlane_b32 s{S_T}, v13
L_ld_dispatch:
""")
    dispatch(a, 0, len(wins) - 1)
    w = o.wtail
    npre = 2
    total = 32 * o.tu
    preread = f"""
  buffer_load_dword v16, v14, {sr(SQ, 4)}, s{S_KEEP} offen{o.paux}
  buffer_load_dword v17, v15, {sr(SW, 4)}, s{S_BLK} offen{o.paux}
"""
    assert o.prepos <= w - 1
    marks = [0] + list(range(16, total, 16)) + [total - 8, total]
    a(f"""
L_ld_tail:
  s_mov_b32 s{S_OFFB}, s{S_OFFA}
""")
    slot = lambda k: max(1, k + 6 - len(marks))
    for g in range(total // 4):
        off = S_OFFA if g < total // 8 else S_OFFB
        for p in range(4):
            n = 4 * g + p
            if n == total - o.prepos:
                a(preread)
            a(f"  s_waitcnt vmcnt({w - 1 + (npre if n >= total - o.prepos else 0)})")
            a(f"  buffer_load_dwordx4 v{VDT + p + (0 if off == S_OFFA else 4)}, {sr(SA, 4)}, s{off} offen offset:{1024 * p}{o.aux} lds")
            if n - (w - 1) in marks:
                lbarrier(a, o, slot(marks.index(n - (w - 1))))
        if (g + 1) % (total // 8) and o.rsel:
            masked_inc(a, off)
        elif (g + 1) % (total // 8):
            nxt = spread((g & 3) + 1, b[5:7]) if g & 3 < 3 else o.ustride
            add_imm(a, f"s{off}", nxt - spread(g & 3, b[5:7]))
        if g + 1 < total // 4:
            a("  s_addk_i32 m0, 4096")
    if o.prepos == 0:
        a(preread)
    for k, m in enumerate(marks):
        if m + w - 1 >= total:
            left = total - m
            a(f"  s_waitcnt vmcnt({left + (npre if left >= o.prepos else 0)})")
            lbarrier(a, o, slot(k))
    if o.sstamp:
        for k in range(5):
            a(f"  s_mov_b32 s{S_TS + 2 + k}, s{86 + 2 * k}")
    if o.lstamp or o.sstamp:
        a(f"  s_lshl_b32 s{S_T}, s2, 5")
        a(f"  s_add_u32 s{S_T}, s{S_T}, {WS_STAMP + 32768}")
        for k in range(8):
            a(f"  v_mov_b32 v{32 + k}, s{S_TS + k}")
        a("  v_mov_b32 v40, 0")
        a(f"  buffer_store_dwordx4 v[32:35], v40, {sr(SW, 4)}, s{S_T} offen")
        a(f"  buffer_store_dwordx4 v[36:39], v40, {sr(SW, 4)}, s{S_T} offen offset:16")
    a("  s_endpgm")


def mfma(d, x, y, c):
    return f"  v_mfma_f32_16x16x32_bf16 {vr(d, 4)}, {vr(x, 4)}, {vr(y, 4)}, {'0' if c is None else vr(c, 4)}"


def scale_o(lo, n, al):
    return [f"  v_pk_mul_f32 {vr(r, 2)}, {vr(r, 2)}, {vr(al, 2)} op_sel_hi:[1,0]" for r in range(lo, lo + n, 2)]


def fma_o(lo, n, al, add):
    return [f"  v_pk_fma_f32 {vr(lo + r, 2)}, {vr(lo + r, 2)}, {vr(al, 2)}, {vr(add + r, 2)} op_sel_hi:[1,0,1]" for r in range(0, n, 2)]


def xlane_ops(op, reg, t0, t1):
    return [
        f"  v_mov_b32 v{t0}, v{reg}",
        f"  v_mov_b32 v{t1}, v{reg}",
        "  s_nop 1",
        f"  v_permlane32_swap_b32 v{t0}, v{t1}",
        f"  {op} v{t0}, v{t0}, v{t1}",
        f"  v_mov_b32 v{t1}, v{t0}",
        "  s_nop 1",
        f"  v_permlane16_swap_b32 v{t0}, v{t1}",
        f"  {op} v{reg}, v{t0}, v{t1}",
    ]


def shift_p():
    return [f"  v_mov_b64 {vr(VP + r, 2)}, {vr(VP + 16 + r, 2)}" for r in range(0, 48, 2)]


def shift_al():
    return [f"  v_mov_b32 v{VAL[k]}, v{VAL[k + 1]}" for k in range(7)]


def copy16(dst, src):
    return [f"  v_mov_b64 {vr(dst + r, 2)}, {vr(src + r, 2)}" for r in range(0, 16, 2)]


def next_slot():
    return [
        f"  s_add_u32 s{S_RD}, s{S_RD}, 1",
        f"  s_cmp_eq_u32 s{S_RD}, {NS}",
        f"  s_cselect_b32 s{S_RD}, 0, s{S_RD}",
        f"  s_mov_b32 s{S_DL}, {UNIT}",
        f"  s_cmov_b32 s{S_DL}, {-(NS - 1) * UNIT}",
    ]


def adv(r):
    return f"  v_add_u32 v{r}, s{S_DL}, v{r}"


def weight_ops(m2, l2, wa, wb):
    return [
        f"  v_max_f32 v{wb + 1}, v{VM}, v{m2}",
        f"  v_sub_f32 v{wa}, v{VM}, v{wb + 1}",
        f"  v_sub_f32 v{wb}, v{m2}, v{wb + 1}",
        f"  v_exp_f32 v{wa}, v{wa}",
        f"  v_exp_f32 v{wb}, v{wb}",
        f"  v_mul_f32 v{wa + 1}, v{VL}, v{wa}",
        f"  v_mul_f32 v{wb + 1}, v{l2}, v{wb}",
        f"  v_add_f32 v{wa + 1}, v{wa + 1}, v{wb + 1}",
        f"  v_rcp_f32 v{wa + 1}, v{wa + 1}",
        "  s_nop 0",
        f"  v_mul_f32 v{wa}, v{wa}, v{wa + 1}",
        f"  v_mul_f32 v{wb}, v{wb}, v{wa + 1}",
    ]


def unpack_ops(pk, tmp):
    v = []
    for h in range(8):
        v.append(f"  v_lshlrev_b32 v{tmp + 2 * h}, 16, v{pk + h}")
        v.append(f"  v_and_b32 v{tmp + 2 * h + 1}, 0xffff0000, v{pk + h}")
    return v


def merge_half(a, o, own, w_own, w_oth, tmp, dst, soff):
    a(scale_o(tmp, 16, w_oth))
    for m in range(2):
        a(fma_o(own + 8 * m, 8, w_own, tmp + 8 * m))
        d = dst + 4 * m
        for h in (0, 2, 1, 3):
            a(f"  v_cvt_pk_bf16_f32 v{d + h}, v{own + 8 * m + 2 * h}, v{own + 8 * m + 2 * h + 1}")
        a(f"  v_permlane16_swap_b32 v{d}, v{d + 2}")
        a("  s_nop 0")
        a(f"  v_permlane16_swap_b32 v{d + 1}, v{d + 3}")
        a(f"  buffer_store_dwordx4 {vr(d, 4)}, v{VOUT}, {sr(SQ, 4)}, s{soff} offen offset:{64 * m}{o.oaux}")


def prologue(a, o):
    c = (128 ** -0.5) * math.log2(math.e)
    multi = len(o.wins) > 1
    a(f"""
L_compute:
  s_sub_u32 s{S_WAVE}, s{S_WAVE}, 1
  v_and_b32 v{VLANE}, 63, v0
  v_and_b32 v2, 15, v0
  v_bfe_u32 v3, v0, 4, 2
  s_mov_b32 s{SQ + 2}, 0x200000
  s_mov_b32 s{SQ + 3}, 0x20000
  s_mov_b32 s{SW + 2}, {WS_SIZE}
  s_mov_b32 s{SW + 3}, 0x20000
  s_mov_b32 s{SD + 2}, 256
  s_mov_b32 s{SD + 3}, 0x20000
  s_lshl_b32 s{S_T}, s{S_PAIR}, 2
  s_add_u32 s{S_T}, s{S_T}, s{S_WAVE}
  s_lshl_b32 s{S_OUT}, s{S_T}, 12
  s_lshl_b32 s{S_BLK}, s{S_T}, 9
  s_add_u32 s{S_BLK}, s{S_BLK}, {WS_BLK}
  s_lshl_b32 s{S_T}, s{S_HALF}, 7
  s_add_u32 s{S_KEEP}, s{S_OUT}, s{S_T}
  s_xor_b32 s{S_SEND}, s{S_KEEP}, 128
  v_lshlrev_b32 v{VT}, 8, v2
  v_lshl_add_u32 v{VBOX}, v3, 4, v{VT}
  v_mov_b32 v{VZ}, 0
  v_min_u32 v{VCA}, 32, v{VLANE}
  v_lshlrev_b32 v{VCA}, 2, v{VCA}
  s_getreg_b32 s{S_ID}, hwreg(HW_REG_XCC_ID, 0, 4)
  s_mul_i32 s{S_LOC}, s{S_ID}, {REP_STRIDE}
  s_add_u32 s{S_LOC}, s{S_LOC}, {WS_LOC}
  s_or_b32 s{S_ID}, s{S_ID}, 16
  s_lshr_b32 s{S_SLOT}, s2, 3
  s_mul_i32 s{S_REPV}, s{S_SLOT}, {REP_STRIDE}
  s_add_u32 s{S_REPV}, s{S_REPV}, {WS_REP}
  s_mul_i32 s{S_REP}, s{S_SLOT}, {o.gstep}
  s_add_u32 s{S_REP}, s{S_REP}, {o.gfirst}
  s_cmp_le_u32 s{S_REP}, {o.glast}
  s_cselect_b32 s{S_REP}, s{S_REP}, 64
  s_cmp_eq_u32 s{S_WAVE}, 1
  s_cselect_b32 s{S_CTL}, {1 if multi else 0}, 0
  s_waitcnt lgkmcnt(0)
  s_mov_b32 s{SQ}, s{S_ARG}
  s_mov_b32 s{SQ + 1}, s{S_ARG + 1}
  s_mov_b32 s{SW}, s{S_ARG + 10}
  s_mov_b32 s{SW + 1}, s{S_ARG + 11}
  s_mov_b32 s{SD}, s{S_ARG + 8}
  s_mov_b32 s{SD + 1}, s{S_ARG + 9}
""")
    qload = lambda s: f"  buffer_load_dwordx4 {vr(VQ + 4 * s, 4)}, v{VBOX}, {sr(SQ, 4)}, s{S_OUT} offen offset:{64 * s}{o.qaux}"
    qplan = [int(x) for x in o.qplan.split(",")]
    a([qload(s) for s in range(qplan[0])])
    a(f"""
  {"; " if "f" in o.x else ""}buffer_load_dwordx4 {vr(VFL, 4)}, v{VZ}, {sr(SW, 4)}, s{S_BLK} offen offset:256 sc1
  s_cmp_eq_u32 s{S_CTL}, 0
  s_cbranch_scc1 L_nobase
  {"; " if "l" in o.x else ""}buffer_load_dword v{VCB}, v{VCA}, {sr(SW, 4)}, s{S_LOC} offen sc1
  {"; " if "g" in o.x else ""}buffer_load_dword v{VG0}, v{VZ}, {sr(SW, 4)}, s{S_REPV} offen{o.gaux}
L_nobase:
  v_mov_b32 v{VT + 3}, {LDS_WIN}
  v_mov_b32 v{VT + 4}, {o.wins.index(o.winit)}
  ds_write_b32 v{VT + 3}, v{VT + 4}
  s_and_b32 s{S_SH}, s{S_PAIR}, 3
  s_lshl_b32 s{S_SH}, s{S_SH}, 3
  s_and_b32 s{S_DW}, s{S_PAIR}, 0x7c
  v_xor_b32 v{VT + 1}, v2, v3
""")
    for s in range(4):
        a(f"  v_xor_b32 v{VT + 3}, {4 * s}, v{VT + 1}")
        a(f"  v_lshl_add_u32 v{VKA + s}, v{VT + 3}, 4, v{VT}")
    a(f"""
  s_lshl_b32 s{S_T}, s{S_HALF}, 3
  s_xor_b32 s{S_T}, s{S_T}, 8
  v_bfe_u32 v{VT}, v0, 2, 4
  v_and_b32 v{VT + 1}, 7, v{VT}
  v_lshlrev_b32 v{VT + 1}, 1, v{VT + 1}
  v_xor_b32 v{VT + 1}, s{S_T}, v{VT + 1}
  v_lshlrev_b32 v{VT}, 8, v{VT}
  v_and_b32 v{VT + 3}, 3, v0
  v_lshl_add_u32 v{VT}, v{VT + 3}, 3, v{VT}
""")
    for j in range(8):
        a(f"  v_xor_b32 v{VT + 3}, {2 * j}, v{VT + 1}")
        a(f"  v_lshl_add_u32 v{VVA + j}, v{VT + 3}, 4, v{VT}")
    for r in range(0, 32, 2):
        a(f"  v_mov_b64 {vr(VO + r, 2)}, 0")
    a(f"""
  v_mov_b32 v{VM}, 0xff800000
  v_mov_b32 v{VL}, 0
  v_mov_b32 v{VCT}, 0
  v_lshlrev_b32 v{VML}, 3, v2
  s_lshl_b32 s{S_T}, s{S_WAVE}, 12
  s_add_u32 s{S_T}, s{S_T}, {LDS_P}
  v_lshl_add_u32 v{VPL}, v{VLANE}, 4, s{S_T}
  s_mov_b32 s{S_C}, {f32hex(c)}
  s_mov_b32 s{S_C + 1}, s{S_C}
  s_mov_b32 s{S_RD}, 0
  s_mov_b32 s{S_I}, 0
  s_cmp_eq_u32 s{S_WAVE}, 0
  s_cselect_b32 s{S_HOOK}, {o.hello}, {o.sent}
  s_lshl_b32 s{S_T}, s{S_HALF}, 7
  s_add_u32 s{S_MLO}, s{S_BLK}, s{S_T}
  s_xor_b32 s{S_MLP}, s{S_MLO}, 128
  s_lshl_b32 s{S_T}, s{S_HALF}, 2
  s_add_u32 s{S_FLO}, s{S_BLK}, s{S_T}
  s_xor_b32 s{S_FLP}, s{S_FLO}, 4
""")
    done = qplan[0]
    for n in qplan[1:]:
        a("  s_waitcnt vmcnt(0)")
        a([qload(s) for s in range(done, done + n)])
        done += n
    a(f"  s_mov_b32 s{SQ}, s{S_ARG + 6}")
    a(f"  s_mov_b32 s{SQ + 1}, s{S_ARG + 7}")
    if o.stamp:
        a(f"  s_mov_b32 s{S_WSUM}, 0")
    a("  s_waitcnt lgkmcnt(0)")


def k_body(a, o):
    t0, t1, mx = VT, VT + 1, VT + 2
    al = VAL[7]
    pnew = VF
    lds = LdsTracker(a)
    reads = [f"  ds_read_b128 {vr(VF + 4 * (n % 16), 4)}, v{VKA + n % 4} offset:{4096 * (n // 4)}" for n in range(32)]
    fill = shift_al() + next_slot()
    for n in range(o.nprek):
        lds.issue(reads[n])
        if n >= 1:
            for _ in range(2):
                if fill:
                    a(fill.pop(0))
    a(fill)
    pend = reads[o.nprek:]
    mxs = [f"  v_max3_f32 v{mx}, v{VS}, v{VS + 1}, v{VS + 2}"]
    mxs += [f"  v_max3_f32 v{mx}, v{mx}, v{VS + r}, v{VS + r + 1}" for r in range(3, 31, 2)]
    k = 0
    pads = [adv(VVA + j) for j in range(8)]
    for n in range(32):
        t, s = divmod(n, 4)
        if s == 0:
            lds.need(n + 4)
        a(mfma(VS + 4 * t, VF + 4 * (n % 16), VQ + 4 * s, None if s == 0 else VS + 4 * t))
        if pend:
            lds.issue(pend.pop(0))
        elif pads:
            a(pads.pop(0))
        if t >= 2 and s in (1, 3) and 2 * k + 2 < 4 * (t - 1):
            a(mxs[k]); k += 1
    a(pads)
    a([adv(VKA + s) for s in range(4)])
    while 2 * k + 2 < 28:
        a(mxs[k]); k += 1
    a("  s_nop 2")
    a(mxs[k:])
    a(f"""
  v_max_f32 v{t0}, v{mx}, v{VS + 31}
  v_max_f32 v{t1}, v{mx}, v{VS + 31}
  s_nop 1
  v_permlane32_swap_b32 v{t0}, v{t1}
  v_max_f32 v{mx}, v{t0}, v{t1}
  v_max_f32 v{t1}, v{t0}, v{t1}
  s_nop 1
  v_permlane16_swap_b32 v{mx}, v{t1}
  v_max_f32 v{mx}, v{mx}, v{t1}
  v_mul_f32 v{mx}, s{S_C}, v{mx}
  v_max_f32 v{mx}, v{mx}, v{VM}
  v_sub_f32 v{al}, v{VM}, v{mx}
  v_mov_b32 v{VM}, v{mx}
  v_exp_f32 v{al}, v{al}
""")
    for r in range(0, 32, 2):
        a(f"  v_pk_fma_f32 {vr(VS + r, 2)}, {vr(VS + r, 2)}, s[{S_C}:{S_C + 1}], {vr(mx, 2)} op_sel_hi:[1,1,0] neg_lo:[0,0,1] neg_hi:[0,0,1]")
    for r in range(32):
        a(f"  v_exp_f32 v{VS + r}, v{VS + r}")
    for r in range(16):
        a(f"  v_cvt_pk_bf16_f32 v{pnew + r}, v{VS + 2 * r}, v{VS + 2 * r + 1}")
    for step in (16, 8, 4, 2):
        for r in range(0, step, 2):
            a(f"  v_pk_add_f32 {vr(VS + r, 2)}, {vr(VS + r, 2)}, {vr(VS + r + step, 2)}")
    a(f"  v_add_f32 v{VS}, v{VS}, v{VS + 1}")
    a(f"  v_fma_f32 v{VL}, v{VL}, v{al}, v{VS}")
    a(f"""
  s_and_b32 s{S_T}, s{S_I}, 7
  s_add_u32 s{S_I}, s{S_I}, 1
  s_cmp_ge_u32 s{S_T}, 4
  s_cbranch_scc1 L_park2
""")
    a(shift_p() + copy16(VP + 48, pnew))
    a(f"""
  s_branch L_loop
L_park2:
  s_cmp_eq_u32 s{S_T}, 7
  s_cbranch_scc1 L_park3
""")
    for k in range(4):
        a(f"  ds_write_b128 v{VPL}, {vr(pnew + 4 * k, 4)} offset:{1024 * k}")
    a(f"""
  v_add_u32 v{VPL}, 16384, v{VPL}
  s_waitcnt lgkmcnt(0)
  s_branch L_loop
L_park3:
  v_subrev_u32 v{VPL}, {3 * 16384}, v{VPL}
""")
    a(copy16(VS, pnew))
    a("  s_branch L_loop")


def pv_block(a, items, fill=(), head=(), valu=(), per=0):
    lds = LdsTracker(a)
    reads = [f"  ds_read_b64_tr_b16 {vr(VF + 4 * (n % 16) + 2 * t, 2)}, v{ad} offset:{off + t * step}"
             for n, (ad, off, step, _, _) in enumerate(items) for t in range(2)]
    fill, valu = list(fill), list(valu)
    for n, r in enumerate(reads[:12]):
        lds.issue(r)
        if n >= 2:
            for _ in range(2):
                if fill:
                    a(fill.pop(0))
    a(fill)
    a(head)
    pend = reads[12:]
    for n, (_, _, _, acc, p) in enumerate(items):
        if len(items) <= 16 or n % 2 == 0:
            lds.need(min(len(reads), 2 * (n + 1) if len(items) <= 16 else 2 * (n + 2)))
        a(mfma(acc, VF + 4 * (n % 16), p, acc))
        for _ in range(2):
            if pend:
                lds.issue(pend.pop(0))
        for _ in range(per):
            if valu:
                a(valu.pop(0))
    a(valu)


def v_body(a, o):
    items = [(VVA + j, 8192 * kb, 4096, VO + 4 * j, VP + 4 * kb) for kb in range(4) for j in range(8)]
    pv_block(a, items, fill=scale_o(VO, 32, VAL[0]) + next_slot())
    a([adv(VKA + s) for s in range(4)] + [adv(VVA + j) for j in range(8)])
    a(shift_al() + shift_p())
    a(f"""
  s_and_b32 s{S_T}, s{S_I}, 7
  s_add_u32 s{S_I}, s{S_I}, 1
  s_cmp_gt_u32 s{S_T}, 3
  s_cbranch_scc1 L_refilled
  s_cmp_eq_u32 s{S_T}, 3
  s_cbranch_scc1 L_refill2
""")
    for k in range(4):
        a(f"  ds_read_b128 {vr(VP + 48 + 4 * k, 4)}, v{VPL} offset:{1024 * k}")
    a(f"""
  v_add_u32 v{VPL}, 16384, v{VPL}
  s_waitcnt lgkmcnt(0)
  s_branch L_loop
L_refill2:
  v_subrev_u32 v{VPL}, {3 * 16384}, v{VPL}
""")
    a(copy16(VP + 48, VS))
    a("L_refilled:")


def cycle_probe(a, o, tag):
    if o.estamp == 4:
        a(f"""
  s_memtime s[90:91]
  s_waitcnt lgkmcnt(0)
  s_sub_u32 s{S_TS + (6 if tag == "k" else 8)}, s90, s88
""")


def mainloop(a, o):
    a(f"""
L_loop:
  s_cmp_lg_u32 s{S_CTL}, 0
  s_barrier
  s_waitcnt vmcnt(0)
  s_cbranch_scc1 L_ctl
L_ctl_ret:
  s_cmp_eq_u32 s{S_I}, s{S_HOOK}
  s_cbranch_scc1 L_hook
L_hook_ret:
""")
    if o.stamp and not o.estamp:
        for idx, it in ((3, o.st[0]), (4, o.st[1]), (5, o.st[2])):
            a(f"  s_cmp_lg_u32 s{S_I}, {it}")
            a(f"  s_cbranch_scc1 L_nostamp{idx}")
            stamp(a, o, idx, True)
            a(f"L_nostamp{idx}:")
    if o.estamp == 4:
        a("  s_memtime s[88:89]")
        a("  s_waitcnt lgkmcnt(0)")
    a(f"""
  s_bitcmp1_b32 s{S_I}, {o.run.bit_length() - 1}
  s_cbranch_scc1 L_vbody
""")
    k_body(a, o)
    a("L_vbody:")
    v_body(a, o)
    a(f"""
  s_cmp_lt_u32 s{S_I}, {32 - o.tu}
  s_cbranch_scc1 L_loop
""")


def epilogue(a, o):
    m2, l2, mm = VT, VT + 1, VT + 2
    wa, wb = VT + 4, VT + 6
    PK, B2, tmp, dst = VS, VS + 8, VP + 32, VS + 24
    snd = VP + 48

    def fetch(ml, pk):
        return f"""
  buffer_load_dwordx2 {vr(ml, 2)}, v{VML}, {sr(SW, 4)}, s{S_MLP} offen sc1
  buffer_load_dwordx4 {vr(pk, 4)}, v{VBOX}, {sr(SQ, 4)}, s{S_KEEP} offen sc1
  buffer_load_dwordx4 {vr(pk + 4, 4)}, v{VBOX}, {sr(SQ, 4)}, s{S_KEEP} offen offset:64 sc1
"""
    check = [
        f"  v_max3_u32 v{mm}, v{m2}, v{l2}, v{PK}",
        f"  v_max3_u32 v{mm + 1}, v{PK + 1}, v{PK + 2}, v{PK + 3}",
        f"  v_max3_u32 v{mm}, v{mm}, v{PK + 4}, v{PK + 5}",
        f"  v_max3_u32 v{mm + 1}, v{mm + 1}, v{PK + 6}, v{PK + 7}",
        f"  v_max_u32 v{mm}, v{mm}, v{mm + 1}",
        f"  v_cmp_eq_u32 vcc, -1, v{mm}",
    ]
    ready = f"""
  v_cmp_ne_u32 vcc, v{VFL + 1}, v{VRDY}
  s_cbranch_vccz L_notready
L_ready:
{fetch(m2, PK)}
L_nofetch:
"""

    def part(q, u, acc, kbs):
        return [(VKA + jj, 16384 * q + 4096 * kb, 2048, acc + 4 * jj, VP + 16 * u + 4 * kb) for kb in kbs for jj in range(4)]

    a(f"""
  v_bfe_u32 v{VT + 4}, v{VLANE}, 3, 2
  v_lshlrev_b32 v{VT + 4}, 1, v{VT + 4}
  v_lshrrev_b32 v{VT + 3}, 2, v{VLANE}
  v_lshlrev_b32 v{VT + 3}, 7, v{VT + 3}
  v_and_b32 v{VT + 5}, 3, v{VLANE}
  v_lshl_add_u32 v{VT + 3}, v{VT + 5}, 3, v{VT + 3}
""")
    base = ((32 - o.tu) % NS) * UNIT
    if base:
        a(f"  v_add_u32 v{VT + 3}, {base}, v{VT + 3}")
    for jj in range(4):
        a(f"  v_xor_b32 v{VT + 5}, {2 * jj}, v{VT + 4}")
        a(f"  v_lshl_add_u32 v{VKA + jj}, v{VT + 5}, 4, v{VT + 3}")
    a(scale_o(VO, 32, VAL[0]))
    a(xlane_ops("v_add_f32", VL, VT, VT + 1))
    a(f"""
  v_min_u32 v{VM}, -2, v{VM}
  v_min_u32 v{VL}, -2, v{VL}
  buffer_store_dwordx2 {vr(VM, 2)}, v{VML}, {sr(SW, 4)}, s{S_MLO} offen
  v_lshlrev_b32 v{VOUT}, 5, v{VML}
  v_bfe_u32 v{VT + 3}, v{VLANE}, 4, 1
  v_lshl_add_u32 v{VOUT}, v{VT + 3}, 5, v{VOUT}
  v_lshrrev_b32 v{VT + 3}, 5, v{VLANE}
  v_lshl_add_u32 v{VOUT}, v{VT + 3}, 4, v{VOUT}
  s_mov_b32 s{S_I}, {SPIN}
  s_cmp_lg_u32 s{S_MODE}, 0
""")
    for u in range(o.tu):
        a("  s_barrier")
        pv_block(a, part(u, u, VO, range(4)))
        if u + 1 < o.tu:
            a("  s_nop 2")
            a(scale_o(VO, 16, VAL[u + 1]))
    a("  s_nop 1")
    a("  s_cbranch_scc1 L_nosend")
    for m in range(2):
        for r in range(4):
            a(f"  v_cvt_pk_bf16_f32 v{snd + 4 * m + r}, v{VO + 8 * m + 2 * r}, v{VO + 8 * m + 2 * r + 1}")
        for r in range(4):
            a(f"  v_min_u32 v{snd + 4 * m + r}, -2, v{snd + 4 * m + r}")
        a(f"  buffer_store_dwordx4 {vr(snd + 4 * m, 4)}, v{VBOX}, {sr(SQ, 4)}, s{S_SEND} offen offset:{64 * m}")
    a("L_nosend:")
    if o.estamp == 1:
        stamp(a, o, 3, True)
    for u in range(o.tu - 1):
        a("  s_barrier")
        pv_block(a, part(o.tu + u, u, VO + 16, range(4)))
        a("  s_nop 2")
        a(scale_o(VO + 16, 16, VAL[u + 1]))
    last = o.tu - 1
    if o.fetch != "d":
        a(ready)
    a("  s_barrier")
    pv_block(a, part(o.tu + last, last, VO + 16, (0, 1)))
    if o.fetch == "d":
        a(ready)
    if o.fetch == "cd":
        a(fetch(B2 + 8, B2))
    if o.estamp == 1:
        stamp(a, o, 4, True)
    a(f"  s_cmp_lg_u32 s{S_MODE}, 0")
    a("  s_barrier")
    stamp(a, o, 1, True)
    prep = weight_ops(m2, l2, wa, wb) + unpack_ops(PK, tmp)
    wait = f"  s_waitcnt vmcnt({3 if o.fetch == 'cd' else 0})"
    pv_block(a, part(o.tu + last, last, VO + 16, (2, 3)), head=[wait] + check, valu=prep, per=4)
    a("""
  s_cbranch_scc1 L_generic
  s_cbranch_vccnz L_retry
L_merge:
""")
    if o.estamp == 1:
        stamp(a, o, 5)
    merge_half(a, o, VO + 16, wa, wb, tmp, dst, S_KEEP)
    a("L_done:")
    if o.stamp:
        a("  s_waitcnt vmcnt(0)")
        stamp(a, o, 2, True)
        a(f"""
  s_lshl_b32 s{S_T}, s2, 2
  s_add_u32 s{S_T}, s{S_T}, s{S_WAVE}
  s_lshl_b32 s{S_T}, s{S_T}, 5
  s_add_u32 s{S_T}, s{S_T}, {WS_STAMP}
  v_mov_b32 v4, s{S_TS}
  v_mov_b32 v5, s{S_TS + 2}
  v_mov_b32 v6, s{S_TS + 4}
  s_and_b32 s{S_T + 1}, s{S_ID}, 15
  s_lshl_b32 s{S_T + 2}, s{S_MODE}, 4
  s_or_b32 s{S_T + 1}, s{S_T + 1}, s{S_T + 2}
  v_mov_b32 v7, s{S_T + 1}
  buffer_store_dwordx4 v[4:7], v{VZ}, {sr(SW, 4)}, s{S_T} offen
  v_mov_b32 v12, s{S_TS + 6}
  v_mov_b32 v13, s{S_TS + 8}
  v_mov_b32 v14, s{S_TS + 10}
  v_mov_b32 v15, s{S_WSUM}
  buffer_store_dwordx4 v[12:15], v{VZ}, {sr(SW, 4)}, s{S_T} offen offset:16
""")
    if o.diag:
        diag(a, o)
    a("""
L_end:
  s_endpgm
L_retry:
""")
    if o.fetch == "cd":
        a("  s_waitcnt vmcnt(0)")
        a(f"  v_mov_b64 {vr(m2, 2)}, {vr(B2 + 8, 2)}")
        for r in range(0, 8, 2):
            a(f"  v_mov_b64 {vr(PK + r, 2)}, {vr(B2 + r, 2)}")
        a("  s_branch L_recheck")
    a("L_refetch:")
    a(fetch(m2, PK))
    a(f"""
  s_sub_u32 s{S_I}, s{S_I}, 1
  s_cbranch_scc1 L_end
  s_waitcnt vmcnt(0)
L_recheck:
""")
    a(check)
    a("  s_cbranch_vccnz L_refetch")
    a(prep)
    a(f"""
  s_branch L_merge
L_notready:
  s_cmp_lg_u32 s{S_MODE}, 0
  s_cbranch_scc1 L_nofetch
  buffer_load_dword v{VRDY}, v{VZ}, {sr(SW, 4)}, s{S_FLP} offen offset:256 sc1
  buffer_load_dword v{VT + 3}, v{VZ}, {sr(SD, 4)}, s{S_DW} offen sc1
  s_sub_u32 s{S_I}, s{S_I}, 1
  s_cbranch_scc1 L_end
  s_waitcnt vmcnt(0)
  v_cmp_ne_u32 vcc, v{VFL + 1}, v{VRDY}
  s_cbranch_vccnz L_ready
  v_bfe_u32 v{VT + 3}, v{VT + 3}, s{S_SH}, 1
  v_cmp_ne_u32 vcc, 0, v{VT + 3}
  s_cbranch_vccz L_notready
  s_mov_b32 s{S_MODE}, 2
  s_branch L_nofetch
""")
    a(f"""
L_generic:
  s_waitcnt vmcnt(0)
  s_lshl_b32 s{S_T}, s{S_PAIR}, 2
  s_add_u32 s{S_T}, s{S_T}, s{S_WAVE}
  s_lshl_b32 s{S_T + 1}, s{S_T}, 13
  s_add_u32 s{S_T + 3}, s{S_T + 1}, 4096
  s_lshl_b32 s{S_T + 2}, s{S_T}, 9
  s_add_u32 s{S_T + 2}, s{S_T + 2}, {WS_DML}
  s_lshl_b32 s{S_T + 4}, 2, s{S_SH}
  v_lshlrev_b32 v{VT + 8}, 4, v{VLANE}
  v_lshlrev_b32 v{VT + 3}, 3, v{VLANE}
  s_cmp_eq_u32 s{S_MODE}, 1
  s_cbranch_scc0 L_second
  buffer_store_dwordx2 {vr(VM, 2)}, v{VT + 3}, {sr(SW, 4)}, s{S_T + 2} offen sc1
""")
    for j in range(8):
        so = S_T + 1 if j < 4 else S_T + 3
        a(f"  buffer_store_dwordx4 {vr(VO + 4 * j, 4)}, v{VT + 8}, {sr(SW, 4)}, s{so} offen offset:{1024 * (j & 3)} sc1")
    a(f"""
  s_waitcnt vmcnt(0)
  s_barrier
  s_cmp_eq_u32 s{S_WAVE}, 0
  s_cbranch_scc0 L_done
  v_mov_b32 v{VT}, s{S_T + 4}
  s_mov_b64 exec, 1
  buffer_atomic_or v{VT}, v{VZ}, {sr(SD, 4)}, s{S_DW} offen sc1
  s_mov_b64 exec, -1
  s_branch L_done
L_second:
  buffer_load_dword v{VT}, v{VZ}, {sr(SD, 4)}, s{S_DW} offen sc1
  s_sub_u32 s{S_I}, s{S_I}, 1
  s_cbranch_scc1 L_end
  s_waitcnt vmcnt(0)
  v_and_b32 v{VT}, s{S_T + 4}, v{VT}
  v_cmp_ne_u32 vcc, 0, v{VT}
  s_cbranch_vccz L_second
  buffer_load_dwordx2 {vr(m2, 2)}, v{VT + 3}, {sr(SW, 4)}, s{S_T + 2} offen sc1
""")
    for j in range(8):
        so = S_T + 1 if j < 4 else S_T + 3
        a(f"  buffer_load_dwordx4 {vr(VF + 4 * j, 4)}, v{VT + 8}, {sr(SW, 4)}, s{so} offen offset:{1024 * (j & 3)} sc1")
    a("  s_waitcnt vmcnt(0)")
    a(weight_ops(m2, l2, wa, wb))
    for r in range(8):
        a(f"  v_cvt_pk_bf16_f32 v{PK + r}, v{VF + 2 * r}, v{VF + 2 * r + 1}")
        a(f"  v_cvt_pk_bf16_f32 v{B2 + r}, v{VO + 2 * r}, v{VO + 2 * r + 1}")
    a(unpack_ops(PK, tmp))
    merge_half(a, o, VO + 16, wa, wb, tmp, dst, S_KEEP)
    a(unpack_ops(B2, tmp))
    merge_half(a, o, VF + 16, wb, wa, tmp, snd, S_SEND)
    a("  s_branch L_done")


def diag(a, o):
    ts = lambda i: S_TS + 2 * i
    kind, idx, ref = (o.diag.split(":") + ["0"])[:3]
    idx, ref = int(idx), int(ref)
    T = S_T
    a(f"""
  s_add_u32 s{T + 1}, s{ts(0)}, 8000
L_dg0:
  s_sleep 8
  s_memrealtime s[{T + 2}:{T + 3}]
  s_waitcnt lgkmcnt(0)
  s_sub_u32 s{T + 2}, s{T + 2}, s{T + 1}
  s_cmp_lt_i32 s{T + 2}, 0
  s_cbranch_scc1 L_dg0
  s_mov_b64 exec, 1
  s_not_b32 s{T}, s{ts(0)}
  v_mov_b32 v4, s{T}
  buffer_atomic_umax v4, v{VZ}, {sr(SD, 4)}, 0 offen offset:244 sc1
  v_mov_b32 v5, s{ts(idx)}
  s_sub_u32 s{T}, s{ts(idx)}, s{ts(ref)}
  v_mov_b32 v6, s{T}
  buffer_atomic_umax v5, v{VZ}, {sr(SD, 4)}, 0 offen offset:248 sc1
  buffer_atomic_add v{6 if kind == "rel" else 5}, v{VZ}, {sr(SD, 4)}, 0 offen offset:252 sc1
  s_or_b32 s{T}, s2, s{S_WAVE}
  s_cmp_lg_u32 s{T}, 0
  s_cbranch_scc1 L_end
  s_add_u32 s{T + 1}, s{ts(0)}, 19000
L_dg1:
  s_memrealtime s[{T + 2}:{T + 3}]
  s_waitcnt lgkmcnt(0)
  s_sub_u32 s{T + 2}, s{T + 2}, s{T + 1}
  s_cmp_lt_i32 s{T + 2}, 0
  s_cbranch_scc1 L_dg1
  buffer_load_dword v4, v{VZ}, {sr(SD, 4)}, 0 offen offset:244 sc1
  buffer_load_dword v5, v{VZ}, {sr(SD, 4)}, 0 offen offset:{248 if kind == "max" else 252} sc1
  s_waitcnt vmcnt(0)
  v_readfirstlane_b32 s{T}, v4
  v_readfirstlane_b32 s{T + 1}, v5
  s_not_b32 s{T}, s{T}
""")
    if kind == "zero":
        a(f"  s_mov_b32 s{T + 1}, 0")
    elif kind == "max":
        a(f"  s_sub_u32 s{T + 1}, s{T + 1}, s{T}")
    elif kind == "rel":
        a(f"  s_lshr_b32 s{T + 1}, s{T + 1}, {10 - o.dgain}")
    else:
        a(f"  s_lshl_b32 s{T + 2}, s{T}, 10")
        a(f"  s_sub_u32 s{T + 1}, s{T + 1}, s{T + 2}")
        a(f"  s_lshr_b32 s{T + 1}, s{T + 1}, 10")
    a(f"""
  s_min_u32 s{T + 1}, s{T + 1}, 30000
  s_add_u32 s{T + 1}, s{T + 1}, 20000
  s_sub_u32 s{T + 2}, s{ts(0)}, s{T}
  s_min_u32 s{T + 2}, s{T + 2}, 1000
  s_sub_u32 s{T}, s{ts(0)}, s{T + 2}
  s_add_u32 s{T + 1}, s{T + 1}, s{T}
L_dg2:
  s_memrealtime s[{T + 2}:{T + 3}]
  s_waitcnt lgkmcnt(0)
  s_sub_u32 s{T + 2}, s{T + 2}, s{T + 1}
  s_cmp_lt_i32 s{T + 2}, 0
  s_cbranch_scc1 L_dg2
""")


def hooks(a, o):
    b = S_T
    a(f"""
L_hook:
  s_cmp_ge_u32 s{S_I}, {o.sent}
  s_cbranch_scc1 L_hook4
  s_mov_b64 exec, 1
  s_cmp_eq_u32 s{S_I}, {o.hello}
  s_cbranch_scc0 L_hook2
""")
    if o.force == "late":
        a(f"""
  s_cmp_eq_u32 s{S_HALF}, 0
  s_cbranch_scc1 L_nodelay
  s_lshl_b32 s{b + 1}, 1, s{S_SH}
  s_mov_b32 s{b + 2}, {SPIN}
L_delay:
  buffer_load_dword v{VT}, v{VZ}, {sr(SD, 4)}, s{S_DW} offen sc1
  s_sub_u32 s{b + 2}, s{b + 2}, 1
  s_cbranch_scc1 L_nodelay
  s_waitcnt vmcnt(0)
  v_and_b32 v{VT}, s{b + 1}, v{VT}
  v_cmp_ne_u32 vcc, 0, v{VT}
  s_cbranch_vccz L_delay
L_nodelay:
""")
    a(f"""
  s_cmp_eq_u32 s{S_HALF}, 0
  s_cbranch_scc1 L_hook_noswap
  v_swap_b32 v{VFL + 2}, v{VFL + 3}
L_hook_noswap:
  v_add_u32 v{VFL + 2}, s{S_ID}, v{VFL + 2}
  buffer_store_dword v{VFL + 2}, v{VZ}, {sr(SW, 4)}, s{S_FLO} offen offset:264
  s_mov_b32 s{S_HOOK}, {o.check}
  s_branch L_hook_out
L_hook2:
  s_cmp_eq_u32 s{S_I}, {o.check}
  s_cbranch_scc0 L_hook3
  buffer_load_dword v{VHS}, v{VZ}, {sr(SW, 4)}, s{S_FLP} offen offset:264 sc1
  s_mov_b32 s{S_HOOK}, {o.check + 1}
  s_branch L_hook_out
L_hook3:
  v_sub_u32 v{VHS}, v{VHS}, v{VFL + 3}
  v_cmp_eq_u32 vcc, s{S_ID}, v{VHS}
  v_mov_b32 v{VHS}, 0
  s_cbranch_vccnz L_hook_mode
  s_lshl_b32 s{b}, 1, s{S_SH}
  v_mov_b32 v{VHS}, s{b}
  buffer_atomic_or v{VHS}, v{VZ}, {sr(SD, 4)}, s{S_DW} offen sc0 sc1
  s_waitcnt vmcnt(0)
  v_bfe_u32 v{VHS}, v{VHS}, s{S_SH}, 1
  v_add_u32 v{VHS}, 1, v{VHS}
L_hook_mode:
  v_mov_b32 v{VT}, {LDS_MODE}
  ds_write_b32 v{VT}, v{VHS}
  s_mov_b32 s{S_HOOK}, {o.sent}
  s_waitcnt lgkmcnt(0)
L_hook_out:
  s_mov_b64 exec, -1
  s_branch L_hook_ret
L_hook4:
  s_cmp_eq_u32 s{S_I}, {o.sent}
  s_cbranch_scc0 L_hook5
  v_mov_b32 v{VT}, {LDS_MODE}
  ds_read_b32 v{VHS}, v{VT}
  s_cmp_eq_u32 s{S_HALF}, 0
  s_cbranch_scc1 L_hook_noswap2
  v_swap_b32 v{VFL}, v{VFL + 1}
L_hook_noswap2:
  v_add_u32 v{VFL}, 1, v{VFL}
  v_mov_b32 v{VRDY}, v{VFL + 1}
  v_mov_b64 {vr(VT + 4, 2)}, -1
  v_mov_b64 {vr(VT + 6, 2)}, -1
  s_waitcnt lgkmcnt(0)
  v_readfirstlane_b32 s{S_MODE}, v{VHS}
  s_cmp_lg_u32 s{S_MODE}, 0
  s_cbranch_scc1 L_hook_ret
  buffer_store_dwordx4 {vr(VT + 4, 4)}, v{VBOX}, {sr(SQ, 4)}, s{S_SEND} offen
  buffer_store_dwordx4 {vr(VT + 4, 4)}, v{VBOX}, {sr(SQ, 4)}, s{S_SEND} offen offset:64
  buffer_store_dwordx2 {vr(VT + 4, 2)}, v{VML}, {sr(SW, 4)}, s{S_MLO} offen
  s_mov_b32 s{S_HOOK}, {o.sent + 1}
  s_branch L_hook_ret
L_hook5:
  s_cmp_eq_u32 s{S_I}, {o.sent + 1}
  s_cbranch_scc0 L_hook6
  buffer_store_dword v{VFL}, v{VZ}, {sr(SW, 4)}, s{S_FLO} offen offset:256
  s_mov_b32 s{S_HOOK}, {o.rdy}
  s_branch L_hook_ret
L_hook6:
  buffer_load_dword v{VRDY}, v{VZ}, {sr(SW, 4)}, s{S_FLP} offen offset:256 sc1
  s_branch L_hook_ret
""")


def controller(a, o):
    nw = len(o.wins)
    x, e, g = S_T, S_T + 1, S_T + 2
    t = VT
    a(f"""
L_ctl:
  v_sub_u32 v{t}, v{VCT}, v{VCB}
  s_add_u32 s{x}, s{S_I}, 1
  v_add_u32 v{t + 1}, s{x}, v{VCB}
""")
    if o.lfirst:
        a(f"  s_cmp_lt_u32 s{S_I}, {o.lfirst}")
        a("  s_cbranch_scc1 L_ctl_nopub")
    a(f"""
  s_lshl_b64 exec, 1, s{S_SLOT}
  buffer_store_dword v{t + 1}, v{VCA}, {sr(SW, 4)}, s{S_LOC} offen
L_ctl_nopub:
  s_sub_u32 s{x}, s{S_I}, s{S_REP}
  s_cmp_gt_u32 s{x}, 1
  s_cbranch_scc1 L_ctl_nolead
  s_lshl_b64 exec, 1, 32
  s_cmp_eq_u32 s{x}, 0
  s_cbranch_scc0 L_ctl_rank
  v_mov_b32 v{VAT}, 1
  buffer_atomic_add v{VAT}, v{VZ}, {sr(SW, 4)}, s{S_REPV} offen sc0 sc1
  s_branch L_ctl_nolead
L_ctl_rank:
  v_sub_u32 v{VAT}, v{VAT}, v{VG0}
  v_lshl_add_u32 v{VAT}, v{VAT}, 1, v{VCB}
  v_subrev_u32 v{VAT}, 7, v{VAT}
  buffer_store_dword v{VAT}, v{VCA}, {sr(SW, 4)}, s{S_LOC} offen
L_ctl_nolead:
  s_mov_b64 exec, -1
  buffer_load_dword v{VCT}, v{VCA}, {sr(SW, 4)}, s{S_LOC} offen sc1
  s_cmp_lt_u32 s{S_I}, {o.cstart}
  s_cbranch_scc1 L_ctl_ret
  v_cmp_ne_u32 vcc, 0, v{t}
  v_readlane_b32 s{g}, v{t}, 32
  v_add_u32_dpp v{t}, v{t}, v{t} row_shr:1 row_mask:0xf bank_mask:0xf bound_ctrl:1
  s_nop 1
  v_add_u32_dpp v{t}, v{t}, v{t} row_shr:2 row_mask:0xf bank_mask:0xf bound_ctrl:1
  s_nop 1
  v_add_u32_dpp v{t}, v{t}, v{t} row_shr:4 row_mask:0xf bank_mask:0xf bound_ctrl:1
  s_nop 1
  v_add_u32_dpp v{t}, v{t}, v{t} row_shr:8 row_mask:0xf bank_mask:0xf bound_ctrl:1
  s_cmp_eq_u32 vcc_lo, -1
  s_cbranch_scc0 L_ctl_end
  v_readlane_b32 s{x}, v{t}, 15
  v_readlane_b32 s{e}, v{t}, 31
  s_max_i32 s{g}, s{g}, -7
  s_min_i32 s{g}, s{g}, 7
  s_add_u32 s{x}, s{x}, s{e}
  s_lshl_b32 s{e}, s{S_I}, 5
  s_sub_i32 s{e}, s{x}, s{e}
  s_add_i32 s{e}, s{e}, {32 - o.bias}
  s_max_i32 s{e}, s{e}, -128
  s_min_i32 s{e}, s{e}, 128
  s_mul_i32 s{e}, s{e}, {o.kp}
  s_cmp_lt_u32 s{S_I}, {o.ilate}
  s_movk_i32 s{x}, {o.kpg}
  s_cmovk_i32 s{x}, {o.kpg1 or o.kpg}
  s_mul_i32 s{g}, s{g}, s{x}
  s_add_i32 s{e}, s{e}, s{g}
  s_add_i32 s{e}, s{e}, {int(o.w0 * 512 + 256)}
  s_ashr_i32 s{e}, s{e}, 9
  s_max_i32 s{e}, s{e}, 0
  s_min_i32 s{e}, s{e}, {nw - 1}
""")
    if o.stamp:
        a(f"  s_add_u32 s{S_WSUM}, s{S_WSUM}, s{e}")
    a(f"""
  v_mov_b32 v{t}, s{e}
  v_mov_b32 v{t + 2}, {LDS_WIN}
  ds_write_b32 v{t + 2}, v{t}
  s_waitcnt lgkmcnt(0)
L_ctl_end:
  s_cmp_lt_u32 s{S_I}, {o.cend}
  s_cselect_b32 s{S_CTL}, s{S_CTL}, 0
  s_branch L_ctl_ret
""")


def build(o):
    a = Asm()
    a(HEADER)
    label = f"{NAME}_kernel"
    a(f"; @launch grid=(256,1,1) block=(320,1,1) lds={LDS_BYTES}")
    a('.amdgcn_target "amdgcn-amd-amdhsa--gfx950"')
    a(f"""
.text
.globl {label}
.p2align 8
.type {label},@function
{label}:
  s_load_dwordx8 s[{S_ARG}:{S_ARG + 7}], s[0:1], 0
  s_load_dwordx4 s[{S_ARG + 8}:{S_ARG + 11}], s[0:1], 32
  s_cmp_ge_u32 s2, 256
  s_cbranch_scc1 L_end
""")
    if o.skew:
        a(f"""
  s_memrealtime s[{S_TS}:{S_TS + 1}]
  s_getreg_b32 s{S_T}, hwreg(HW_REG_XCC_ID, 0, 4)
  s_lshl_b32 s{S_T}, s{S_T}, 2
  s_add_u32 s{S_T}, s{S_T}, 0xb00000
  s_waitcnt lgkmcnt(0)
  s_load_dword s{S_T + 1}, s[{S_ARG + 10}:{S_ARG + 11}], s{S_T}
  s_waitcnt lgkmcnt(0)
  s_min_u32 s{S_T + 1}, s{S_T + 1}, 1000
  s_add_u32 s{S_T + 1}, s{S_T + 1}, s{S_TS}
L_skew:
  s_memrealtime s[{S_T + 2}:{S_T + 3}]
  s_waitcnt lgkmcnt(0)
  s_sub_u32 s{S_T + 2}, s{S_T + 2}, s{S_T + 1}
  s_cmp_lt_i32 s{S_T + 2}, 0
  s_cbranch_scc1 L_skew
""")
    stamp(a, o, 0)
    a(f"  v_readfirstlane_b32 s{S_WAVE}, v0")
    if o.map == 0:
        a(f"""
  s_and_b32 s{S_T}, s2, 7
  s_lshr_b32 s{S_T + 1}, s2, 4
  s_lshl_b32 s{S_T + 1}, s{S_T + 1}, 3
  s_or_b32 s{S_PAIR}, s{S_T}, s{S_T + 1}
  s_bfe_u32 s{S_HALF}, s2, 0x10003
""")
    else:
        a(f"""
  s_lshr_b32 s{S_PAIR}, s2, 1
  s_and_b32 s{S_HALF}, s2, 1
""")
    a(f"""
  s_lshr_b32 s{S_WAVE}, s{S_WAVE}, 6
  s_cmp_eq_u32 s{S_WAVE}, 0
""")
    if o.cpf:
        a(f"""
  s_cbranch_scc1 L_loader
  s_cmp_lg_u32 s{S_WAVE}, 4
  s_cbranch_scc1 L_compute
  s_getpc_b64 s[{S_T + 2}:{S_T + 3}]
L_pc:
  s_lshr_b32 s{S_T}, s2, 3
  s_lshl_b32 s{S_T}, s{S_T}, {8 + o.cpf}
  v_and_b32 v1, {(2 << o.cpf) - 1}, v0
  v_lshl_add_u32 v1, v1, 7, s{S_T}
  v_min_u32 v1, L_code_end-L_pc-4, v1
  v_mov_b32 v3, s{S_T + 3}
  v_add_co_u32 v2, vcc, s{S_T + 2}, v1
  s_nop 1
  v_addc_co_u32 v3, vcc, 0, v3, vcc
  global_load_dword v{VOUT}, v[2:3], off
  s_branch L_compute
L_loader:
""")
    else:
        a("  s_cbranch_scc0 L_compute")
    loader(a, o)
    prologue(a, o)
    mainloop(a, o)
    epilogue(a, o)
    hooks(a, o)
    controller(a, o)
    a(f"""
L_code_end:
.section .rodata,"a"
.p2align 6
.amdhsa_kernel {label}
  .amdhsa_next_free_vgpr {NVGPR}
  .amdhsa_next_free_sgpr {NSGPR}
  .amdhsa_accum_offset {NVGPR}
  .amdhsa_group_segment_fixed_size 0
  .amdhsa_kernarg_size 48
  .amdhsa_user_sgpr_count 2
  .amdhsa_user_sgpr_kernarg_segment_ptr 1
  .amdhsa_system_sgpr_workgroup_id_x 1
.end_amdhsa_kernel
""")
    return a.text()


if __name__ == "__main__":
    ap = argparse.ArgumentParser()
    ap.add_argument("-o", default="cdna_kernels/" + NAME + ".s")
    ap.add_argument("--nq", type=int, default=8)
    ap.add_argument("--run", type=int, default=0)
    ap.add_argument("--tu", type=int, default=2)
    ap.add_argument("--wins", default="17,18,19,20,21,22,23,24,26,28")
    ap.add_argument("--winit", type=int, default=21)
    ap.add_argument("--wtail", type=int, default=22)
    ap.add_argument("--w0", type=float, default=4.5)
    ap.add_argument("--kp", type=int, default=48)
    ap.add_argument("--kpg", type=int, default=200)
    ap.add_argument("--bias", type=int, default=16)
    ap.add_argument("--kpg1", type=int, default=0)
    ap.add_argument("--ilate", type=int, default=7)
    ap.add_argument("--lfirst", type=int, default=0)
    ap.add_argument("--gfirst", type=int, default=1)
    ap.add_argument("--gstep", type=int, default=1)
    ap.add_argument("--glast", type=int, default=25)
    ap.add_argument("--cstart", type=int, default=2)
    ap.add_argument("--cend", type=int, default=-1)
    ap.add_argument("--hello", type=int, default=1)
    ap.add_argument("--check", type=int, default=19)
    ap.add_argument("--sent", type=int, default=24)
    ap.add_argument("--rdy", type=int, default=28)
    ap.add_argument("--prepos", type=int, default=0)
    ap.add_argument("--fetch", default="cd")
    ap.add_argument("--nprek", type=int, default=8)
    ap.add_argument("--cpf", type=int, default=1)
    ap.add_argument("--bits", default="12,13,14,8,9,10,11")
    ap.add_argument("--split", type=int, default=15)
    ap.add_argument("--rsel", default="")
    ap.add_argument("--aux", default="nt")
    ap.add_argument("--qaux", default="nt")
    ap.add_argument("--qplan", default="4")
    ap.add_argument("--x", default="")
    ap.add_argument("--diag", default="")
    ap.add_argument("--dgain", type=int, default=3)
    ap.add_argument("--gaux", default="nt")
    ap.add_argument("--oaux", default="")
    ap.add_argument("--paux", default="sc1")
    ap.add_argument("--stamp", action="store_true")
    ap.add_argument("--skew", action="store_true")
    ap.add_argument("--lstamp", action="store_true")
    ap.add_argument("--sstamp", action="store_true")
    ap.add_argument("--st", default="0,8,16")
    ap.add_argument("--estamp", type=int, default=0)
    ap.add_argument("--map", type=int, default=0)
    ap.add_argument("--force", default="")
    o = ap.parse_args()
    o.wins = [int(x) for x in o.wins.split(",")]
    o.st = [int(x) for x in o.st.split(",")]
    o.bits = [int(x) for x in o.bits.split(",")]
    rest = [b for b in range(8, 20) if b not in o.bits and b != o.split]
    assert rest == list(range(rest[0], rest[0] + 4))
    o.ustride = 1 << rest[0]
    o.rsel = [int(x) for x in o.rsel.split(",")] if o.rsel else []
    o.run = o.run or o.nq
    o.stamp = o.stamp or bool(o.diag)
    assert o.tu <= o.nq and o.rdy <= 30 - o.tu
    if o.cend < 0:
        o.cend = 29 - o.tu
    fx = lambda s: (" " + s.replace(",", " ")) if s else ""
    o.aux, o.qaux, o.oaux, o.paux, o.gaux = fx(o.aux), fx(o.qaux), fx(o.oaux), fx(o.paux), fx(o.gaux)
    open(o.o, "w").write(build(o))
```

```python
import argparse
import math
import struct

NAME = "standalone__gqa_softmax__sampling"

HEADER = """; Kernarg layout for this problem (48 bytes, ptrs only, base s[0:1]):
"""


class Asm:
    def __init__(self):
        self.lines = []

    def __call__(self, s):
        if isinstance(s, (list, tuple)):
            for x in s:
                self(x)
            return
        for ln in s.strip("\n").split("\n"):
            if ln.strip():
                self.lines.append(ln)

    def text(self):
        return "\n".join(self.lines) + "\n"


class LdsTracker:
    def __init__(self, a):
        self.a, self.issued, self.done = a, 0, 0

    def need(self, n):
        assert n <= self.issued
        if n > self.done:
            self.a(f"  s_waitcnt lgkmcnt({self.issued - n})")
            self.done = n

    def issue(self, line):
        if self.issued - self.done >= 15:
            self.need(self.issued - 11)
        self.a(line)
        self.issued += 1


def vr(a, n=1):
    return f"v{a}" if n == 1 else f"v[{a}:{a + n - 1}]"


def sr(a, n):
    return f"s[{a}:{a + n - 1}]"


def f32hex(x):
    return "0x%08x" % struct.unpack("<I", struct.pack("<f", x))[0]


VQ = 4
VO = 20
VS = 52
VF = 84
VP = 148
VAL = (212, 214, 213, 215, 0, 1, 2, 3)
VKA = 216
VVA = 220
VM = 228
VL = 229
VT = 230
VPL = 239
VML = 240
VRDY = 241
VLANE = 242
VHS = 243
VZ = 244
VCT = 245
VCB = 246
VCA = 247
VFL = 248
VBOX = 252
VG0 = 253
VAT = 254
VOUT = 255
NVGPR = 256
VDA = 4
VDB = 8
VDT = 24

SA = 4
S_BB = 8
SQ = 12
SW = 16
S_WAVE = 20
S_I = 21
S_OFFA = 22
S_OFFB = 23
S_DL = 24
S_RD = 25
S_C = 26
S_PAIR = 40
S_ARG = 28
S_HALF = 41
S_T = 42
S_TS = 48
SD = 60
S_HOOK = 64
S_BLK = 65
S_KEEP = 66
S_SEND = 67
S_MODE = 68
S_OUT = 69
S_SH = 70
S_CTL = 71
S_REP = 72
S_REPV = 73
S_WSUM = 75
S_DW = 76
S_ID = 77
S_LOC = 78
S_SLOT = 79
S_MLO = 80
S_MLP = 81
S_FLO = 82
S_FLP = 83
S_MSK = 84
S_NMSK = 85
NSGPR = 96

UNIT = 32768
NS = 3
LDS_P = UNIT * NS
LDS_MODE = LDS_P + 3 * 16384
LDS_WIN = LDS_MODE + 4
LDS_BYTES = LDS_MODE + 64
BIAS = 4096

WS_DUMP = 0x0
WS_DML = 0x400000
WS_BLK = 0x500000
WS_REP = 0x600000
WS_LOC = 0x700000
REP_STRIDE = 4352
WS_STAMP = 0xC00000
WS_SIZE = 0x1000000
SPIN = 0x40000


def stamp(a, o, idx, wait=False):
    if o.stamp:
        op = "s_memtime" if o.clk and idx in (4, 5) else "s_memrealtime"
        a(f"  {op} s[{S_TS + 2 * idx}:{S_TS + 2 * idx + 1}]")
        if wait:
            a("  s_waitcnt lgkmcnt(0)")


def lbarrier(a, o, slot=None):
    if not o.lstamp:
        a("  s_barrier")
        return
    a("""
  s_memtime s[88:89]
  s_barrier
  s_memtime s[90:91]
  s_waitcnt lgkmcnt(0)
  s_sub_u32 s88, s90, s88
""")
    if slot is not None:
        a(f"  s_mov_b32 s{S_TS + 2 + slot}, s88")
    else:
        a(f"  s_add_u32 s{S_TS + 2}, s{S_TS + 2}, s88")


def sstamp(a, o, k):
    if o.sstamp:
        a(f"  s_memrealtime s[{86 + 2 * k}:{87 + 2 * k}]")


def touch(a, o, last=False):
    if o.touch:
        a(f"L_touch{o.ntouch}:")
        a(f"  s_branch {'L_loop' if last else f'L_touch{o.ntouch + 1}'}")
        o.ntouch += 1


def add_imm(a, reg, inc):
    a(f"  s_addk_i32 {reg}, {inc}" if -32768 <= inc < 32768 else f"  s_add_u32 {reg}, {reg}, {inc}")


def spread(x, bits):
    return sum(((x >> i) & 1) << b for i, b in enumerate(bits))


def masked_inc(a, off):
    a(f"  s_or_b32 s{off}, s{off}, s{S_NMSK}")
    a(f"  s_add_u32 s{off}, s{off}, 1")
    a(f"  s_and_b32 s{off}, s{off}, s{S_MSK}")


def unit_body(a, o, w, barrier_at, first=False, mid=None):
    for g in range(8):
        if mid is not None and g == 7:
            a(mid)
        for p in range(4):
            n = 4 * g + p
            if first and n == min(w, 31):
                sstamp(a, o, 1)
                loader_late_setup(a, o)
                sstamp(a, o, 2)
            if not first or n >= w:
                a(f"  s_waitcnt vmcnt({w - 1})")
                if first and n == w:
                    sstamp(a, o, 3)
            elif p == 0:
                a("  s_nop 0")
            a(f"  buffer_load_dwordx4 v{VDA + p}, {sr(SA, 4)}, s{S_OFFA} offen offset:{1024 * p}{o.aux} lds")
            if n == barrier_at:
                lbarrier(a, o)
        if o.rsel and g & 1:
            masked_inc(a, S_OFFA)
        else:
            nxt = spread(g + 1, o.bits[4:7]) if g < 7 else o.ustride
            add_imm(a, f"s{S_OFFA}", nxt - spread(g, o.bits[4:7]))
        a("  s_addk_i32 m0, 4096")


def dispatch(a, lo, hi):
    if lo == hi:
        a(f"  s_branch L_ld_v{lo}")
        return
    mid = (lo + hi + 1) // 2
    a(f"  s_cmp_ge_u32 s{S_T}, {mid}")
    if mid == hi:
        a(f"  s_cbranch_scc1 L_ld_v{mid}")
        dispatch(a, lo, mid - 1)
        return
    a(f"  s_cbranch_scc1 L_dsp_{mid}_{hi}")
    dispatch(a, lo, mid - 1)
    a(f"L_dsp_{mid}_{hi}:")
    dispatch(a, mid, hi)


def loader_late_setup(a, o):
    b = o.bits
    pconst = [spread(p, b[2:4]) - 1024 * p for p in range(4)]
    a(f"""
  s_add_u32 s{S_BB}, s{S_ARG + 4}, s{S_T}
  s_addc_u32 s{S_BB + 1}, s{S_ARG + 5}, s{S_T + 2}
  v_lshlrev_b32 v12, 1, v3
  v_xor_b32 v12, v2, v12
  v_lshl_add_u32 v{VDB}, v12, 4, v1
  v_xor_b32 v13, 8, v12
  v_lshl_add_u32 v{VDB + 1}, v13, 4, v1
  v_add_u32 v{VDB + 2}, {pconst[2]}, v{VDB}
  v_add_u32 v{VDB + 3}, {pconst[3]}, v{VDB + 1}
  v_add_u32 v{VDB + 1}, {pconst[1]}, v{VDB + 1}
  v_mov_b32 v12, {LDS_WIN}
  s_mov_b32 s{S_I}, 1
  s_mov_b32 s{SQ}, s{S_ARG + 6}
  s_mov_b32 s{SQ + 1}, s{S_ARG + 7}
  s_mov_b32 s{SQ + 2}, 0x200000
  s_mov_b32 s{SQ + 3}, 0x20000
  s_lshl_b32 s{S_KEEP}, s{S_PAIR}, 14
  s_lshl_b32 s{S_T + 3}, s{S_HALF}, 7
  s_or_b32 s{S_KEEP}, s{S_KEEP}, s{S_T + 3}
  v_lshlrev_b32 v14, 8, v0
  s_mov_b32 s{SW}, s{S_ARG + 10}
  s_mov_b32 s{SW + 1}, s{S_ARG + 11}
  s_mov_b32 s{SW + 2}, {WS_SIZE}
  s_mov_b32 s{SW + 3}, 0x20000
  s_lshl_b32 s{S_BLK}, s{S_PAIR}, 11
  s_add_u32 s{S_BLK}, s{S_BLK}, {WS_BLK}
  v_lshlrev_b32 v15, 5, v0
  v_and_b32 v18, 7, v0
  v_lshlrev_b32 v19, 1, v3
  v_xor_b32 v18, v18, v19
  v_lshl_add_u32 v18, v18, 4, s{S_T + 1}
  v_bfe_u32 v19, v0, 3, 1
  v_lshl_add_u32 v18, v19, {b[0]}, v18
  v_bfe_u32 v19, v0, 4, 1
  v_lshl_add_u32 v18, v19, {b[1]}, v18
  v_lshrrev_b32 v19, 5, v0
  v_lshl_add_u32 v18, v19, {b[2]}, v18
  v_add_u32 v{VDT + 4}, s{S_T + 3}, v18
""")
    for p in range(1, 4):
        a(f"  v_add_u32 v{VDT + 4 + p}, {spread(p, b[3:5]) - 1024 * p}, v{VDT + 4}")
    for p in range(4):
        a(f"  v_xor_b32 v{VDT + p}, 128, v{VDT + 4 + p}")
    if o.lstamp:
        a(f"  s_mov_b32 s{S_TS + 2}, 0")


def loader(a, o):
    wins, b = o.wins, o.bits
    multi = len(wins) > 1
    nfull = 32 - o.tu
    a(f"""
  s_setprio 3
  v_and_b32 v2, 15, v0
  v_lshrrev_b32 v3, 4, v0
  s_lshl_b32 s{S_T + 1}, s{S_HALF}, {o.split}
  s_addk_i32 s{S_T + 1}, {BIAS}
""")
    if b[1] == b[0] + 1:
        a(f"  v_lshl_add_u32 v1, v3, {b[0]}, s{S_T + 1}")
    else:
        a(f"""
  v_and_b32 v1, 1, v3
  v_lshl_add_u32 v1, v1, {b[0]}, s{S_T + 1}
  v_lshrrev_b32 v12, 5, v0
  v_lshl_add_u32 v1, v12, {b[1]}, v1
""")
    a("  v_xor_b32 v12, v2, v3")
    for p in range(4):
        c = spread(p, b[2:4]) - 1024 * p
        if p:
            a(f"  v_xor_b32 v13, {4 * p}, v12")
        a(f"  v_lshl_add_u32 v{VDA + p}, v{13 if p else 12}, 4, v1")
        if c:
            a(f"  v_add_u32 v{VDA + p}, {c}, v{VDA + p}")
    a(f"""
  s_mov_b32 s{SA + 2}, {0x100000 + BIAS}
  s_mov_b32 s{SA + 3}, 0x20000
  s_mov_b32 m0, 0
""")
    if o.rsel:
        assert b[6] == b[5] + 1
        mask = (3 << b[5]) | (15 * o.ustride)
        a(f"  s_mov_b32 s{S_MSK}, {hex(mask)}")
        a(f"  s_not_b32 s{S_NMSK}, s{S_MSK}")
        for k, sh in enumerate(o.rsel):
            a(f"  s_lshr_b32 s{S_OFFA if k == 0 else S_OFFB}, s{S_PAIR}, {sh}")
            if k:
                a(f"  s_add_u32 s{S_OFFA}, s{S_OFFA}, s{S_OFFB}")
        a(f"  s_and_b32 s{S_OFFA}, s{S_OFFA}, 3")
        a(f"  s_lshl_b32 s{S_OFFA}, s{S_OFFA}, {b[5]}")
    else:
        a(f"  s_mov_b32 s{S_OFFA}, 0")
    a(f"""
  s_mov_b32 s{S_OFFB}, s{S_OFFA}
  s_lshl_b32 s{S_T}, s{S_PAIR}, 20
  s_sub_u32 s{S_T}, s{S_T}, {BIAS}
  s_subb_u32 s{S_T + 2}, 0, 0
  s_waitcnt lgkmcnt(0)
  s_add_u32 s{SA}, s{S_ARG + 2}, s{S_T}
  s_addc_u32 s{SA + 1}, s{S_ARG + 3}, s{S_T + 2}
""")
    first = wins.index(o.winit)
    sstamp(a, o, 0)
    unit_body(a, o, o.winit, None, first=True)
    sstamp(a, o, 4)
    order = sorted(range(len(wins)), key=lambda i: (abs(i - first), i))

    def swap_block():
        a(f"""
L_ld_swap:
  s_mov_b64 s[{S_T + 4}:{S_T + 5}], s[{SA}:{SA + 1}]
  s_mov_b64 s[{SA}:{SA + 1}], s[{S_BB}:{S_BB + 1}]
  s_mov_b64 s[{S_BB}:{S_BB + 1}], s[{S_T + 4}:{S_T + 5}]
  s_mov_b32 s{S_T}, s{S_OFFA}
  s_mov_b32 s{S_OFFA}, s{S_OFFB}
  s_mov_b32 s{S_OFFB}, s{S_T}
""")
        for p in range(4):
            a(f"  v_swap_b32 v{VDA + p}, v{VDB + p}")
        if multi:
            a(f"""
  s_waitcnt lgkmcnt(0)
  v_readfirstlane_b32 s{S_T}, v13
L_ld_dispatch:
""")
        dispatch(a, 0, len(wins) - 1)

    for pos, vi in enumerate(order):
        w = wins[vi]
        if pos == 4 and o.align:
            a(".p2align 12")
        if pos >= 2 and pos % 2 == 0:
            touch(a, o)
        a(f"L_ld_v{vi}:")
        rd = "  ds_read_b32 v13, v12"
        early = w - 1 < 28
        unit_body(a, o, w, w - 1, mid=rd if multi and early else None)
        if multi and not early:
            a(rd)
        a(f"""
  s_cmp_ge_u32 m0, {UNIT * NS}
  s_cselect_b32 m0, 0, m0
  s_add_u32 s{S_I}, s{S_I}, 1
  s_and_b32 s{S_T}, s{S_I}, {o.run - 1}
  s_cbranch_scc0 L_ld_swap
  s_cmp_eq_u32 s{S_I}, {nfull}
  s_cbranch_scc1 L_ld_tail
""")
        if multi:
            a(f"""
  s_waitcnt lgkmcnt(0)
  v_readfirstlane_b32 s{S_T}, v13
  s_cmp_eq_u32 s{S_T}, {vi}
  s_cbranch_scc1 L_ld_v{vi}
  s_branch L_ld_dispatch
""")
        else:
            a(f"  s_branch L_ld_v{vi}")
        if pos == 0:
            swap_block()
    touch(a, o, last=True)
    w = o.wtail
    npre = 2
    total = 32 * o.tu
    preread = f"""
  buffer_load_dword v16, v14, {sr(SQ, 4)}, s{S_KEEP} offen{o.paux}
  buffer_load_dword v17, v15, {sr(SW, 4)}, s{S_BLK} offen{o.paux}
"""
    assert o.prepos <= w - 1
    marks = [0] + list(range(16, total, 16)) + [total - 8, total]
    a(f"""
L_ld_tail:
  s_mov_b32 s{S_OFFB}, s{S_OFFA}
""")
    slot = lambda k: max(1, k + 6 - len(marks))
    for g in range(total // 4):
        off = S_OFFA if g < total // 8 else S_OFFB
        for p in range(4):
            n = 4 * g + p
            if n == total - o.prepos:
                a(preread)
            a(f"  s_waitcnt vmcnt({w - 1 + (npre if n >= total - o.prepos else 0)})")
            a(f"  buffer_load_dwordx4 v{VDT + p + (0 if off == S_OFFA else 4)}, {sr(SA, 4)}, s{off} offen offset:{1024 * p}{o.aux} lds")
            if n - (w - 1) in marks:
                lbarrier(a, o, slot(marks.index(n - (w - 1))))
        if (g + 1) % (total // 8) and o.rsel:
            masked_inc(a, off)
        elif (g + 1) % (total // 8):
            nxt = spread((g & 3) + 1, b[5:7]) if g & 3 < 3 else o.ustride
            add_imm(a, f"s{off}", nxt - spread(g & 3, b[5:7]))
        if g + 1 < total // 4:
            a("  s_addk_i32 m0, 4096")
    if o.prepos == 0:
        a(preread)
    for k, m in enumerate(marks):
        if m + w - 1 >= total:
            left = total - m
            a(f"  s_waitcnt vmcnt({left + (npre if left >= o.prepos else 0)})")
            lbarrier(a, o, slot(k))
    if o.sstamp:
        for k in range(5):
            a(f"  s_mov_b32 s{S_TS + 2 + k}, s{86 + 2 * k}")
    if o.lstamp or o.sstamp:
        a(f"  s_lshl_b32 s{S_T}, s2, 5")
        a(f"  s_add_u32 s{S_T}, s{S_T}, {WS_STAMP + 32768}")
        for k in range(8):
            a(f"  v_mov_b32 v{32 + k}, s{S_TS + k}")
        a("  v_mov_b32 v40, 0")
        a(f"  buffer_store_dwordx4 v[32:35], v40, {sr(SW, 4)}, s{S_T} offen")
        a(f"  buffer_store_dwordx4 v[36:39], v40, {sr(SW, 4)}, s{S_T} offen offset:16")
    a("  s_endpgm")


def mfma(d, x, y, c):
    return f"  v_mfma_f32_16x16x32_bf16 {vr(d, 4)}, {vr(x, 4)}, {vr(y, 4)}, {'0' if c is None else vr(c, 4)}"


def scale_o(lo, n, al):
    return [f"  v_pk_mul_f32 {vr(r, 2)}, {vr(r, 2)}, {vr(al, 2)} op_sel_hi:[1,0]" for r in range(lo, lo + n, 2)]


def fma_o(lo, n, al, add):
    return [f"  v_pk_fma_f32 {vr(lo + r, 2)}, {vr(lo + r, 2)}, {vr(al, 2)}, {vr(add + r, 2)} op_sel_hi:[1,0,1]" for r in range(0, n, 2)]


def xlane_ops(op, reg, t0, t1):
    return [
        f"  v_mov_b32 v{t0}, v{reg}",
        f"  v_mov_b32 v{t1}, v{reg}",
        "  s_nop 1",
        f"  v_permlane32_swap_b32 v{t0}, v{t1}",
        f"  {op} v{t0}, v{t0}, v{t1}",
        f"  v_mov_b32 v{t1}, v{t0}",
        "  s_nop 1",
        f"  v_permlane16_swap_b32 v{t0}, v{t1}",
        f"  {op} v{reg}, v{t0}, v{t1}",
    ]


def shift_p():
    return [f"  v_mov_b64 {vr(VP + r, 2)}, {vr(VP + 16 + r, 2)}" for r in range(0, 48, 2)]


def shift_al():
    return [f"  v_mov_b32 v{VAL[k]}, v{VAL[k + 1]}" for k in range(7)]


def copy16(dst, src):
    return [f"  v_mov_b64 {vr(dst + r, 2)}, {vr(src + r, 2)}" for r in range(0, 16, 2)]


def next_slot():
    return [
        f"  s_add_u32 s{S_RD}, s{S_RD}, 1",
        f"  s_cmp_eq_u32 s{S_RD}, {NS}",
        f"  s_cselect_b32 s{S_RD}, 0, s{S_RD}",
        f"  s_mov_b32 s{S_DL}, {UNIT}",
        f"  s_cmov_b32 s{S_DL}, {-(NS - 1) * UNIT}",
    ]


def adv(r):
    return f"  v_add_u32 v{r}, s{S_DL}, v{r}"


def weight_ops(m2, l2, wa, wb):
    return [
        f"  v_max_f32 v{wb + 1}, v{VM}, v{m2}",
        f"  v_sub_f32 v{wa}, v{VM}, v{wb + 1}",
        f"  v_sub_f32 v{wb}, v{m2}, v{wb + 1}",
        f"  v_exp_f32 v{wa}, v{wa}",
        f"  v_exp_f32 v{wb}, v{wb}",
        f"  v_mul_f32 v{wa + 1}, v{VL}, v{wa}",
        f"  v_mul_f32 v{wb + 1}, v{l2}, v{wb}",
        f"  v_add_f32 v{wa + 1}, v{wa + 1}, v{wb + 1}",
        f"  v_rcp_f32 v{wa + 1}, v{wa + 1}",
        "  s_nop 0",
        f"  v_mul_f32 v{wa}, v{wa}, v{wa + 1}",
        f"  v_mul_f32 v{wb}, v{wb}, v{wa + 1}",
    ]


def unpack_ops(pk, tmp):
    v = []
    for h in range(8):
        v.append(f"  v_lshlrev_b32 v{tmp + 2 * h}, 16, v{pk + h}")
        v.append(f"  v_and_b32 v{tmp + 2 * h + 1}, 0xffff0000, v{pk + h}")
    return v


def merge_half(a, o, own, w_own, w_oth, tmp, dst, soff):
    a(scale_o(tmp, 16, w_oth))
    for m in range(2):
        a(fma_o(own + 8 * m, 8, w_own, tmp + 8 * m))
        d = dst + 4 * m
        for h in (0, 2, 1, 3):
            a(f"  v_cvt_pk_bf16_f32 v{d + h}, v{own + 8 * m + 2 * h}, v{own + 8 * m + 2 * h + 1}")
        a(f"  v_permlane16_swap_b32 v{d}, v{d + 2}")
        a("  s_nop 0")
        a(f"  v_permlane16_swap_b32 v{d + 1}, v{d + 3}")
        a(f"  buffer_store_dwordx4 {vr(d, 4)}, v{VOUT}, {sr(SQ, 4)}, s{soff} offen offset:{64 * m}{o.oaux}")


def prologue(a, o):
    c = (128 ** -0.5) * math.log2(math.e)
    multi = len(o.wins) > 1
    a(f"""
L_compute:
  s_sub_u32 s{S_WAVE}, s{S_WAVE}, 1
  v_and_b32 v{VLANE}, 63, v0
  v_and_b32 v2, 15, v0
  v_bfe_u32 v3, v0, 4, 2
  s_mov_b32 s{SQ + 2}, 0x200000
  s_mov_b32 s{SQ + 3}, 0x20000
  s_mov_b32 s{SW + 2}, {WS_SIZE}
  s_mov_b32 s{SW + 3}, 0x20000
  s_mov_b32 s{SD + 2}, 256
  s_mov_b32 s{SD + 3}, 0x20000
  s_lshl_b32 s{S_T}, s{S_PAIR}, 2
  s_add_u32 s{S_T}, s{S_T}, s{S_WAVE}
  s_lshl_b32 s{S_OUT}, s{S_T}, 12
  s_lshl_b32 s{S_BLK}, s{S_T}, 9
  s_add_u32 s{S_BLK}, s{S_BLK}, {WS_BLK}
  s_lshl_b32 s{S_T}, s{S_HALF}, 7
  s_add_u32 s{S_KEEP}, s{S_OUT}, s{S_T}
  s_xor_b32 s{S_SEND}, s{S_KEEP}, 128
  v_lshlrev_b32 v{VT}, 8, v2
  v_lshl_add_u32 v{VBOX}, v3, 4, v{VT}
  v_mov_b32 v{VZ}, 0
  v_min_u32 v{VCA}, 32, v{VLANE}
  v_lshlrev_b32 v{VCA}, 2, v{VCA}
  s_getreg_b32 s{S_ID}, hwreg(HW_REG_XCC_ID, 0, 4)
  s_mul_i32 s{S_LOC}, s{S_ID}, {REP_STRIDE}
  s_add_u32 s{S_LOC}, s{S_LOC}, {WS_LOC}
  s_or_b32 s{S_ID}, s{S_ID}, 16
  s_lshr_b32 s{S_SLOT}, s2, 3
  s_mul_i32 s{S_REPV}, s{S_SLOT}, {REP_STRIDE}
  s_add_u32 s{S_REPV}, s{S_REPV}, {WS_REP}
  s_mul_i32 s{S_REP}, s{S_SLOT}, {o.gstep}
  s_add_u32 s{S_REP}, s{S_REP}, {o.gfirst}
  s_cmp_le_u32 s{S_REP}, {o.glast}
  s_cselect_b32 s{S_REP}, s{S_REP}, 64
  s_cmp_eq_u32 s{S_WAVE}, 1
  s_cselect_b32 s{S_CTL}, {1 if multi else 0}, 0
  s_waitcnt lgkmcnt(0)
  s_mov_b32 s{SQ}, s{S_ARG}
  s_mov_b32 s{SQ + 1}, s{S_ARG + 1}
  s_mov_b32 s{SW}, s{S_ARG + 10}
  s_mov_b32 s{SW + 1}, s{S_ARG + 11}
  s_mov_b32 s{SD}, s{S_ARG + 8}
  s_mov_b32 s{SD + 1}, s{S_ARG + 9}
""")
    qload = lambda s: f"  buffer_load_dwordx4 {vr(VQ + 4 * s, 4)}, v{VBOX}, {sr(SQ, 4)}, s{S_OUT} offen offset:{64 * s}{o.qaux}"
    qplan = [int(x) for x in o.qplan.split(",")]
    a([qload(s) for s in range(qplan[0])])
    a(f"""
  {"; " if "f" in o.x else ""}buffer_load_dwordx4 {vr(VFL, 4)}, v{VZ}, {sr(SW, 4)}, s{S_BLK} offen offset:256 sc1
  s_cmp_eq_u32 s{S_CTL}, 0
  s_cbranch_scc1 L_nobase
  {"; " if "l" in o.x else ""}buffer_load_dword v{VCB}, v{VCA}, {sr(SW, 4)}, s{S_LOC} offen sc1
  s_cmp_ge_u32 s{S_REP}, {o.glead if o.glead else 99}
  s_cbranch_scc1 L_nobase
  buffer_load_dword v{VG0}, v{VZ}, {sr(SW, 4)}, s{S_REPV} offen{o.gaux}
L_nobase:
  v_mov_b32 v{VT + 3}, {LDS_WIN}
  v_mov_b32 v{VT + 4}, {o.wins.index(o.winit)}
  ds_write_b32 v{VT + 3}, v{VT + 4}
  s_and_b32 s{S_SH}, s{S_PAIR}, 3
  s_lshl_b32 s{S_SH}, s{S_SH}, 3
  s_and_b32 s{S_DW}, s{S_PAIR}, 0x7c
  v_xor_b32 v{VT + 1}, v2, v3
""")
    for s in range(4):
        a(f"  v_xor_b32 v{VT + 3}, {4 * s}, v{VT + 1}")
        a(f"  v_lshl_add_u32 v{VKA + s}, v{VT + 3}, 4, v{VT}")
    a(f"""
  s_lshl_b32 s{S_T}, s{S_HALF}, 3
  s_xor_b32 s{S_T}, s{S_T}, 8
  v_bfe_u32 v{VT}, v0, 2, 4
  v_and_b32 v{VT + 1}, 7, v{VT}
  v_lshlrev_b32 v{VT + 1}, 1, v{VT + 1}
  v_xor_b32 v{VT + 1}, s{S_T}, v{VT + 1}
  v_lshlrev_b32 v{VT}, 8, v{VT}
  v_and_b32 v{VT + 3}, 3, v0
  v_lshl_add_u32 v{VT}, v{VT + 3}, 3, v{VT}
""")
    for j in range(8):
        a(f"  v_xor_b32 v{VT + 3}, {2 * j}, v{VT + 1}")
        a(f"  v_lshl_add_u32 v{VVA + j}, v{VT + 3}, 4, v{VT}")
    for r in range(0, 32, 2):
        a(f"  v_mov_b64 {vr(VO + r, 2)}, 0")
    a(f"""
  v_mov_b32 v{VM}, 0xff800000
  v_mov_b32 v{VL}, 0
  v_mov_b32 v{VCT}, 0
  v_lshlrev_b32 v{VML}, 3, v2
  s_lshl_b32 s{S_T}, s{S_WAVE}, 12
  s_add_u32 s{S_T}, s{S_T}, {LDS_P}
  v_lshl_add_u32 v{VPL}, v{VLANE}, 4, s{S_T}
  s_mov_b32 s{S_C}, {f32hex(c)}
  s_mov_b32 s{S_C + 1}, s{S_C}
  s_mov_b32 s{S_RD}, 0
  s_mov_b32 s{S_I}, 0
  s_cmp_eq_u32 s{S_WAVE}, 0
  s_cselect_b32 s{S_HOOK}, {o.hello}, {o.sent}
  s_lshl_b32 s{S_T}, s{S_HALF}, 7
  s_add_u32 s{S_MLO}, s{S_BLK}, s{S_T}
  s_xor_b32 s{S_MLP}, s{S_MLO}, 128
  s_lshl_b32 s{S_T}, s{S_HALF}, 2
  s_add_u32 s{S_FLO}, s{S_BLK}, s{S_T}
  s_xor_b32 s{S_FLP}, s{S_FLO}, 4
""")
    done = qplan[0]
    for n in qplan[1:]:
        a("  s_waitcnt vmcnt(0)")
        a([qload(s) for s in range(done, done + n)])
        done += n
    a(f"  s_mov_b32 s{SQ}, s{S_ARG + 6}")
    a(f"  s_mov_b32 s{SQ + 1}, s{S_ARG + 7}")
    if o.stamp:
        a(f"  s_mov_b32 s{S_WSUM}, 0")
    a("  s_waitcnt lgkmcnt(0)")


def k_body(a, o):
    t0, t1, mx = VT, VT + 1, VT + 2
    al = VAL[7]
    pnew = VF
    lds = LdsTracker(a)
    reads = [f"  ds_read_b128 {vr(VF + 4 * (n % 16), 4)}, v{VKA + n % 4} offset:{4096 * (n // 4)}" for n in range(32)]
    fill = shift_al() + next_slot()
    for n in range(o.nprek):
        lds.issue(reads[n])
        if n >= 1:
            for _ in range(2):
                if fill:
                    a(fill.pop(0))
    a(fill)
    pend = reads[o.nprek:]
    mxs = [f"  v_max3_f32 v{mx}, v{VS}, v{VS + 1}, v{VS + 2}"]
    mxs += [f"  v_max3_f32 v{mx}, v{mx}, v{VS + r}, v{VS + r + 1}" for r in range(3, 31, 2)]
    k = 0
    pads = [adv(VVA + j) for j in range(8)]
    for n in range(32):
        t, s = divmod(n, 4)
        if s == 0:
            lds.need(n + 4)
        a(mfma(VS + 4 * t, VF + 4 * (n % 16), VQ + 4 * s, None if s == 0 else VS + 4 * t))
        if pend:
            lds.issue(pend.pop(0))
        elif pads:
            a(pads.pop(0))
        if t >= 2 and s in (1, 3) and 2 * k + 2 < 4 * (t - 1):
            a(mxs[k]); k += 1
    a(pads)
    a([adv(VKA + s) for s in range(4)])
    while 2 * k + 2 < 28:
        a(mxs[k]); k += 1
    a("  s_nop 2")
    a(mxs[k:])
    a(f"""
  v_max_f32 v{t0}, v{mx}, v{VS + 31}
  v_max_f32 v{t1}, v{mx}, v{VS + 31}
  s_nop 1
  v_permlane32_swap_b32 v{t0}, v{t1}
  v_max_f32 v{mx}, v{t0}, v{t1}
  v_max_f32 v{t1}, v{t0}, v{t1}
  s_nop 1
  v_permlane16_swap_b32 v{mx}, v{t1}
  v_max_f32 v{mx}, v{mx}, v{t1}
  v_mul_f32 v{mx}, s{S_C}, v{mx}
  v_max_f32 v{mx}, v{mx}, v{VM}
  v_sub_f32 v{al}, v{VM}, v{mx}
  v_mov_b32 v{VM}, v{mx}
  v_exp_f32 v{al}, v{al}
""")
    for r in range(0, 32, 2):
        a(f"  v_pk_fma_f32 {vr(VS + r, 2)}, {vr(VS + r, 2)}, s[{S_C}:{S_C + 1}], {vr(mx, 2)} op_sel_hi:[1,1,0] neg_lo:[0,0,1] neg_hi:[0,0,1]")
    for r in range(32):
        a(f"  v_exp_f32 v{VS + r}, v{VS + r}")
    for r in range(16):
        a(f"  v_cvt_pk_bf16_f32 v{pnew + r}, v{VS + 2 * r}, v{VS + 2 * r + 1}")
    for step in (16, 8, 4, 2):
        for r in range(0, step, 2):
            a(f"  v_pk_add_f32 {vr(VS + r, 2)}, {vr(VS + r, 2)}, {vr(VS + r + step, 2)}")
    a(f"  v_add_f32 v{VS}, v{VS}, v{VS + 1}")
    a(f"  v_fma_f32 v{VL}, v{VL}, v{al}, v{VS}")
    a(f"""
  s_and_b32 s{S_T}, s{S_I}, 7
  s_add_u32 s{S_I}, s{S_I}, 1
  s_cmp_ge_u32 s{S_T}, 4
  s_cbranch_scc1 L_park2
""")
    a(shift_p() + copy16(VP + 48, pnew))
    a(f"""
  s_branch L_loop
L_park2:
  s_cmp_eq_u32 s{S_T}, 7
  s_cbranch_scc1 L_park3
""")
    for k in range(4):
        a(f"  ds_write_b128 v{VPL}, {vr(pnew + 4 * k, 4)} offset:{1024 * k}")
    a(f"""
  v_add_u32 v{VPL}, 16384, v{VPL}
  s_waitcnt lgkmcnt(0)
  s_branch L_loop
L_park3:
  v_subrev_u32 v{VPL}, {3 * 16384}, v{VPL}
""")
    a(copy16(VS, pnew))
    a("  s_branch L_loop")


def pv_block(a, items, fill=(), head=(), valu=(), per=0):
    lds = LdsTracker(a)
    reads = [f"  ds_read_b64_tr_b16 {vr(VF + 4 * (n % 16) + 2 * t, 2)}, v{ad} offset:{off + t * step}"
             for n, (ad, off, step, _, _) in enumerate(items) for t in range(2)]
    fill, valu = list(fill), list(valu)
    for n, r in enumerate(reads[:12]):
        lds.issue(r)
        if n >= 2:
            for _ in range(2):
                if fill:
                    a(fill.pop(0))
    a(fill)
    a(head)
    pend = reads[12:]
    for n, (_, _, _, acc, p) in enumerate(items):
        if len(items) <= 16 or n % 2 == 0:
            lds.need(min(len(reads), 2 * (n + 1) if len(items) <= 16 else 2 * (n + 2)))
        a(mfma(acc, VF + 4 * (n % 16), p, acc))
        for _ in range(2):
            if pend:
                lds.issue(pend.pop(0))
        for _ in range(per):
            if valu:
                a(valu.pop(0))
    a(valu)


def v_body(a, o):
    items = [(VVA + j, 8192 * kb, 4096, VO + 4 * j, VP + 4 * kb) for kb in range(4) for j in range(8)]
    pv_block(a, items, fill=scale_o(VO, 32, VAL[0]) + next_slot())
    a([adv(VKA + s) for s in range(4)] + [adv(VVA + j) for j in range(8)])
    a(shift_al() + shift_p())
    a(f"""
  s_and_b32 s{S_T}, s{S_I}, 7
  s_add_u32 s{S_I}, s{S_I}, 1
  s_cmp_gt_u32 s{S_T}, 3
  s_cbranch_scc1 L_refilled
  s_cmp_eq_u32 s{S_T}, 3
  s_cbranch_scc1 L_refill2
""")
    for k in range(4):
        a(f"  ds_read_b128 {vr(VP + 48 + 4 * k, 4)}, v{VPL} offset:{1024 * k}")
    a(f"""
  v_add_u32 v{VPL}, 16384, v{VPL}
  s_waitcnt lgkmcnt(0)
  s_branch L_loop
L_refill2:
  v_subrev_u32 v{VPL}, {3 * 16384}, v{VPL}
""")
    a(copy16(VP + 48, VS))
    a("L_refilled:")


def cycle_probe(a, o, tag):
    if o.estamp == 4:
        a(f"""
  s_memtime s[90:91]
  s_waitcnt lgkmcnt(0)
  s_sub_u32 s{S_TS + (6 if tag == "k" else 8)}, s90, s88
""")


def mainloop(a, o):
    a(f"""
L_loop:
  s_cmp_lg_u32 s{S_CTL}, 0
  s_barrier
  s_waitcnt vmcnt(0)
  s_cbranch_scc1 L_ctl
L_ctl_ret:
  s_cmp_eq_u32 s{S_I}, s{S_HOOK}
  s_cbranch_scc1 L_hook
L_hook_ret:
""")
    if o.stamp and not o.estamp:
        for idx, it in ((3, o.st[0]), (4, o.st[1]), (5, o.st[2])):
            a(f"  s_cmp_lg_u32 s{S_I}, {it}")
            a(f"  s_cbranch_scc1 L_nostamp{idx}")
            stamp(a, o, idx, True)
            a(f"L_nostamp{idx}:")
    if o.trace:
        a(f"""
  s_cmp_lg_u32 s{S_WAVE}, 2
  s_cbranch_scc1 L_notrace
  s_memrealtime s[88:89]
  s_mov_b32 m0, s{S_I}
  s_waitcnt lgkmcnt(0)
  v_writelane_b32 v{VAT}, s88, m0
L_notrace:
""")
    if o.estamp == 4:
        a("  s_memtime s[88:89]")
        a("  s_waitcnt lgkmcnt(0)")
    a(f"""
  s_bitcmp1_b32 s{S_I}, {o.run.bit_length() - 1}
  s_cbranch_scc1 L_vbody
""")
    k_body(a, o)
    a("L_vbody:")
    v_body(a, o)
    a(f"""
  s_cmp_lt_u32 s{S_I}, {32 - o.tu}
  s_cbranch_scc1 L_loop
""")


def epilogue(a, o):
    m2, l2, mm = VT, VT + 1, VT + 2
    wa, wb = VT + 4, VT + 6
    PK, B2, tmp, dst = VS, VS + 8, VP + 32, VS + 24
    snd = VP + 48

    def fetch(ml, pk):
        return f"""
  buffer_load_dwordx2 {vr(ml, 2)}, v{VML}, {sr(SW, 4)}, s{S_MLP} offen sc1
  buffer_load_dwordx4 {vr(pk, 4)}, v{VBOX}, {sr(SQ, 4)}, s{S_KEEP} offen sc1
  buffer_load_dwordx4 {vr(pk + 4, 4)}, v{VBOX}, {sr(SQ, 4)}, s{S_KEEP} offen offset:64 sc1
"""
    check = [
        f"  v_max3_u32 v{mm}, v{m2}, v{l2}, v{PK}",
        f"  v_max3_u32 v{mm + 1}, v{PK + 1}, v{PK + 2}, v{PK + 3}",
        f"  v_max3_u32 v{mm}, v{mm}, v{PK + 4}, v{PK + 5}",
        f"  v_max3_u32 v{mm + 1}, v{mm + 1}, v{PK + 6}, v{PK + 7}",
        f"  v_max_u32 v{mm}, v{mm}, v{mm + 1}",
        f"  v_cmp_eq_u32 vcc, -1, v{mm}",
    ]
    ready = f"""
  v_cmp_ne_u32 vcc, v{VFL + 1}, v{VRDY}
  s_cbranch_vccz L_notready
L_ready:
{fetch(m2, PK)}
L_nofetch:
"""

    def part(q, u, acc, kbs):
        return [(VKA + jj, 16384 * q + 4096 * kb, 2048, acc + 4 * jj, VP + 16 * u + 4 * kb) for kb in kbs for jj in range(4)]

    a(f"""
  v_bfe_u32 v{VT + 4}, v{VLANE}, 3, 2
  v_lshlrev_b32 v{VT + 4}, 1, v{VT + 4}
  v_lshrrev_b32 v{VT + 3}, 2, v{VLANE}
  v_lshlrev_b32 v{VT + 3}, 7, v{VT + 3}
  v_and_b32 v{VT + 5}, 3, v{VLANE}
  v_lshl_add_u32 v{VT + 3}, v{VT + 5}, 3, v{VT + 3}
""")
    base = ((32 - o.tu) % NS) * UNIT
    if base:
        a(f"  v_add_u32 v{VT + 3}, {base}, v{VT + 3}")
    for jj in range(4):
        a(f"  v_xor_b32 v{VT + 5}, {2 * jj}, v{VT + 4}")
        a(f"  v_lshl_add_u32 v{VKA + jj}, v{VT + 5}, 4, v{VT + 3}")
    a(scale_o(VO, 32, VAL[0]))
    a(xlane_ops("v_add_f32", VL, VT, VT + 1))
    a(f"""
  v_min_u32 v{VM}, -2, v{VM}
  v_min_u32 v{VL}, -2, v{VL}
  buffer_store_dwordx2 {vr(VM, 2)}, v{VML}, {sr(SW, 4)}, s{S_MLO} offen
  v_lshlrev_b32 v{VOUT}, 5, v{VML}
  v_bfe_u32 v{VT + 3}, v{VLANE}, 4, 1
  v_lshl_add_u32 v{VOUT}, v{VT + 3}, 5, v{VOUT}
  v_lshrrev_b32 v{VT + 3}, 5, v{VLANE}
  v_lshl_add_u32 v{VOUT}, v{VT + 3}, 4, v{VOUT}
  s_mov_b32 s{S_I}, {SPIN}
  s_cmp_lg_u32 s{S_MODE}, 0
""")
    for u in range(o.tu):
        a("  s_barrier")
        pv_block(a, part(u, u, VO, range(4)))
        if u + 1 < o.tu:
            a("  s_nop 2")
            a(scale_o(VO, 16, VAL[u + 1]))
    a("  s_nop 1")
    a("  s_cbranch_scc1 L_nosend")
    for m in range(2):
        for r in range(4):
            a(f"  v_cvt_pk_bf16_f32 v{snd + 4 * m + r}, v{VO + 8 * m + 2 * r}, v{VO + 8 * m + 2 * r + 1}")
        for r in range(4):
            a(f"  v_min_u32 v{snd + 4 * m + r}, -2, v{snd + 4 * m + r}")
        a(f"  buffer_store_dwordx4 {vr(snd + 4 * m, 4)}, v{VBOX}, {sr(SQ, 4)}, s{S_SEND} offen offset:{64 * m}")
    a("L_nosend:")
    if o.estamp == 1:
        stamp(a, o, 3, True)
    for u in range(o.tu - 1):
        a("  s_barrier")
        pv_block(a, part(o.tu + u, u, VO + 16, range(4)))
        a("  s_nop 2")
        a(scale_o(VO + 16, 16, VAL[u + 1]))
    last = o.tu - 1
    if o.fetch != "d":
        a(ready)
    a("  s_barrier")
    pv_block(a, part(o.tu + last, last, VO + 16, (0, 1)))
    if o.fetch == "d":
        a(ready)
    if o.fetch == "cd":
        a(fetch(B2 + 8, B2))
    if o.estamp == 1:
        stamp(a, o, 4, True)
    a(f"  s_cmp_lg_u32 s{S_MODE}, 0")
    a("  s_barrier")
    stamp(a, o, 1, True)
    prep = weight_ops(m2, l2, wa, wb) + unpack_ops(PK, tmp)
    wait = f"  s_waitcnt vmcnt({3 if o.fetch == 'cd' else 0})"
    pv_block(a, part(o.tu + last, last, VO + 16, (2, 3)), head=[wait] + check, valu=prep, per=4)
    a("""
  s_cbranch_scc1 L_generic
  s_cbranch_vccnz L_retry
L_merge:
""")
    if o.estamp == 1:
        stamp(a, o, 5)
    merge_half(a, o, VO + 16, wa, wb, tmp, dst, S_KEEP)
    a("L_done:")
    if o.stamp:
        a("  s_waitcnt vmcnt(0)")
        stamp(a, o, 2, True)
        a(f"""
  s_lshl_b32 s{S_T}, s2, 2
  s_add_u32 s{S_T}, s{S_T}, s{S_WAVE}
  s_lshl_b32 s{S_T}, s{S_T}, 5
  s_add_u32 s{S_T}, s{S_T}, {WS_STAMP}
  v_mov_b32 v4, s{S_TS}
  v_mov_b32 v5, s{S_TS + 2}
  v_mov_b32 v6, s{S_TS + 4}
  s_and_b32 s{S_T + 1}, s{S_ID}, 15
  s_lshl_b32 s{S_T + 2}, s{S_MODE}, 4
  s_or_b32 s{S_T + 1}, s{S_T + 1}, s{S_T + 2}
  v_mov_b32 v7, s{S_T + 1}
  buffer_store_dwordx4 v[4:7], v{VZ}, {sr(SW, 4)}, s{S_T} offen
  v_mov_b32 v12, s{S_TS + 6}
  v_mov_b32 v13, s{S_TS + 8}
  v_mov_b32 v14, s{S_TS + 10}
  v_mov_b32 v15, s{S_WSUM}
  buffer_store_dwordx4 v[12:15], v{VZ}, {sr(SW, 4)}, s{S_T} offen offset:16
""")
    if o.trace:
        a(f"""
  s_cmp_lg_u32 s{S_WAVE}, 2
  s_cbranch_scc1 L_end
  v_writelane_b32 v{VAT}, s{S_TS + 2}, 31
  v_writelane_b32 v{VAT}, s{S_TS}, 30
  s_lshl_b32 s{S_T}, s2, 7
  s_add_u32 s{S_T}, s{S_T}, {WS_STAMP + 32768}
  v_lshlrev_b32 v4, 2, v{VLANE}
  s_mov_b64 exec, 0xffffffff
  buffer_store_dword v{VAT}, v4, {sr(SW, 4)}, s{S_T} offen
""")
    if o.diag:
        diag(a, o)
    a("""
L_end:
  s_endpgm
L_retry:
""")
    if o.fetch == "cd":
        a("  s_waitcnt vmcnt(0)")
        a(f"  v_mov_b64 {vr(m2, 2)}, {vr(B2 + 8, 2)}")
        for r in range(0, 8, 2):
            a(f"  v_mov_b64 {vr(PK + r, 2)}, {vr(B2 + r, 2)}")
        a("  s_branch L_recheck")
    a("L_refetch:")
    a(fetch(m2, PK))
    a(f"""
  s_sub_u32 s{S_I}, s{S_I}, 1
  s_cbranch_scc1 L_end
  s_waitcnt vmcnt(0)
L_recheck:
""")
    a(check)
    a("  s_cbranch_vccnz L_refetch")
    a(prep)
    a(f"""
  s_branch L_merge
L_notready:
  s_cmp_lg_u32 s{S_MODE}, 0
  s_cbranch_scc1 L_nofetch
  buffer_load_dword v{VRDY}, v{VZ}, {sr(SW, 4)}, s{S_FLP} offen offset:256 sc1
  buffer_load_dword v{VT + 3}, v{VZ}, {sr(SD, 4)}, s{S_DW} offen sc1
  s_sub_u32 s{S_I}, s{S_I}, 1
  s_cbranch_scc1 L_end
  s_waitcnt vmcnt(0)
  v_cmp_ne_u32 vcc, v{VFL + 1}, v{VRDY}
  s_cbranch_vccnz L_ready
  v_bfe_u32 v{VT + 3}, v{VT + 3}, s{S_SH}, 1
  v_cmp_ne_u32 vcc, 0, v{VT + 3}
  s_cbranch_vccz L_notready
  s_mov_b32 s{S_MODE}, 2
  s_branch L_nofetch
""")
    a(f"""
L_generic:
  s_waitcnt vmcnt(0)
  s_lshl_b32 s{S_T}, s{S_PAIR}, 2
  s_add_u32 s{S_T}, s{S_T}, s{S_WAVE}
  s_lshl_b32 s{S_T + 1}, s{S_T}, 13
  s_add_u32 s{S_T + 3}, s{S_T + 1}, 4096
  s_lshl_b32 s{S_T + 2}, s{S_T}, 9
  s_add_u32 s{S_T + 2}, s{S_T + 2}, {WS_DML}
  s_lshl_b32 s{S_T + 4}, 2, s{S_SH}
  v_lshlrev_b32 v{VT + 8}, 4, v{VLANE}
  v_lshlrev_b32 v{VT + 3}, 3, v{VLANE}
  s_cmp_eq_u32 s{S_MODE}, 1
  s_cbranch_scc0 L_second
  buffer_store_dwordx2 {vr(VM, 2)}, v{VT + 3}, {sr(SW, 4)}, s{S_T + 2} offen sc1
""")
    for j in range(8):
        so = S_T + 1 if j < 4 else S_T + 3
        a(f"  buffer_store_dwordx4 {vr(VO + 4 * j, 4)}, v{VT + 8}, {sr(SW, 4)}, s{so} offen offset:{1024 * (j & 3)} sc1")
    a(f"""
  s_waitcnt vmcnt(0)
  s_barrier
  s_cmp_eq_u32 s{S_WAVE}, 0
  s_cbranch_scc0 L_done
  v_mov_b32 v{VT}, s{S_T + 4}
  s_mov_b64 exec, 1
  buffer_atomic_or v{VT}, v{VZ}, {sr(SD, 4)}, s{S_DW} offen sc1
  s_mov_b64 exec, -1
  s_branch L_done
L_second:
  buffer_load_dword v{VT}, v{VZ}, {sr(SD, 4)}, s{S_DW} offen sc1
  s_sub_u32 s{S_I}, s{S_I}, 1
  s_cbranch_scc1 L_end
  s_waitcnt vmcnt(0)
  v_and_b32 v{VT}, s{S_T + 4}, v{VT}
  v_cmp_ne_u32 vcc, 0, v{VT}
  s_cbranch_vccz L_second
  buffer_load_dwordx2 {vr(m2, 2)}, v{VT + 3}, {sr(SW, 4)}, s{S_T + 2} offen sc1
""")
    for j in range(8):
        so = S_T + 1 if j < 4 else S_T + 3
        a(f"  buffer_load_dwordx4 {vr(VF + 4 * j, 4)}, v{VT + 8}, {sr(SW, 4)}, s{so} offen offset:{1024 * (j & 3)} sc1")
    a("  s_waitcnt vmcnt(0)")
    a(weight_ops(m2, l2, wa, wb))
    for r in range(8):
        a(f"  v_cvt_pk_bf16_f32 v{PK + r}, v{VF + 2 * r}, v{VF + 2 * r + 1}")
        a(f"  v_cvt_pk_bf16_f32 v{B2 + r}, v{VO + 2 * r}, v{VO + 2 * r + 1}")
    a(unpack_ops(PK, tmp))
    merge_half(a, o, VO + 16, wa, wb, tmp, dst, S_KEEP)
    a(unpack_ops(B2, tmp))
    merge_half(a, o, VF + 16, wb, wa, tmp, snd, S_SEND)
    a("  s_branch L_done")


def diag(a, o):
    ts = lambda i: S_TS + 2 * i
    kind, idx, ref = (o.diag.split(":") + ["0"])[:3]
    idx, ref = int(idx), int(ref)
    T = S_T
    a(f"""
  s_add_u32 s{T + 1}, s{ts(0)}, 8000
L_dg0:
  s_sleep 8
  s_memrealtime s[{T + 2}:{T + 3}]
  s_waitcnt lgkmcnt(0)
  s_sub_u32 s{T + 2}, s{T + 2}, s{T + 1}
  s_cmp_lt_i32 s{T + 2}, 0
  s_cbranch_scc1 L_dg0
  s_mov_b64 exec, 1
  s_not_b32 s{T}, s{ts(0)}
  v_mov_b32 v4, s{T}
  buffer_atomic_umax v4, v{VZ}, {sr(SD, 4)}, 0 offen offset:244 sc1
  v_mov_b32 v5, s{ts(idx)}
  s_sub_u32 s{T}, s{ts(idx)}, s{ts(ref)}
  v_mov_b32 v6, s{T}
  buffer_atomic_umax v5, v{VZ}, {sr(SD, 4)}, 0 offen offset:248 sc1
  buffer_atomic_add v{6 if kind == "rel" else 5}, v{VZ}, {sr(SD, 4)}, 0 offen offset:252 sc1
  s_or_b32 s{T}, s2, s{S_WAVE}
  s_cmp_lg_u32 s{T}, 0
  s_cbranch_scc1 L_end
  s_add_u32 s{T + 1}, s{ts(0)}, 19000
L_dg1:
  s_memrealtime s[{T + 2}:{T + 3}]
  s_waitcnt lgkmcnt(0)
  s_sub_u32 s{T + 2}, s{T + 2}, s{T + 1}
  s_cmp_lt_i32 s{T + 2}, 0
  s_cbranch_scc1 L_dg1
  buffer_load_dword v4, v{VZ}, {sr(SD, 4)}, 0 offen offset:244 sc1
  buffer_load_dword v5, v{VZ}, {sr(SD, 4)}, 0 offen offset:{248 if kind == "max" else 252} sc1
  s_waitcnt vmcnt(0)
  v_readfirstlane_b32 s{T}, v4
  v_readfirstlane_b32 s{T + 1}, v5
  s_not_b32 s{T}, s{T}
""")
    if kind == "zero":
        a(f"  s_mov_b32 s{T + 1}, 0")
    elif kind == "max":
        a(f"  s_sub_u32 s{T + 1}, s{T + 1}, s{T}")
    elif kind == "rel":
        a(f"  s_lshr_b32 s{T + 1}, s{T + 1}, {10 - o.dgain}")
    else:
        a(f"  s_lshl_b32 s{T + 2}, s{T}, 10")
        a(f"  s_sub_u32 s{T + 1}, s{T + 1}, s{T + 2}")
        a(f"  s_lshr_b32 s{T + 1}, s{T + 1}, 10")
    a(f"""
  s_min_u32 s{T + 1}, s{T + 1}, 30000
  s_add_u32 s{T + 1}, s{T + 1}, 20000
  s_sub_u32 s{T + 2}, s{ts(0)}, s{T}
  s_min_u32 s{T + 2}, s{T + 2}, 1000
  s_sub_u32 s{T}, s{ts(0)}, s{T + 2}
  s_add_u32 s{T + 1}, s{T + 1}, s{T}
L_dg2:
  s_memrealtime s[{T + 2}:{T + 3}]
  s_waitcnt lgkmcnt(0)
  s_sub_u32 s{T + 2}, s{T + 2}, s{T + 1}
  s_cmp_lt_i32 s{T + 2}, 0
  s_cbranch_scc1 L_dg2
""")


def hooks(a, o):
    b = S_T
    a(f"""
L_hook:
  s_cmp_ge_u32 s{S_I}, {o.sent}
  s_cbranch_scc1 L_hook4
  s_mov_b64 exec, 1
  s_cmp_eq_u32 s{S_I}, {o.hello}
  s_cbranch_scc0 L_hook2
""")
    if o.force == "late":
        a(f"""
  s_cmp_eq_u32 s{S_HALF}, 0
  s_cbranch_scc1 L_nodelay
  s_lshl_b32 s{b + 1}, 1, s{S_SH}
  s_mov_b32 s{b + 2}, {SPIN}
L_delay:
  buffer_load_dword v{VT}, v{VZ}, {sr(SD, 4)}, s{S_DW} offen sc1
  s_sub_u32 s{b + 2}, s{b + 2}, 1
  s_cbranch_scc1 L_nodelay
  s_waitcnt vmcnt(0)
  v_and_b32 v{VT}, s{b + 1}, v{VT}
  v_cmp_ne_u32 vcc, 0, v{VT}
  s_cbranch_vccz L_delay
L_nodelay:
""")
    a(f"""
  s_cmp_eq_u32 s{S_HALF}, 0
  s_cbranch_scc1 L_hook_noswap
  v_swap_b32 v{VFL + 2}, v{VFL + 3}
L_hook_noswap:
  v_add_u32 v{VFL + 2}, s{S_ID}, v{VFL + 2}
  buffer_store_dword v{VFL + 2}, v{VZ}, {sr(SW, 4)}, s{S_FLO} offen offset:264
  s_mov_b32 s{S_HOOK}, {o.check}
  s_branch L_hook_out
L_hook2:
  s_cmp_eq_u32 s{S_I}, {o.check}
  s_cbranch_scc0 L_hook3
  buffer_load_dword v{VHS}, v{VZ}, {sr(SW, 4)}, s{S_FLP} offen offset:264 sc1
  s_mov_b32 s{S_HOOK}, {o.check + 1}
  s_branch L_hook_out
L_hook3:
  v_sub_u32 v{VHS}, v{VHS}, v{VFL + 3}
  v_cmp_eq_u32 vcc, s{S_ID}, v{VHS}
  v_mov_b32 v{VHS}, 0
  s_cbranch_vccnz L_hook_mode
  s_lshl_b32 s{b}, 1, s{S_SH}
  v_mov_b32 v{VHS}, s{b}
  buffer_atomic_or v{VHS}, v{VZ}, {sr(SD, 4)}, s{S_DW} offen sc0 sc1
  s_waitcnt vmcnt(0)
  v_bfe_u32 v{VHS}, v{VHS}, s{S_SH}, 1
  v_add_u32 v{VHS}, 1, v{VHS}
L_hook_mode:
  v_mov_b32 v{VT}, {LDS_MODE}
  ds_write_b32 v{VT}, v{VHS}
  s_mov_b32 s{S_HOOK}, {o.sent}
  s_waitcnt lgkmcnt(0)
L_hook_out:
  s_mov_b64 exec, -1
  s_branch L_hook_ret
L_hook4:
  s_cmp_eq_u32 s{S_I}, {o.sent}
  s_cbranch_scc0 L_hook5
  v_mov_b32 v{VT}, {LDS_MODE}
  ds_read_b32 v{VHS}, v{VT}
  s_cmp_eq_u32 s{S_HALF}, 0
  s_cbranch_scc1 L_hook_noswap2
  v_swap_b32 v{VFL}, v{VFL + 1}
L_hook_noswap2:
  v_add_u32 v{VFL}, 1, v{VFL}
  v_mov_b32 v{VRDY}, v{VFL + 1}
  v_mov_b64 {vr(VT + 4, 2)}, -1
  v_mov_b64 {vr(VT + 6, 2)}, -1
  s_waitcnt lgkmcnt(0)
  v_readfirstlane_b32 s{S_MODE}, v{VHS}
  s_cmp_lg_u32 s{S_MODE}, 0
  s_cbranch_scc1 L_hook_ret
  buffer_store_dwordx4 {vr(VT + 4, 4)}, v{VBOX}, {sr(SQ, 4)}, s{S_SEND} offen
  buffer_store_dwordx4 {vr(VT + 4, 4)}, v{VBOX}, {sr(SQ, 4)}, s{S_SEND} offen offset:64
  buffer_store_dwordx2 {vr(VT + 4, 2)}, v{VML}, {sr(SW, 4)}, s{S_MLO} offen
  s_mov_b32 s{S_HOOK}, {o.sent + 1}
  s_branch L_hook_ret
L_hook5:
  s_cmp_eq_u32 s{S_I}, {o.sent + 1}
  s_cbranch_scc0 L_hook6
  buffer_store_dword v{VFL}, v{VZ}, {sr(SW, 4)}, s{S_FLO} offen offset:256
  s_mov_b32 s{S_HOOK}, {o.rdy}
  s_branch L_hook_ret
L_hook6:
  buffer_load_dword v{VRDY}, v{VZ}, {sr(SW, 4)}, s{S_FLP} offen offset:256 sc1
  s_branch L_hook_ret
""")


def controller(a, o):
    nw = len(o.wins)
    x, e, g = S_T, S_T + 1, S_T + 2
    t = VT
    a(f"""
L_ctl:
  v_sub_u32 v{t}, v{VCT}, v{VCB}
  s_add_u32 s{x}, s{S_I}, 1
  v_add_u32 v{t + 1}, s{x}, v{VCB}
""")
    if o.lfirst:
        a(f"  s_cmp_lt_u32 s{S_I}, {o.lfirst}")
        a("  s_cbranch_scc1 L_ctl_nopub")
    a(f"""
  s_lshl_b64 exec, 1, s{S_SLOT}
  buffer_store_dword v{t + 1}, v{VCA}, {sr(SW, 4)}, s{S_LOC} offen
L_ctl_nopub:
  s_sub_u32 s{x}, s{S_I}, s{S_REP}
  s_cmp_gt_u32 s{x}, 1
  s_cbranch_scc1 L_ctl_nolead
  s_lshl_b64 exec, 1, 32
  s_cmp_eq_u32 s{x}, 0
  s_cbranch_scc0 L_ctl_rank
  v_mov_b32 v{VAT}, 1
  buffer_atomic_add v{VAT}, v{VZ}, {sr(SW, 4)}, s{S_REPV} offen sc0 sc1
  s_branch L_ctl_nolead
L_ctl_rank:
  v_sub_u32 v{VAT}, v{VAT}, v{VG0}
  v_lshl_add_u32 v{VAT}, v{VAT}, 1, v{VCB}
  v_subrev_u32 v{VAT}, 7, v{VAT}
  buffer_store_dword v{VAT}, v{VCA}, {sr(SW, 4)}, s{S_LOC} offen
L_ctl_nolead:
  s_mov_b64 exec, -1
""")
    if o.glead:
        a(f"""
  s_cmp_eq_i32 s{x}, {-o.glead}
  s_cbranch_scc0 L_ctl_nobase
  buffer_load_dword v{VG0}, v{VZ}, {sr(SW, 4)}, s{S_REPV} offen{o.gaux}
L_ctl_nobase:
""")
    a(f"""
  buffer_load_dword v{VCT}, v{VCA}, {sr(SW, 4)}, s{S_LOC} offen sc1
  s_cmp_lt_u32 s{S_I}, {o.cstart}
  s_cbranch_scc1 L_ctl_ret
  v_cmp_ne_u32 vcc, 0, v{t}
  v_readlane_b32 s{g}, v{t}, 32
  v_add_u32_dpp v{t}, v{t}, v{t} row_shr:1 row_mask:0xf bank_mask:0xf bound_ctrl:1
  s_nop 1
  v_add_u32_dpp v{t}, v{t}, v{t} row_shr:2 row_mask:0xf bank_mask:0xf bound_ctrl:1
  s_nop 1
  v_add_u32_dpp v{t}, v{t}, v{t} row_shr:4 row_mask:0xf bank_mask:0xf bound_ctrl:1
  s_nop 1
  v_add_u32_dpp v{t}, v{t}, v{t} row_shr:8 row_mask:0xf bank_mask:0xf bound_ctrl:1
  s_cmp_eq_u32 vcc_lo, -1
  s_cbranch_scc0 L_ctl_end
  v_readlane_b32 s{x}, v{t}, 15
  v_readlane_b32 s{e}, v{t}, 31
  s_max_i32 s{g}, s{g}, -7
  s_min_i32 s{g}, s{g}, 7
  s_add_u32 s{x}, s{x}, s{e}
  s_lshl_b32 s{e}, s{S_I}, 5
  s_sub_i32 s{e}, s{x}, s{e}
  s_add_i32 s{e}, s{e}, {32 - o.bias}
  s_max_i32 s{e}, s{e}, -128
  s_min_i32 s{e}, s{e}, 128
  s_mul_i32 s{e}, s{e}, {o.kp}
  s_cmp_lt_u32 s{S_I}, {o.ilate}
  s_movk_i32 s{x}, {o.kpg}
  s_cmovk_i32 s{x}, {o.kpg1 or o.kpg}
  s_mul_i32 s{g}, s{g}, s{x}
  s_add_i32 s{e}, s{e}, s{g}
  s_add_i32 s{e}, s{e}, {int(o.w0 * 512 + 256)}
  s_ashr_i32 s{e}, s{e}, 9
  s_max_i32 s{e}, s{e}, 0
  s_min_i32 s{e}, s{e}, {nw - 1}
""")
    if o.stamp:
        a(f"  s_add_u32 s{S_WSUM}, s{S_WSUM}, s{e}")
    a(f"""
  v_mov_b32 v{t}, s{e}
  v_mov_b32 v{t + 2}, {LDS_WIN}
  ds_write_b32 v{t + 2}, v{t}
  s_waitcnt lgkmcnt(0)
L_ctl_end:
  s_cmp_lt_u32 s{S_I}, {o.cend}
  s_cselect_b32 s{S_CTL}, s{S_CTL}, 0
  s_branch L_ctl_ret
""")


def build(o):
    a = Asm()
    a(HEADER)
    label = f"{NAME}_kernel"
    a(f"; @launch grid=(256,1,1) block=(320,1,1) lds={LDS_BYTES}")
    a('.amdgcn_target "amdgcn-amd-amdhsa--gfx950"')
    a(f"""
.text
.globl {label}
{".p2align 12" if o.align else ""}
.p2align 8
.type {label},@function
{label}:
  s_load_dwordx8 s[{S_ARG}:{S_ARG + 7}], s[0:1], 0
  s_load_dwordx4 s[{S_ARG + 8}:{S_ARG + 11}], s[0:1], 32
  s_cmp_ge_u32 s2, 256
  s_cbranch_scc1 L_end
""")
    if o.skew:
        a(f"""
  s_memrealtime s[{S_TS}:{S_TS + 1}]
  s_getreg_b32 s{S_T}, hwreg(HW_REG_XCC_ID, 0, 4)
  s_lshl_b32 s{S_T}, s{S_T}, 2
  s_add_u32 s{S_T}, s{S_T}, 0xb00000
  s_waitcnt lgkmcnt(0)
  s_load_dword s{S_T + 1}, s[{S_ARG + 10}:{S_ARG + 11}], s{S_T}
  s_waitcnt lgkmcnt(0)
  s_min_u32 s{S_T + 1}, s{S_T + 1}, 1000
  s_add_u32 s{S_T + 1}, s{S_T + 1}, s{S_TS}
L_skew:
  s_memrealtime s[{S_T + 2}:{S_T + 3}]
  s_waitcnt lgkmcnt(0)
  s_sub_u32 s{S_T + 2}, s{S_T + 2}, s{S_T + 1}
  s_cmp_lt_i32 s{S_T + 2}, 0
  s_cbranch_scc1 L_skew
""")
    stamp(a, o, 0)
    a(f"  v_readfirstlane_b32 s{S_WAVE}, v0")
    if o.map == 0:
        a(f"""
  s_and_b32 s{S_T}, s2, 7
  s_lshr_b32 s{S_T + 1}, s2, 4
  s_lshl_b32 s{S_T + 1}, s{S_T + 1}, 3
  s_or_b32 s{S_PAIR}, s{S_T}, s{S_T + 1}
  s_bfe_u32 s{S_HALF}, s2, 0x10003
""")
    else:
        a(f"""
  s_lshr_b32 s{S_PAIR}, s2, 1
  s_and_b32 s{S_HALF}, s2, 1
""")
    a(f"""
  s_lshr_b32 s{S_WAVE}, s{S_WAVE}, 6
  s_cmp_eq_u32 s{S_WAVE}, 0
""")
    if o.cpf:
        a(f"""
  s_cbranch_scc1 L_loader
  s_cmp_lg_u32 s{S_WAVE}, 4
  s_cbranch_scc1 L_compute
  s_getpc_b64 s[{S_T + 2}:{S_T + 3}]
L_pc:
  s_lshr_b32 s{S_T}, s2, 3
  s_lshl_b32 s{S_T}, s{S_T}, {8 + o.cpf}
  v_and_b32 v1, {(2 << o.cpf) - 1}, v0
  v_lshl_add_u32 v1, v1, 7, s{S_T}
  v_min_u32 v1, L_code_end-L_pc-4, v1
  v_mov_b32 v3, s{S_T + 3}
  v_add_co_u32 v2, vcc, s{S_T + 2}, v1
  s_nop 1
  v_addc_co_u32 v3, vcc, 0, v3, vcc
  global_load_dword v{VOUT}, v[2:3], off
  s_branch L_compute
L_loader:
""")
    else:
        a("  s_cbranch_scc0 L_compute")
    loader(a, o)
    if o.align:
        a(".p2align 12")
    prologue(a, o)
    if o.touch:
        a(f"  s_cmp_eq_u32 s{S_WAVE}, 2")
        a("  s_cbranch_scc1 L_touch0")
    a("  s_branch L_loop")
    controller(a, o)
    hooks(a, o)
    mainloop(a, o)
    epilogue(a, o)
    a(f"""
L_code_end:
.section .rodata,"a"
.p2align 6
.amdhsa_kernel {label}
  .amdhsa_next_free_vgpr {NVGPR}
  .amdhsa_next_free_sgpr {NSGPR}
  .amdhsa_accum_offset {NVGPR}
  .amdhsa_group_segment_fixed_size 0
  .amdhsa_kernarg_size 48
  .amdhsa_user_sgpr_count 2
  .amdhsa_user_sgpr_kernarg_segment_ptr 1
  .amdhsa_system_sgpr_workgroup_id_x 1
.end_amdhsa_kernel
""")
    return a.text()


if __name__ == "__main__":
    ap = argparse.ArgumentParser()
    ap.add_argument("-o", default="cdna_kernels/" + NAME + ".s")
    ap.add_argument("--nq", type=int, default=8)
    ap.add_argument("--run", type=int, default=0)
    ap.add_argument("--tu", type=int, default=2)
    ap.add_argument("--wins", default="17,18,19,20,21,22,23,24,26,28")
    ap.add_argument("--winit", type=int, default=21)
    ap.add_argument("--wtail", type=int, default=22)
    ap.add_argument("--w0", type=float, default=4.0)
    ap.add_argument("--kp", type=int, default=48)
    ap.add_argument("--kpg", type=int, default=200)
    ap.add_argument("--bias", type=int, default=16)
    ap.add_argument("--kpg1", type=int, default=0)
    ap.add_argument("--ilate", type=int, default=7)
    ap.add_argument("--lfirst", type=int, default=0)
    ap.add_argument("--gfirst", type=int, default=1)
    ap.add_argument("--gstep", type=int, default=1)
    ap.add_argument("--glast", type=int, default=25)
    ap.add_argument("--cstart", type=int, default=2)
    ap.add_argument("--cend", type=int, default=-1)
    ap.add_argument("--hello", type=int, default=1)
    ap.add_argument("--check", type=int, default=19)
    ap.add_argument("--sent", type=int, default=24)
    ap.add_argument("--rdy", type=int, default=28)
    ap.add_argument("--prepos", type=int, default=0)
    ap.add_argument("--fetch", default="cd")
    ap.add_argument("--nprek", type=int, default=8)
    ap.add_argument("--cpf", type=int, default=1)
    ap.add_argument("--bits", default="12,13,14,8,9,10,11")
    ap.add_argument("--split", type=int, default=15)
    ap.add_argument("--rsel", default="")
    ap.add_argument("--aux", default="nt")
    ap.add_argument("--qaux", default="")
    ap.add_argument("--qplan", default="4")
    ap.add_argument("--x", default="")
    ap.add_argument("--diag", default="")
    ap.add_argument("--clk", action="store_true")
    ap.add_argument("--trace", action="store_true")
    ap.add_argument("--align", type=int, default=1)
    ap.add_argument("--touch", type=int, default=1)
    ap.add_argument("--dgain", type=int, default=3)
    ap.add_argument("--gaux", default="")
    ap.add_argument("--glead", type=int, default=4)
    ap.add_argument("--oaux", default="")
    ap.add_argument("--paux", default="sc1")
    ap.add_argument("--stamp", action="store_true")
    ap.add_argument("--skew", action="store_true")
    ap.add_argument("--lstamp", action="store_true")
    ap.add_argument("--sstamp", action="store_true")
    ap.add_argument("--st", default="0,8,16")
    ap.add_argument("--estamp", type=int, default=0)
    ap.add_argument("--map", type=int, default=0)
    ap.add_argument("--force", default="")
    o = ap.parse_args()
    o.wins = [int(x) for x in o.wins.split(",")]
    o.st = [int(x) for x in o.st.split(",")]
    o.bits = [int(x) for x in o.bits.split(",")]
    rest = [b for b in range(8, 20) if b not in o.bits and b != o.split]
    assert rest == list(range(rest[0], rest[0] + 4))
    o.ustride = 1 << rest[0]
    o.rsel = [int(x) for x in o.rsel.split(",")] if o.rsel else []
    o.ntouch = 0
    o.run = o.run or o.nq
    o.stamp = o.stamp or bool(o.diag)
    assert o.tu <= o.nq and o.rdy <= 30 - o.tu
    if o.cend < 0:
        o.cend = 29 - o.tu
    fx = lambda s: (" " + s.replace(",", " ")) if s else ""
    o.aux, o.qaux, o.oaux, o.paux, o.gaux = fx(o.aux), fx(o.qaux), fx(o.oaux), fx(o.paux), fx(o.gaux)
    open(o.o, "w").write(build(o))
```

```python
import argparse
import math
import struct

NAME = "standalone__gqa_softmax__sampling"

HEADER = """; Kernarg layout for this problem (48 bytes, ptrs only, base s[0:1]):
"""


class Asm:
    def __init__(self):
        self.lines = []

    def __call__(self, s):
        if isinstance(s, (list, tuple)):
            for x in s:
                self(x)
            return
        for ln in s.strip("\n").split("\n"):
            if ln.strip():
                self.lines.append(ln)

    def text(self):
        return "\n".join(self.lines) + "\n"


class LdsTracker:
    def __init__(self, a):
        self.a, self.issued, self.done = a, 0, 0

    def need(self, n):
        assert n <= self.issued
        if n > self.done:
            self.a(f"  s_waitcnt lgkmcnt({self.issued - n})")
            self.done = n

    def issue(self, line):
        if self.issued - self.done >= 15:
            self.need(self.issued - 11)
        self.a(line)
        self.issued += 1


def vr(a, n=1):
    return f"v{a}" if n == 1 else f"v[{a}:{a + n - 1}]"


def sr(a, n):
    return f"s[{a}:{a + n - 1}]"


def f32hex(x):
    return "0x%08x" % struct.unpack("<I", struct.pack("<f", x))[0]


VQ = 4
VO = 20
VS = 52
VF = 84
VP = 148
VAL = (212, 214, 213, 215, 0, 1, 2, 3)
VKA = 216
VVA = 220
VM = 228
VL = 229
VT = 230
VPL = 239
VML = 240
VRDY = 241
VLANE = 242
VHS = 243
VZ = 244
VCT = 245
VCB = 246
VCA = 247
VFL = 248
VBOX = 252
VG0 = 253
VAT = 254
VOUT = 255
NVGPR = 256
VDA = 4
VDB = 8
VDT = 24

SA = 4
S_BB = 8
SQ = 12
SW = 16
S_WAVE = 20
S_I = 21
S_OFFA = 22
S_OFFB = 23
S_DL = 24
S_RD = 25
S_C = 26
S_PAIR = 40
S_ARG = 28
S_HALF = 41
S_T = 42
S_TS = 48
SD = 60
S_HOOK = 64
S_BLK = 65
S_KEEP = 66
S_SEND = 67
S_MODE = 68
S_OUT = 69
S_SH = 70
S_CTL = 71
S_REP = 72
S_REPV = 73
S_PL = 74
S_WSUM = 75
S_DW = 76
S_ID = 77
S_LOC = 78
S_SLOT = 79
S_MLO = 80
S_MLP = 81
S_FLO = 82
S_FLP = 83
S_INT = 86
S_REM = 87
S_MSK = 84
S_NMSK = 85
NSGPR = 96

UNIT = 32768
NS = 3
LDS_P = UNIT * NS
LDS_MODE = LDS_P + 3 * 16384
LDS_WIN = LDS_MODE + 4
LDS_BYTES = LDS_MODE + 64
BIAS = 4096

WS_DUMP = 0x0
WS_DML = 0x400000
WS_BLK = 0x500000
WS_REP = 0x600000
WS_LOC = 0x700000
REP_STRIDE = 4352
WS_STAMP = 0xC00000
WS_SIZE = 0x1000000
SPIN = 0x40000


def stamp(a, o, idx, wait=False):
    if o.stamp:
        op = "s_memtime" if o.clk and idx in (4, 5) else "s_memrealtime"
        a(f"  {op} s[{S_TS + 2 * idx}:{S_TS + 2 * idx + 1}]")
        if wait:
            a("  s_waitcnt lgkmcnt(0)")


def lbarrier(a, o, slot=None):
    if not o.lstamp:
        a("  s_barrier")
        return
    a("""
  s_memtime s[88:89]
  s_barrier
  s_memtime s[90:91]
  s_waitcnt lgkmcnt(0)
  s_sub_u32 s88, s90, s88
""")
    if slot is not None:
        a(f"  s_mov_b32 s{S_TS + 2 + slot}, s88")
    else:
        a(f"  s_add_u32 s{S_TS + 2}, s{S_TS + 2}, s88")


def sstamp(a, o, k):
    if o.sstamp:
        a(f"  s_memrealtime s[{86 + 2 * k}:{87 + 2 * k}]")


def touch(a, o, last=False):
    if o.touch:
        a(f"L_touch{o.ntouch}:")
        a(f"  s_branch {'L_loop' if last else f'L_touch{o.ntouch + 1}'}")
        o.ntouch += 1


def add_imm(a, reg, inc):
    a(f"  s_addk_i32 {reg}, {inc}" if -32768 <= inc < 32768 else f"  s_add_u32 {reg}, {reg}, {inc}")


def spread(x, bits):
    return sum(((x >> i) & 1) << b for i, b in enumerate(bits))


def masked_inc(a, off):
    a(f"  s_or_b32 s{off}, s{off}, s{S_NMSK}")
    a(f"  s_add_u32 s{off}, s{off}, 1")
    a(f"  s_and_b32 s{off}, s{off}, s{S_MSK}")


def unit_body(a, o, w, barrier_at, first=False, mid=None):
    for g in range(8):
        if mid is not None and g == 7:
            a(mid)
        for p in range(4):
            n = 4 * g + p
            if first and n == min(w, 31):
                sstamp(a, o, 1)
                loader_late_setup(a, o)
                sstamp(a, o, 2)
            if not first or n >= w:
                a(f"  s_waitcnt vmcnt({w - 1})")
                if first and n == w:
                    sstamp(a, o, 3)
            elif p == 0:
                a("  s_nop 0")
            a(f"  buffer_load_dwordx4 v{VDA + p}, {sr(SA, 4)}, s{S_OFFA} offen offset:{1024 * p}{o.aux} lds")
            if n == barrier_at:
                lbarrier(a, o)
        if o.rsel and g & 1:
            masked_inc(a, S_OFFA)
        else:
            nxt = spread(g + 1, o.bits[4:7]) if g < 7 else o.ustride
            add_imm(a, f"s{S_OFFA}", nxt - spread(g, o.bits[4:7]))
        a("  s_addk_i32 m0, 4096")


def dispatch(a, lo, hi):
    if lo == hi:
        a(f"  s_branch L_ld_v{lo}")
        return
    mid = (lo + hi + 1) // 2
    a(f"  s_cmp_ge_u32 s{S_T}, {mid}")
    if mid == hi:
        a(f"  s_cbranch_scc1 L_ld_v{mid}")
        dispatch(a, lo, mid - 1)
        return
    a(f"  s_cbranch_scc1 L_dsp_{mid}_{hi}")
    dispatch(a, lo, mid - 1)
    a(f"L_dsp_{mid}_{hi}:")
    dispatch(a, mid, hi)


def loader_late_setup(a, o):
    b = o.bits
    pconst = [spread(p, b[2:4]) - 1024 * p for p in range(4)]
    a(f"""
  s_add_u32 s{S_BB}, s{S_ARG + 4}, s{S_T}
  s_addc_u32 s{S_BB + 1}, s{S_ARG + 5}, s{S_T + 2}
  v_lshlrev_b32 v12, 1, v3
  v_xor_b32 v12, v2, v12
  v_lshl_add_u32 v{VDB}, v12, 4, v1
  v_xor_b32 v13, 8, v12
  v_lshl_add_u32 v{VDB + 1}, v13, 4, v1
  v_add_u32 v{VDB + 2}, {pconst[2]}, v{VDB}
  v_add_u32 v{VDB + 3}, {pconst[3]}, v{VDB + 1}
  v_add_u32 v{VDB + 1}, {pconst[1]}, v{VDB + 1}
  v_mov_b32 v12, {LDS_WIN}
  s_mov_b32 s{S_I}, 1
  s_mov_b32 s{SQ}, s{S_ARG + 6}
  s_mov_b32 s{SQ + 1}, s{S_ARG + 7}
  s_mov_b32 s{SQ + 2}, 0x200000
  s_mov_b32 s{SQ + 3}, 0x20000
  s_lshl_b32 s{S_KEEP}, s{S_PAIR}, 14
  s_lshl_b32 s{S_T + 3}, s{S_HALF}, 7
  s_or_b32 s{S_KEEP}, s{S_KEEP}, s{S_T + 3}
  v_lshlrev_b32 v14, 8, v0
  v_and_b32 v18, 7, v0
  v_lshlrev_b32 v19, 1, v3
  v_xor_b32 v18, v18, v19
  v_lshl_add_u32 v18, v18, 4, s{S_T + 1}
  v_bfe_u32 v19, v0, 3, 1
  v_lshl_add_u32 v18, v19, {b[0]}, v18
  v_bfe_u32 v19, v0, 4, 1
  v_lshl_add_u32 v18, v19, {b[1]}, v18
  v_lshrrev_b32 v19, 5, v0
  v_lshl_add_u32 v18, v19, {b[2]}, v18
  v_add_u32 v{VDT + 4}, s{S_T + 3}, v18
""")
    for p in range(1, 4):
        a(f"  v_add_u32 v{VDT + 4 + p}, {spread(p, b[3:5]) - 1024 * p}, v{VDT + 4}")
    for p in range(4):
        a(f"  v_xor_b32 v{VDT + p}, 128, v{VDT + 4 + p}")
    if o.lstamp:
        a(f"  s_mov_b32 s{S_TS + 2}, 0")


def loader(a, o):
    wins, b = o.wins, o.bits
    multi = len(wins) > 1
    nfull = 32 - o.tu
    a(f"""
  s_setprio 3
  v_and_b32 v2, 15, v0
  v_lshrrev_b32 v3, 4, v0
  s_lshl_b32 s{S_T + 1}, s{S_HALF}, {o.split}
  s_addk_i32 s{S_T + 1}, {BIAS}
""")
    if b[1] == b[0] + 1:
        a(f"  v_lshl_add_u32 v1, v3, {b[0]}, s{S_T + 1}")
    else:
        a(f"""
  v_and_b32 v1, 1, v3
  v_lshl_add_u32 v1, v1, {b[0]}, s{S_T + 1}
  v_lshrrev_b32 v12, 5, v0
  v_lshl_add_u32 v1, v12, {b[1]}, v1
""")
    a("  v_xor_b32 v12, v2, v3")
    for p in range(4):
        c = spread(p, b[2:4]) - 1024 * p
        if p:
            a(f"  v_xor_b32 v13, {4 * p}, v12")
        a(f"  v_lshl_add_u32 v{VDA + p}, v{13 if p else 12}, 4, v1")
        if c:
            a(f"  v_add_u32 v{VDA + p}, {c}, v{VDA + p}")
    a(f"""
  s_mov_b32 s{SA + 2}, {0x100000 + BIAS}
  s_mov_b32 s{SA + 3}, 0x20000
  s_mov_b32 m0, 0
""")
    if o.rsel:
        assert b[6] == b[5] + 1
        mask = (3 << b[5]) | (15 * o.ustride)
        a(f"  s_mov_b32 s{S_MSK}, {hex(mask)}")
        a(f"  s_not_b32 s{S_NMSK}, s{S_MSK}")
        for k, sh in enumerate(o.rsel):
            a(f"  s_lshr_b32 s{S_OFFA if k == 0 else S_OFFB}, s{S_PAIR}, {sh}")
            if k:
                a(f"  s_add_u32 s{S_OFFA}, s{S_OFFA}, s{S_OFFB}")
        a(f"  s_and_b32 s{S_OFFA}, s{S_OFFA}, 3")
        a(f"  s_lshl_b32 s{S_OFFA}, s{S_OFFA}, {b[5]}")
    else:
        a(f"  s_mov_b32 s{S_OFFA}, 0")
    a(f"""
  s_mov_b32 s{S_OFFB}, s{S_OFFA}
  s_lshl_b32 s{S_T}, s{S_PAIR}, 20
  s_sub_u32 s{S_T}, s{S_T}, {BIAS}
  s_subb_u32 s{S_T + 2}, 0, 0
  s_waitcnt lgkmcnt(0)
  s_add_u32 s{SA}, s{S_ARG + 2}, s{S_T}
  s_addc_u32 s{SA + 1}, s{S_ARG + 3}, s{S_T + 2}
""")
    first = wins.index(o.winit)
    sstamp(a, o, 0)
    unit_body(a, o, o.winit, None, first=True)
    sstamp(a, o, 4)
    order = sorted(range(len(wins)), key=lambda i: (abs(i - first), i))

    def swap_block():
        a(f"""
L_ld_swap:
  s_mov_b64 s[{S_T + 4}:{S_T + 5}], s[{SA}:{SA + 1}]
  s_mov_b64 s[{SA}:{SA + 1}], s[{S_BB}:{S_BB + 1}]
  s_mov_b64 s[{S_BB}:{S_BB + 1}], s[{S_T + 4}:{S_T + 5}]
  s_mov_b32 s{S_T}, s{S_OFFA}
  s_mov_b32 s{S_OFFA}, s{S_OFFB}
  s_mov_b32 s{S_OFFB}, s{S_T}
""")
        for p in range(4):
            a(f"  v_swap_b32 v{VDA + p}, v{VDB + p}")
        if multi:
            a(f"""
  s_waitcnt lgkmcnt(0)
  v_readfirstlane_b32 s{S_T}, v13
L_ld_dispatch:
""")
        dispatch(a, 0, len(wins) - 1)

    for pos, vi in enumerate(order):
        w = wins[vi]
        if pos == 4 and o.align:
            a(".p2align 12")
        if pos >= 2 and pos % 2 == 0:
            touch(a, o)
        a(f"L_ld_v{vi}:")
        rd = "  ds_read_b32 v13, v12"
        early = w - 1 < 28
        unit_body(a, o, w, w - 1, mid=rd if multi and early else None)
        if multi and not early:
            a(rd)
        a(f"""
  s_cmp_ge_u32 m0, {UNIT * NS}
  s_cselect_b32 m0, 0, m0
  s_add_u32 s{S_I}, s{S_I}, 1
  s_and_b32 s{S_T}, s{S_I}, {o.run - 1}
  s_cbranch_scc0 L_ld_swap
  s_cmp_eq_u32 s{S_I}, {nfull}
  s_cbranch_scc1 L_ld_tail
""")
        if multi:
            a(f"""
  s_waitcnt lgkmcnt(0)
  v_readfirstlane_b32 s{S_T}, v13
  s_cmp_eq_u32 s{S_T}, {vi}
  s_cbranch_scc1 L_ld_v{vi}
  s_branch L_ld_dispatch
""")
        else:
            a(f"  s_branch L_ld_v{vi}")
        if pos == 0:
            swap_block()
    touch(a, o, last=True)
    w = o.wtail
    npre = 0 if o.epre else 1
    total = 32 * o.tu
    preread = f"""
  buffer_load_dword v16, v14, {sr(SQ, 4)}, s{S_KEEP} offen{o.paux}
"""
    if o.epre:
        preread = ""
    assert o.prepos <= w - 1
    marks = [0] + list(range(16, total, 16)) + [total - 8, total]
    a(f"""
L_ld_tail:
  s_mov_b32 s{S_OFFB}, s{S_OFFA}
""")
    slot = lambda k: max(1, k + 6 - len(marks))
    for g in range(total // 4):
        off = S_OFFA if g < total // 8 else S_OFFB
        for p in range(4):
            n = 4 * g + p
            if n == total - o.prepos:
                a(preread)
            a(f"  s_waitcnt vmcnt({w - 1 + (npre if n >= total - o.prepos else 0)})")
            a(f"  buffer_load_dwordx4 v{VDT + p + (0 if off == S_OFFA else 4)}, {sr(SA, 4)}, s{off} offen offset:{1024 * p}{o.aux} lds")
            if n - (w - 1) in marks:
                lbarrier(a, o, slot(marks.index(n - (w - 1))))
        if (g + 1) % (total // 8) and o.rsel:
            masked_inc(a, off)
        elif (g + 1) % (total // 8):
            nxt = spread((g & 3) + 1, b[5:7]) if g & 3 < 3 else o.ustride
            add_imm(a, f"s{off}", nxt - spread(g & 3, b[5:7]))
        if g + 1 < total // 4:
            a("  s_addk_i32 m0, 4096")
    if o.prepos == 0:
        a(preread)
    for k, m in enumerate(marks):
        if m + w - 1 >= total:
            left = total - m
            a(f"  s_waitcnt vmcnt({left + (npre if left >= o.prepos else 0)})")
            lbarrier(a, o, slot(k))
    if o.sstamp:
        for k in range(5):
            a(f"  s_mov_b32 s{S_TS + 2 + k}, s{86 + 2 * k}")
    if o.lstamp or o.sstamp:
        a(f"  s_mov_b32 s{SW}, s{S_ARG + 10}\n  s_mov_b32 s{SW + 1}, s{S_ARG + 11}\n  s_mov_b32 s{SW + 2}, {WS_SIZE}\n  s_mov_b32 s{SW + 3}, 0x20000")
        a(f"  s_lshl_b32 s{S_T}, s2, 5")
        a(f"  s_add_u32 s{S_T}, s{S_T}, {WS_STAMP + 32768}")
        for k in range(8):
            a(f"  v_mov_b32 v{32 + k}, s{S_TS + k}")
        a("  v_mov_b32 v40, 0")
        a(f"  buffer_store_dwordx4 v[32:35], v40, {sr(SW, 4)}, s{S_T} offen")
        a(f"  buffer_store_dwordx4 v[36:39], v40, {sr(SW, 4)}, s{S_T} offen offset:16")
    a("  s_endpgm")


def mfma(d, x, y, c):
    return f"  v_mfma_f32_16x16x32_bf16 {vr(d, 4)}, {vr(x, 4)}, {vr(y, 4)}, {'0' if c is None else vr(c, 4)}"


def scale_o(lo, n, al):
    return [f"  v_pk_mul_f32 {vr(r, 2)}, {vr(r, 2)}, {vr(al, 2)} op_sel_hi:[1,0]" for r in range(lo, lo + n, 2)]


def fma_o(lo, n, al, add):
    return [f"  v_pk_fma_f32 {vr(lo + r, 2)}, {vr(lo + r, 2)}, {vr(al, 2)}, {vr(add + r, 2)} op_sel_hi:[1,0,1]" for r in range(0, n, 2)]


def xlane_ops(op, reg, t0, t1):
    return [
        f"  v_mov_b32 v{t0}, v{reg}",
        f"  v_mov_b32 v{t1}, v{reg}",
        "  s_nop 1",
        f"  v_permlane32_swap_b32 v{t0}, v{t1}",
        f"  {op} v{t0}, v{t0}, v{t1}",
        f"  v_mov_b32 v{t1}, v{t0}",
        "  s_nop 1",
        f"  v_permlane16_swap_b32 v{t0}, v{t1}",
        f"  {op} v{reg}, v{t0}, v{t1}",
    ]


def shift_p():
    return [f"  v_mov_b64 {vr(VP + r, 2)}, {vr(VP + 16 + r, 2)}" for r in range(0, 48, 2)]


def shift_al():
    return [f"  v_mov_b32 v{VAL[k]}, v{VAL[k + 1]}" for k in range(7)]


def copy16(dst, src):
    return [f"  v_mov_b64 {vr(dst + r, 2)}, {vr(src + r, 2)}" for r in range(0, 16, 2)]


def next_slot():
    return [
        f"  s_add_u32 s{S_RD}, s{S_RD}, 1",
        f"  s_cmp_eq_u32 s{S_RD}, {NS}",
        f"  s_cselect_b32 s{S_RD}, 0, s{S_RD}",
        f"  s_mov_b32 s{S_DL}, {UNIT}",
        f"  s_cmov_b32 s{S_DL}, {-(NS - 1) * UNIT}",
    ]


def adv(r):
    return f"  v_add_u32 v{r}, s{S_DL}, v{r}"


def weight_ops(m2, l2, wa, wb):
    return [
        f"  v_max_f32 v{wb + 1}, v{VM}, v{m2}",
        f"  v_sub_f32 v{wa}, v{VM}, v{wb + 1}",
        f"  v_sub_f32 v{wb}, v{m2}, v{wb + 1}",
        f"  v_exp_f32 v{wa}, v{wa}",
        f"  v_exp_f32 v{wb}, v{wb}",
        f"  v_mul_f32 v{wa + 1}, v{VL}, v{wa}",
        f"  v_mul_f32 v{wb + 1}, v{l2}, v{wb}",
        f"  v_add_f32 v{wa + 1}, v{wa + 1}, v{wb + 1}",
        f"  v_rcp_f32 v{wa + 1}, v{wa + 1}",
        "  s_nop 0",
        f"  v_mul_f32 v{wa}, v{wa}, v{wa + 1}",
        f"  v_mul_f32 v{wb}, v{wb}, v{wa + 1}",
    ]


def merge_half(a, o, own, pk, w_oth, tmp, dst, soff):
    for m in range(2):
        for h in range(4):
            a(f"  v_lshlrev_b32 v{tmp + 2 * h}, 16, v{pk + 4 * m + h}")
            a(f"  v_and_b32 v{tmp + 2 * h + 1}, 0xffff0000, v{pk + 4 * m + h}")
        a(fma_o(tmp, 8, w_oth, own + 8 * m))
        d = dst + 4 * m
        for h in range(4):
            a(f"  v_cvt_pk_bf16_f32 v{d + h}, v{tmp + 2 * h}, v{tmp + 2 * h + 1}")
            if h & 1:
                a(f"  ds_write_b64 v{VVA + 2 * m + (h >> 1)}, {vr(d + h - 1, 2)}")
    for m in range(2):
        a(f"  ds_read_b128 {vr(tmp + 4 * m, 4)}, v{VOUT} offset:{1024 * m}")
    for m in range(2):
        a(f"  s_waitcnt lgkmcnt({1 - m})")
        a(f"  buffer_store_dwordx4 {vr(tmp + 4 * m, 4)}, v{VBOX}, {sr(SQ, 4)}, s{soff} offen offset:{2048 * m}{o.oaux}")


def prologue(a, o):
    c = (128 ** -0.5) * math.log2(math.e)
    multi = len(o.wins) > 1
    a(f"""
L_compute:
  s_sub_u32 s{S_WAVE}, s{S_WAVE}, 1
  v_and_b32 v{VLANE}, 63, v0
  v_and_b32 v2, 15, v0
  v_bfe_u32 v3, v0, 4, 2
  s_mov_b32 s{SQ + 2}, 0x200000
  s_mov_b32 s{SQ + 3}, 0x20000
  s_mov_b32 s{SW + 2}, {WS_SIZE}
  s_mov_b32 s{SW + 3}, 0x20000
  s_mov_b32 s{SD + 2}, 256
  s_mov_b32 s{SD + 3}, 0x20000
  s_lshl_b32 s{S_T}, s{S_PAIR}, 2
  s_add_u32 s{S_T}, s{S_T}, s{S_WAVE}
  s_lshl_b32 s{S_OUT}, s{S_T}, 12
  s_lshl_b32 s{S_BLK}, s{S_T}, 9
  s_add_u32 s{S_BLK}, s{S_BLK}, {WS_BLK}
  s_lshl_b32 s{S_T}, s{S_HALF}, 7
  s_add_u32 s{S_KEEP}, s{S_OUT}, s{S_T}
  s_xor_b32 s{S_SEND}, s{S_KEEP}, 128
  v_lshlrev_b32 v{VT}, 8, v2
  v_xor_b32 v{VT + 1}, v2, v3
  v_lshlrev_b32 v{VT + 2}, 8, v3
  v_lshl_add_u32 v{VT + 4}, v{VT + 1}, 4, v{VT + 2}
  v_xor_b32 v{VT + 5}, 64, v{VT + 4}
  v_xor_b32 v{VT + 6}, 128, v{VT + 4}
  v_xor_b32 v{VT + 7}, 192, v{VT + 4}
  s_lshl_b32 s{S_PL}, s{S_WAVE}, 12
  s_add_u32 s{S_PL}, s{S_PL}, {LDS_P}
  s_mov_b32 m0, s{S_PL}
  v_bfe_u32 v{VBOX}, v0, 3, 3
  v_lshlrev_b32 v{VBOX}, 8, v{VBOX}
  v_and_b32 v1, 7, v0
  v_lshl_add_u32 v{VBOX}, v1, 4, v{VBOX}
  v_mov_b32 v{VZ}, 0
  v_min_u32 v{VCA}, 32, v{VLANE}
  v_lshlrev_b32 v{VCA}, 2, v{VCA}
  s_getreg_b32 s{S_ID}, hwreg(HW_REG_XCC_ID, 0, 4)
  s_mul_i32 s{S_LOC}, s{S_ID}, {REP_STRIDE}
  s_add_u32 s{S_LOC}, s{S_LOC}, {WS_LOC}
  s_or_b32 s{S_ID}, s{S_ID}, 16
  s_lshr_b32 s{S_SLOT}, s2, 3
  s_mul_i32 s{S_REPV}, s{S_SLOT}, {REP_STRIDE}
  s_add_u32 s{S_REPV}, s{S_REPV}, {WS_REP}
  s_mul_i32 s{S_REP}, s{S_SLOT}, {o.gstep}
  s_add_u32 s{S_REP}, s{S_REP}, {o.gfirst}
  s_cmp_le_u32 s{S_REP}, {o.glast}
  s_cselect_b32 s{S_REP}, s{S_REP}, 64
  s_cmp_eq_u32 s{S_WAVE}, 1
  s_cselect_b32 s{S_CTL}, {1 if multi else 0}, 0
  s_waitcnt lgkmcnt(0)
  s_mov_b32 s{SQ}, s{S_ARG}
  s_mov_b32 s{SQ + 1}, s{S_ARG + 1}
  s_mov_b32 s{SW}, s{S_ARG + 10}
  s_mov_b32 s{SW + 1}, s{S_ARG + 11}
  s_mov_b32 s{SD}, s{S_ARG + 8}
  s_mov_b32 s{SD + 1}, s{S_ARG + 9}
""")
    for p in range(4):
        a(f"  buffer_load_dwordx4 v{VT + 4 + p}, {sr(SQ, 4)}, s{S_OUT} offen offset:{1024 * p}{o.qaux} lds")
    a(f"""
  {"; " if "f" in o.x else ""}buffer_load_dwordx4 {vr(VFL, 4)}, v{VZ}, {sr(SW, 4)}, s{S_BLK} offen offset:256 sc1
  s_cmp_eq_u32 s{S_CTL}, 0
  s_cbranch_scc1 L_nobase
  {"; " if "l" in o.x else ""}buffer_load_dword v{VCB}, v{VCA}, {sr(SW, 4)}, s{S_LOC} offen sc1
  s_cmp_ge_u32 s{S_REP}, {o.glead if o.glead else 99}
  s_cbranch_scc1 L_nobase
  buffer_load_dword v{VG0}, v{VZ}, {sr(SW, 4)}, s{S_REPV} offen{o.gaux}
L_nobase:
  v_mov_b32 v{VT + 3}, {LDS_WIN}
  v_mov_b32 v{VT + 2}, {o.wins.index(o.winit)}
  ds_write_b32 v{VT + 3}, v{VT + 2}
  s_and_b32 s{S_SH}, s{S_PAIR}, 3
  s_lshl_b32 s{S_SH}, s{S_SH}, 3
  s_and_b32 s{S_DW}, s{S_PAIR}, 0x7c
""")
    for s in range(4):
        a(f"  v_xor_b32 v{VT + 3}, {4 * s}, v{VT + 1}")
        a(f"  v_lshl_add_u32 v{VKA + s}, v{VT + 3}, 4, v{VT}")
    a(f"""
  s_lshl_b32 s{S_T}, s{S_HALF}, 3
  s_xor_b32 s{S_T}, s{S_T}, 8
  v_bfe_u32 v{VT}, v0, 2, 4
  v_and_b32 v{VT + 1}, 7, v{VT}
  v_lshlrev_b32 v{VT + 1}, 1, v{VT + 1}
  v_xor_b32 v{VT + 1}, s{S_T}, v{VT + 1}
  v_lshlrev_b32 v{VT}, 8, v{VT}
  v_and_b32 v{VT + 3}, 3, v0
  v_lshl_add_u32 v{VT}, v{VT + 3}, 3, v{VT}
""")
    for j in range(8):
        a(f"  v_xor_b32 v{VT + 3}, {2 * j}, v{VT + 1}")
        a(f"  v_lshl_add_u32 v{VVA + j}, v{VT + 3}, 4, v{VT}")
    for r in range(0, 32, 2):
        a(f"  v_mov_b64 {vr(VO + r, 2)}, 0")
    a(f"""
  v_mov_b32 v{VM}, 0xff800000
  v_mov_b32 v{VL}, 0
  v_mov_b32 v{VCT}, 0
  v_lshlrev_b32 v{VML}, 3, v2
  v_lshl_add_u32 v{VPL}, v{VLANE}, 4, s{S_PL}
  s_mov_b32 s{S_C}, {f32hex(c)}
  s_mov_b32 s{S_C + 1}, s{S_C}
  s_mov_b32 s{S_RD}, 0
  s_mov_b32 s{S_INT}, 0
  s_lshl_b32 s{S_REM}, s{S_SLOT}, 4
  s_mov_b32 s{S_I}, 0
  s_cmp_eq_u32 s{S_WAVE}, 0
  s_cselect_b32 s{S_HOOK}, {o.hello}, {o.epre or o.sent}
  s_lshl_b32 s{S_T}, s{S_HALF}, 7
  s_add_u32 s{S_MLO}, s{S_BLK}, s{S_T}
  s_xor_b32 s{S_MLP}, s{S_MLO}, 128
  s_lshl_b32 s{S_T}, s{S_HALF}, 2
  s_add_u32 s{S_FLO}, s{S_BLK}, s{S_T}
  s_xor_b32 s{S_FLP}, s{S_FLO}, 4
""")
    for s in range(4):
        a(f"  v_add_u32 v{VT + 4 + s}, s{S_PL}, v{VKA + s}")
    a("  s_waitcnt vmcnt(0)")
    for s in range(4):
        a(f"  ds_read_b128 {vr(VQ + 4 * s, 4)}, v{VT + 4 + s}")
    a(f"  s_mov_b32 s{SQ}, s{S_ARG + 6}")
    a(f"  s_mov_b32 s{SQ + 1}, s{S_ARG + 7}")
    if o.stamp:
        a(f"  s_mov_b32 s{S_WSUM}, 0")
    a("  s_waitcnt lgkmcnt(0)")


def k_body(a, o):
    t0, t1, mx = VT, VT + 1, VT + 2
    al = VAL[7]
    pnew = VF
    lds = LdsTracker(a)
    reads = [f"  ds_read_b128 {vr(VF + 4 * (n % 16), 4)}, v{VKA + n % 4} offset:{4096 * (n // 4)}" for n in range(32)]
    fill = shift_al() + next_slot()
    for n in range(o.nprek):
        lds.issue(reads[n])
        if n >= 1:
            for _ in range(2):
                if fill:
                    a(fill.pop(0))
    a(fill)
    pend = reads[o.nprek:]
    mxs = [f"  v_max3_f32 v{mx}, v{VS}, v{VS + 1}, v{VS + 2}"]
    mxs += [f"  v_max3_f32 v{mx}, v{mx}, v{VS + r}, v{VS + r + 1}" for r in range(3, 31, 2)]
    k = 0
    pads = [adv(VVA + j) for j in range(8)]
    for n in range(32):
        t, s = divmod(n, 4)
        if s == 0:
            lds.need(n + 4)
        a(mfma(VS + 4 * t, VF + 4 * (n % 16), VQ + 4 * s, None if s == 0 else VS + 4 * t))
        if pend:
            lds.issue(pend.pop(0))
        elif pads:
            a(pads.pop(0))
        if t >= 2 and s in (1, 3) and 2 * k + 2 < 4 * (t - 1):
            a(mxs[k]); k += 1
    a(pads)
    a([adv(VKA + s) for s in range(4)])
    while 2 * k + 2 < 28:
        a(mxs[k]); k += 1
    a("  s_nop 2")
    a(mxs[k:])
    a(f"""
  v_max_f32 v{t0}, v{mx}, v{VS + 31}
  v_max_f32 v{t1}, v{mx}, v{VS + 31}
  s_nop 1
  v_permlane32_swap_b32 v{t0}, v{t1}
  v_max_f32 v{mx}, v{t0}, v{t1}
  v_max_f32 v{t1}, v{t0}, v{t1}
  s_nop 1
  v_permlane16_swap_b32 v{mx}, v{t1}
  v_max_f32 v{mx}, v{mx}, v{t1}
  v_mul_f32 v{mx}, s{S_C}, v{mx}
  v_max_f32 v{mx}, v{mx}, v{VM}
  v_sub_f32 v{al}, v{VM}, v{mx}
  v_mov_b32 v{VM}, v{mx}
  v_exp_f32 v{al}, v{al}
""")
    for r in range(0, 32, 2):
        a(f"  v_pk_fma_f32 {vr(VS + r, 2)}, {vr(VS + r, 2)}, s[{S_C}:{S_C + 1}], {vr(mx, 2)} op_sel_hi:[1,1,0] neg_lo:[0,0,1] neg_hi:[0,0,1]")
    for r in range(32):
        a(f"  v_exp_f32 v{VS + r}, v{VS + r}")
    for r in range(16):
        a(f"  v_cvt_pk_bf16_f32 v{pnew + r}, v{VS + 2 * r}, v{VS + 2 * r + 1}")
    for step in (16, 8, 4, 2):
        for r in range(0, step, 2):
            a(f"  v_pk_add_f32 {vr(VS + r, 2)}, {vr(VS + r, 2)}, {vr(VS + r + step, 2)}")
    a(f"  v_add_f32 v{VS}, v{VS}, v{VS + 1}")
    a(f"  v_fma_f32 v{VL}, v{VL}, v{al}, v{VS}")
    a(f"""
  s_and_b32 s{S_T}, s{S_I}, 7
  s_add_u32 s{S_I}, s{S_I}, 1
  s_cmp_ge_u32 s{S_T}, 4
  s_cbranch_scc1 L_park2
""")
    a(shift_p() + copy16(VP + 48, pnew))
    a(f"""
  s_branch L_loop
L_park2:
  s_cmp_eq_u32 s{S_T}, 7
  s_cbranch_scc1 L_park3
""")
    for k in range(4):
        a(f"  ds_write_b128 v{VPL}, {vr(pnew + 4 * k, 4)} offset:{1024 * k}")
    a(f"""
  v_add_u32 v{VPL}, 16384, v{VPL}
  s_waitcnt lgkmcnt(0)
  s_branch L_loop
L_park3:
  v_subrev_u32 v{VPL}, {3 * 16384}, v{VPL}
""")
    a(copy16(VS, pnew))
    a("  s_branch L_loop")


def pv_block(a, items, fill=(), head=(), valu=(), per=0):
    lds = LdsTracker(a)
    reads = [f"  ds_read_b64_tr_b16 {vr(VF + 4 * (n % 16) + 2 * t, 2)}, v{ad} offset:{off + t * step}"
             for n, (ad, off, step, _, _) in enumerate(items) for t in range(2)]
    fill, valu = list(fill), list(valu)
    for n, r in enumerate(reads[:12]):
        lds.issue(r)
        if n >= 2:
            for _ in range(2):
                if fill:
                    a(fill.pop(0))
    a(fill)
    a(head)
    pend = reads[12:]
    for n, (_, _, _, acc, p) in enumerate(items):
        if len(items) <= 16 or n % 2 == 0:
            lds.need(min(len(reads), 2 * (n + 1) if len(items) <= 16 else 2 * (n + 2)))
        a(mfma(acc, VF + 4 * (n % 16), p, acc))
        for _ in range(2):
            if pend:
                lds.issue(pend.pop(0))
        for _ in range(per):
            if valu:
                a(valu.pop(0))
    a(valu)


def v_body(a, o):
    items = [(VVA + j, 8192 * kb, 4096, VO + 4 * j, VP + 4 * kb) for kb in range(4) for j in range(8)]
    pv_block(a, items, fill=scale_o(VO, 32, VAL[0]) + next_slot())
    a([adv(VKA + s) for s in range(4)] + [adv(VVA + j) for j in range(8)])
    a(shift_al() + shift_p())
    a(f"""
  s_and_b32 s{S_T}, s{S_I}, 7
  s_add_u32 s{S_I}, s{S_I}, 1
  s_cmp_gt_u32 s{S_T}, 3
  s_cbranch_scc1 L_refilled
  s_cmp_eq_u32 s{S_T}, 3
  s_cbranch_scc1 L_refill2
""")
    for k in range(4):
        a(f"  ds_read_b128 {vr(VP + 48 + 4 * k, 4)}, v{VPL} offset:{1024 * k}")
    a(f"""
  v_add_u32 v{VPL}, 16384, v{VPL}
  s_waitcnt lgkmcnt(0)
  s_branch L_loop
L_refill2:
  v_subrev_u32 v{VPL}, {3 * 16384}, v{VPL}
""")
    a(copy16(VP + 48, VS))
    a("L_refilled:")


def cycle_probe(a, o, tag):
    if o.estamp == 4:
        a(f"""
  s_memtime s[90:91]
  s_waitcnt lgkmcnt(0)
  s_sub_u32 s{S_TS + (6 if tag == "k" else 8)}, s90, s88
""")


def mainloop(a, o):
    a(f"""
L_loop:
  s_cmp_lg_u32 s{S_CTL}, 0
  s_barrier
  s_waitcnt vmcnt(0)
  s_cbranch_scc1 L_ctl
L_ctl_ret:
  s_cmp_eq_u32 s{S_I}, s{S_HOOK}
  s_cbranch_scc1 L_hook
L_hook_ret:
""")
    if o.stamp and not o.estamp:
        for idx, it in ((3, o.st[0]), (4, o.st[1]), (5, o.st[2])):
            a(f"  s_cmp_lg_u32 s{S_I}, {it}")
            a(f"  s_cbranch_scc1 L_nostamp{idx}")
            stamp(a, o, idx, True)
            a(f"L_nostamp{idx}:")
    if o.trace:
        a(f"""
  s_cmp_lg_u32 s{S_WAVE}, 2
  s_cbranch_scc1 L_notrace
  s_memrealtime s[88:89]
  s_mov_b32 m0, s{S_I}
  s_waitcnt lgkmcnt(0)
  v_writelane_b32 v{VAT}, s88, m0
L_notrace:
""")
    if o.estamp == 4:
        a("  s_memtime s[88:89]")
        a("  s_waitcnt lgkmcnt(0)")
    a(f"""
  s_bitcmp1_b32 s{S_I}, {o.run.bit_length() - 1}
  s_cbranch_scc1 L_vbody
""")
    k_body(a, o)
    a("L_vbody:")
    v_body(a, o)
    a(f"""
  s_cmp_lt_u32 s{S_I}, {32 - o.tu}
  s_cbranch_scc1 L_loop
""")


def epilogue(a, o):
    m2, l2, mm = VQ, VQ + 1, VT + 2
    wa, wb = VQ + 2, VQ + 4
    PK, B2, tmp, dst = VS, VS + 8, VS + 16, VS + 24
    snd = VQ + 8
    fetch = f"""
  buffer_load_dwordx4 {vr(PK, 4)}, v{VBOX}, {sr(SQ, 4)}, s{S_KEEP} offen sc1
  buffer_load_dwordx4 {vr(PK + 4, 4)}, v{VBOX}, {sr(SQ, 4)}, s{S_KEEP} offen offset:{o.boxstep} sc1
"""

    def part(q, u, acc, kbs):
        return [(VKA + jj, 16384 * q + 4096 * kb, 2048, acc + 4 * jj, VP + 16 * u + 4 * kb) for kb in kbs for jj in range(4)]

    a(f"""
  v_bfe_u32 v{VT + 4}, v{VLANE}, 3, 2
  v_lshlrev_b32 v{VT + 4}, 1, v{VT + 4}
  v_lshrrev_b32 v{VT + 3}, 2, v{VLANE}
  v_lshlrev_b32 v{VT + 3}, 7, v{VT + 3}
  v_and_b32 v{VT + 5}, 3, v{VLANE}
  v_lshl_add_u32 v{VT + 3}, v{VT + 5}, 3, v{VT + 3}
""")
    base = ((32 - o.tu) % NS) * UNIT
    if base:
        a(f"  v_add_u32 v{VT + 3}, {base}, v{VT + 3}")
    for jj in range(4):
        a(f"  v_xor_b32 v{VT + 5}, {2 * jj}, v{VT + 4}")
        a(f"  v_lshl_add_u32 v{VKA + jj}, v{VT + 5}, 4, v{VT + 3}")
    a(scale_o(VO, 32, VAL[0]))
    a(f"""
  v_lshrrev_b32 v{VT + 3}, 3, v{VLANE}
  v_and_b32 v{VT + 4}, 7, v{VLANE}
  v_xor_b32 v{VT + 5}, v{VT + 3}, v{VT + 4}
  v_lshl_add_u32 v{VOUT}, v{VT + 3}, 7, s{S_PL}
  v_lshl_add_u32 v{VOUT}, v{VT + 5}, 4, v{VOUT}
  v_lshrrev_b32 v{VT + 3}, 5, v{VLANE}
  v_xor_b32 v{VT + 3}, v{VT + 3}, v{VT + 4}
  v_lshl_add_u32 v{VVA}, v{VML}, 4, s{S_PL}
  v_lshl_add_u32 v{VVA}, v{VT + 3}, 4, v{VVA}
  v_bfe_u32 v{VT + 3}, v{VLANE}, 4, 1
  v_lshl_add_u32 v{VVA}, v{VT + 3}, 3, v{VVA}
  v_xor_b32 v{VVA + 1}, 32, v{VVA}
  v_xor_b32 v{VVA + 2}, 64, v{VVA}
  v_xor_b32 v{VVA + 3}, 96, v{VVA}
  s_mov_b32 s{S_I}, {SPIN}
  s_cmp_lg_u32 s{S_MODE}, 0
""")
    for u in range(o.tu):
        a("  s_barrier")
        pv_block(a, part(u, u, VO, range(4)))
        if u + 1 < o.tu:
            a("  s_nop 2")
            a(scale_o(VO, 16, VAL[u + 1]))
    a("  s_nop 1")
    a("  s_cbranch_scc1 L_nosend")
    for m in range(2):
        for r in range(4):
            a(f"  v_cvt_pk_bf16_f32 v{snd + 4 * m + r}, v{VO + 8 * m + 2 * r}, v{VO + 8 * m + 2 * r + 1}")
        for r in range(4):
            a(f"  v_min_u32 v{snd + 4 * m + r}, -2, v{snd + 4 * m + r}")
        a(f"  buffer_store_dwordx4 {vr(snd + 4 * m, 4)}, v{VBOX}, {sr(SQ, 4)}, s{S_SEND} offen offset:{o.boxstep * m}")
    a("L_nosend:")
    if o.estamp == 1:
        stamp(a, o, 3, True)
    for u in range(o.tu - 1):
        a("  s_barrier")
        pv_block(a, part(o.tu + u, u, VO + 16, range(4)))
        a("  s_nop 2")
        a(scale_o(VO + 16, 16, VAL[u + 1]))
    last = o.tu - 1
    a(f"""
  v_cmp_ne_u32 vcc, v{VFL + 1}, v{VRDY}
  s_cbranch_vccz L_notready
L_ready:
""")
    a(weight_ops(m2, l2, wa, wb))
    a("  s_barrier")
    pv_block(a, part(o.tu + last, last, VO + 16, (0, 1)))
    if o.fetch == "d":
        a(fetch)
    if o.estamp == 1:
        stamp(a, o, 4, True)
    a(f"  s_cmp_lg_u32 s{S_MODE}, 0")
    a("  s_barrier")
    stamp(a, o, 1)
    if o.fetch == "e":
        a(fetch)
    pv_block(a, part(o.tu + last, last, VO + 16, (2, 3)))
    a("  s_cbranch_scc1 L_generic")
    a("  s_nop 1")
    a(scale_o(VO + 16, 16, wa))
    a(f"""
L_check:
  s_waitcnt vmcnt(0)
  v_max3_u32 v{mm}, v{PK}, v{PK + 1}, v{PK + 2}
  v_max3_u32 v{mm + 1}, v{PK + 3}, v{PK + 4}, v{PK + 5}
  v_max3_u32 v{mm}, v{mm}, v{PK + 6}, v{PK + 7}
  v_max_u32 v{mm}, v{mm}, v{mm + 1}
  v_cmp_eq_u32 vcc, -1, v{mm}
  s_cbranch_vccnz L_retry
""")
    if o.estamp == 1:
        stamp(a, o, 5)
    merge_half(a, o, VO + 16, PK, wb, tmp, dst, S_KEEP)
    a("L_done:")
    if o.stamp:
        a("  s_waitcnt vmcnt(0)")
        stamp(a, o, 2, True)
        a(f"""
  s_lshl_b32 s{S_T}, s2, 2
  s_add_u32 s{S_T}, s{S_T}, s{S_WAVE}
  s_lshl_b32 s{S_T}, s{S_T}, 5
  s_add_u32 s{S_T}, s{S_T}, {WS_STAMP}
  v_mov_b32 v4, s{S_TS}
  v_mov_b32 v5, s{S_TS + 2}
  v_mov_b32 v6, s{S_TS + 4}
  s_and_b32 s{S_T + 1}, s{S_ID}, 15
  s_lshl_b32 s{S_T + 2}, s{S_MODE}, 4
  s_or_b32 s{S_T + 1}, s{S_T + 1}, s{S_T + 2}
  v_mov_b32 v7, s{S_T + 1}
  buffer_store_dwordx4 v[4:7], v{VZ}, {sr(SW, 4)}, s{S_T} offen
  v_mov_b32 v12, s{S_TS + 6}
  v_mov_b32 v13, s{S_TS + 8}
  v_mov_b32 v14, s{S_TS + 10}
  v_mov_b32 v15, s{S_WSUM}
  buffer_store_dwordx4 v[12:15], v{VZ}, {sr(SW, 4)}, s{S_T} offen offset:16
""")
    if o.trace:
        a(f"""
  s_cmp_lg_u32 s{S_WAVE}, 2
  s_cbranch_scc1 L_end
  v_writelane_b32 v{VAT}, s{S_TS + 2}, 31
  v_writelane_b32 v{VAT}, s{S_TS}, 30
  s_lshl_b32 s{S_T}, s2, 7
  s_add_u32 s{S_T}, s{S_T}, {WS_STAMP + 32768}
  v_lshlrev_b32 v4, 2, v{VLANE}
  s_mov_b64 exec, 0xffffffff
  buffer_store_dword v{VAT}, v4, {sr(SW, 4)}, s{S_T} offen
""")
    if o.diag:
        diag(a, o)
    a("""
L_end:
  s_endpgm
L_retry:
""")
    a(fetch)
    a(f"""
  s_sub_u32 s{S_I}, s{S_I}, 1
  s_cbranch_scc0 L_check
  s_endpgm
L_notready:
  s_cmp_lg_u32 s{S_MODE}, 0
  s_cbranch_scc1 L_ready
  buffer_load_dword v{VRDY}, v{VZ}, {sr(SW, 4)}, s{S_FLP} offen offset:256 sc1
  buffer_load_dword v{VT + 3}, v{VZ}, {sr(SD, 4)}, s{S_DW} offen sc1
  s_sub_u32 s{S_I}, s{S_I}, 1
  s_cbranch_scc1 L_end
  s_waitcnt vmcnt(0)
  v_cmp_ne_u32 vcc, v{VFL + 1}, v{VRDY}
  s_cbranch_vccnz L_readylate
  v_bfe_u32 v{VT + 3}, v{VT + 3}, s{S_SH}, 1
  v_cmp_ne_u32 vcc, 0, v{VT + 3}
  s_cbranch_vccz L_notready
  s_mov_b32 s{S_MODE}, 2
  s_branch L_ready
L_readylate:
  buffer_load_dwordx2 {vr(m2, 2)}, v{VML}, {sr(SW, 4)}, s{S_MLP} offen sc1
  s_waitcnt vmcnt(0)
  s_branch L_ready
""")
    a(f"""
L_generic:
  s_waitcnt vmcnt(0)
  s_lshl_b32 s{S_T}, s{S_PAIR}, 2
  s_add_u32 s{S_T}, s{S_T}, s{S_WAVE}
  s_lshl_b32 s{S_T + 1}, s{S_T}, 13
  s_add_u32 s{S_T + 3}, s{S_T + 1}, 4096
  s_lshl_b32 s{S_T + 2}, s{S_T}, 9
  s_add_u32 s{S_T + 2}, s{S_T + 2}, {WS_DML}
  s_lshl_b32 s{S_T + 4}, 2, s{S_SH}
  v_lshlrev_b32 v{VT + 8}, 4, v{VLANE}
  v_lshlrev_b32 v{VT + 3}, 3, v{VLANE}
  s_cmp_eq_u32 s{S_MODE}, 1
  s_cbranch_scc0 L_second
  buffer_store_dwordx2 {vr(VM, 2)}, v{VT + 3}, {sr(SW, 4)}, s{S_T + 2} offen sc1
""")
    for j in range(8):
        so = S_T + 1 if j < 4 else S_T + 3
        a(f"  buffer_store_dwordx4 {vr(VO + 4 * j, 4)}, v{VT + 8}, {sr(SW, 4)}, s{so} offen offset:{1024 * (j & 3)} sc1")
    a(f"""
  s_waitcnt vmcnt(0)
  s_barrier
  s_cmp_eq_u32 s{S_WAVE}, 0
  s_cbranch_scc0 L_done
  v_mov_b32 v{VT}, s{S_T + 4}
  s_mov_b64 exec, 1
  buffer_atomic_or v{VT}, v{VZ}, {sr(SD, 4)}, s{S_DW} offen sc1
  s_mov_b64 exec, -1
  s_branch L_done
L_second:
  buffer_load_dword v{VT}, v{VZ}, {sr(SD, 4)}, s{S_DW} offen sc1
  s_sub_u32 s{S_I}, s{S_I}, 1
  s_cbranch_scc1 L_end
  s_waitcnt vmcnt(0)
  v_and_b32 v{VT}, s{S_T + 4}, v{VT}
  v_cmp_ne_u32 vcc, 0, v{VT}
  s_cbranch_vccz L_second
  buffer_load_dwordx2 {vr(m2, 2)}, v{VT + 3}, {sr(SW, 4)}, s{S_T + 2} offen sc1
""")
    for j in range(8):
        so = S_T + 1 if j < 4 else S_T + 3
        a(f"  buffer_load_dwordx4 {vr(VF + 4 * j, 4)}, v{VT + 8}, {sr(SW, 4)}, s{so} offen offset:{1024 * (j & 3)} sc1")
    a("  s_waitcnt vmcnt(0)")
    a(weight_ops(m2, l2, wa, wb))
    for r in range(8):
        a(f"  v_cvt_pk_bf16_f32 v{PK + r}, v{VF + 2 * r}, v{VF + 2 * r + 1}")
        a(f"  v_cvt_pk_bf16_f32 v{B2 + r}, v{VO + 2 * r}, v{VO + 2 * r + 1}")
    a(scale_o(VO + 16, 16, wa) + scale_o(VF + 16, 16, wb))
    merge_half(a, o, VO + 16, PK, wb, tmp, dst, S_KEEP)
    merge_half(a, o, VF + 16, B2, wa, snd, dst, S_SEND)
    a("  s_branch L_done")


def diag(a, o):
    ts = lambda i: S_TS + 2 * i
    kind, idx, ref = (o.diag.split(":") + ["0"])[:3]
    idx, ref = int(idx), int(ref)
    T = S_T
    a(f"""
  s_add_u32 s{T + 1}, s{ts(0)}, 8000
L_dg0:
  s_sleep 8
  s_memrealtime s[{T + 2}:{T + 3}]
  s_waitcnt lgkmcnt(0)
  s_sub_u32 s{T + 2}, s{T + 2}, s{T + 1}
  s_cmp_lt_i32 s{T + 2}, 0
  s_cbranch_scc1 L_dg0
  s_mov_b64 exec, 1
  s_not_b32 s{T}, s{ts(0)}
  v_mov_b32 v4, s{T}
  buffer_atomic_umax v4, v{VZ}, {sr(SD, 4)}, 0 offen offset:244 sc1
  v_mov_b32 v5, s{ts(idx)}
  s_sub_u32 s{T}, s{ts(idx)}, s{ts(ref)}
  v_mov_b32 v6, s{T}
  buffer_atomic_umax v5, v{VZ}, {sr(SD, 4)}, 0 offen offset:248 sc1
  buffer_atomic_add v{6 if kind == "rel" else 5}, v{VZ}, {sr(SD, 4)}, 0 offen offset:252 sc1
  s_or_b32 s{T}, s2, s{S_WAVE}
  s_cmp_lg_u32 s{T}, 0
  s_cbranch_scc1 L_end
  s_add_u32 s{T + 1}, s{ts(0)}, 19000
L_dg1:
  s_memrealtime s[{T + 2}:{T + 3}]
  s_waitcnt lgkmcnt(0)
  s_sub_u32 s{T + 2}, s{T + 2}, s{T + 1}
  s_cmp_lt_i32 s{T + 2}, 0
  s_cbranch_scc1 L_dg1
  buffer_load_dword v4, v{VZ}, {sr(SD, 4)}, 0 offen offset:244 sc1
  buffer_load_dword v5, v{VZ}, {sr(SD, 4)}, 0 offen offset:{248 if kind == "max" else 252} sc1
  s_waitcnt vmcnt(0)
  v_readfirstlane_b32 s{T}, v4
  v_readfirstlane_b32 s{T + 1}, v5
  s_not_b32 s{T}, s{T}
""")
    if kind == "zero":
        a(f"  s_mov_b32 s{T + 1}, 0")
    elif kind == "max":
        a(f"  s_sub_u32 s{T + 1}, s{T + 1}, s{T}")
    elif kind == "rel":
        a(f"  s_lshr_b32 s{T + 1}, s{T + 1}, {10 - o.dgain}")
    else:
        a(f"  s_lshl_b32 s{T + 2}, s{T}, 10")
        a(f"  s_sub_u32 s{T + 1}, s{T + 1}, s{T + 2}")
        a(f"  s_lshr_b32 s{T + 1}, s{T + 1}, 10")
    a(f"""
  s_min_u32 s{T + 1}, s{T + 1}, 30000
  s_add_u32 s{T + 1}, s{T + 1}, 20000
  s_sub_u32 s{T + 2}, s{ts(0)}, s{T}
  s_min_u32 s{T + 2}, s{T + 2}, 1000
  s_sub_u32 s{T}, s{ts(0)}, s{T + 2}
  s_add_u32 s{T + 1}, s{T + 1}, s{T}
L_dg2:
  s_memrealtime s[{T + 2}:{T + 3}]
  s_waitcnt lgkmcnt(0)
  s_sub_u32 s{T + 2}, s{T + 2}, s{T + 1}
  s_cmp_lt_i32 s{T + 2}, 0
  s_cbranch_scc1 L_dg2
""")


def hooks(a, o):
    b = S_T
    a(f"""
L_hook:
  s_cmp_ge_u32 s{S_I}, {o.sent}
  s_cbranch_scc1 L_hook4
""")
    if o.epre:
        a(f"""
  s_cmp_eq_u32 s{S_I}, {o.epre}
  s_cbranch_scc0 L_hook1
  buffer_load_dword v{VOUT}, v{VBOX}, {sr(SQ, 4)}, s{S_SEND} offen{o.paux}
  s_mov_b32 s{S_HOOK}, {o.sent}
  s_branch L_hook_ret
L_hook1:
""")
    a(f"""
  s_mov_b64 exec, 1
  s_cmp_eq_u32 s{S_I}, {o.hello}
  s_cbranch_scc0 L_hook2
""")
    if o.force == "late":
        a(f"""
  s_cmp_eq_u32 s{S_HALF}, 0
  s_cbranch_scc1 L_nodelay
  s_lshl_b32 s{b + 1}, 1, s{S_SH}
  s_mov_b32 s{b + 2}, {SPIN}
L_delay:
  buffer_load_dword v{VT}, v{VZ}, {sr(SD, 4)}, s{S_DW} offen sc1
  s_sub_u32 s{b + 2}, s{b + 2}, 1
  s_cbranch_scc1 L_nodelay
  s_waitcnt vmcnt(0)
  v_and_b32 v{VT}, s{b + 1}, v{VT}
  v_cmp_ne_u32 vcc, 0, v{VT}
  s_cbranch_vccz L_delay
L_nodelay:
""")
    a(f"""
  s_cmp_eq_u32 s{S_HALF}, 0
  s_cbranch_scc1 L_hook_noswap
  v_swap_b32 v{VFL + 2}, v{VFL + 3}
L_hook_noswap:
  v_add_u32 v{VFL + 2}, s{S_ID}, v{VFL + 2}
  buffer_store_dword v{VFL + 2}, v{VZ}, {sr(SW, 4)}, s{S_FLO} offen offset:264
  s_mov_b32 s{S_HOOK}, {o.check}
  s_branch L_hook_out
L_hook2:
  s_cmp_eq_u32 s{S_I}, {o.check}
  s_cbranch_scc0 L_hook3
  buffer_load_dword v{VHS}, v{VZ}, {sr(SW, 4)}, s{S_FLP} offen offset:264 sc1
  s_mov_b32 s{S_HOOK}, {o.check + 1}
  s_branch L_hook_out
L_hook3:
  v_sub_u32 v{VHS}, v{VHS}, v{VFL + 3}
  v_cmp_eq_u32 vcc, s{S_ID}, v{VHS}
  v_mov_b32 v{VHS}, 0
  s_cbranch_vccnz L_hook_mode
  s_lshl_b32 s{b}, 1, s{S_SH}
  v_mov_b32 v{VHS}, s{b}
  buffer_atomic_or v{VHS}, v{VZ}, {sr(SD, 4)}, s{S_DW} offen sc0 sc1
  s_waitcnt vmcnt(0)
  v_bfe_u32 v{VHS}, v{VHS}, s{S_SH}, 1
  v_add_u32 v{VHS}, 1, v{VHS}
L_hook_mode:
  v_mov_b32 v{VT}, {LDS_MODE}
  ds_write_b32 v{VT}, v{VHS}
  s_mov_b32 s{S_HOOK}, {o.epre or o.sent}
  s_waitcnt lgkmcnt(0)
L_hook_out:
  s_mov_b64 exec, -1
  s_branch L_hook_ret
L_hook4:
  s_cmp_eq_u32 s{S_I}, {o.sent}
  s_cbranch_scc0 L_hook5
  v_mov_b32 v{VT}, {LDS_MODE}
  ds_read_b32 v{VHS}, v{VT}
  s_cmp_eq_u32 s{S_HALF}, 0
  s_cbranch_scc1 L_hook_noswap2
  v_swap_b32 v{VFL}, v{VFL + 1}
L_hook_noswap2:
  v_add_u32 v{VFL}, 1, v{VFL}
  v_mov_b32 v{VRDY}, v{VFL + 1}
  v_mov_b64 {vr(VT + 4, 2)}, -1
  v_mov_b64 {vr(VT + 6, 2)}, -1
""")
    a(xlane_ops("v_add_f32", VL, VT, VT + 1))
    a(f"""
  s_waitcnt lgkmcnt(0)
  v_readfirstlane_b32 s{S_MODE}, v{VHS}
  s_cmp_lg_u32 s{S_MODE}, 0
  s_cbranch_scc1 L_hook_ret
  buffer_store_dwordx4 {vr(VT + 4, 4)}, v{VBOX}, {sr(SQ, 4)}, s{S_SEND} offen
  buffer_store_dwordx4 {vr(VT + 4, 4)}, v{VBOX}, {sr(SQ, 4)}, s{S_SEND} offen offset:{o.boxstep}
  buffer_store_dwordx2 {vr(VM, 2)}, v{VML}, {sr(SW, 4)}, s{S_MLO} offen
  s_mov_b32 s{S_HOOK}, {o.sent + 1}
  s_branch L_hook_ret
L_hook5:
  s_cmp_eq_u32 s{S_I}, {o.sent + 1}
  s_cbranch_scc0 L_hook6
  buffer_store_dword v{VFL}, v{VZ}, {sr(SW, 4)}, s{S_FLO} offen offset:256
  s_mov_b32 s{S_HOOK}, {o.rdy if o.force != "nordy" else 99}
  s_branch L_hook_ret
L_hook6:
  s_cmp_eq_u32 s{S_I}, {o.rdy}
  s_cbranch_scc0 L_hook7
  buffer_load_dword v{VRDY}, v{VZ}, {sr(SW, 4)}, s{S_FLP} offen offset:256 sc1
  s_mov_b32 s{S_HOOK}, {o.rdy + 1}
  s_branch L_hook_ret
L_hook7:
  buffer_load_dwordx2 {vr(VQ, 2)}, v{VML}, {sr(SW, 4)}, s{S_MLP} offen sc1
  s_branch L_hook_ret
""")


def controller(a, o):
    nw = len(o.wins)
    x, e, g = S_T, S_T + 1, S_T + 2
    t = VT
    a(f"""
L_ctl:
  v_sub_u32 v{t}, v{VCT}, v{VCB}
  s_add_u32 s{x}, s{S_I}, 1
  v_add_u32 v{t + 1}, s{x}, v{VCB}
""")
    if o.lfirst:
        a(f"  s_cmp_lt_u32 s{S_I}, {o.lfirst}")
        a("  s_cbranch_scc1 L_ctl_nopub")
    a(f"""
  s_lshl_b64 exec, 1, s{S_SLOT}
  buffer_store_dword v{t + 1}, v{VCA}, {sr(SW, 4)}, s{S_LOC} offen
L_ctl_nopub:
  s_sub_u32 s{x}, s{S_I}, s{S_REP}
  s_cmp_gt_u32 s{x}, 1
  s_cbranch_scc1 L_ctl_nolead
  s_lshl_b64 exec, 1, 32
  s_cmp_eq_u32 s{x}, 0
  s_cbranch_scc0 L_ctl_rank
  v_mov_b32 v{VAT}, 1
  buffer_atomic_add v{VAT}, v{VZ}, {sr(SW, 4)}, s{S_REPV} offen sc0 sc1
  s_branch L_ctl_nolead
L_ctl_rank:
  v_sub_u32 v{VAT}, v{VAT}, v{VG0}
  v_lshl_add_u32 v{VAT}, v{VAT}, 1, v{VCB}
  v_subrev_u32 v{VAT}, 7, v{VAT}
  buffer_store_dword v{VAT}, v{VCA}, {sr(SW, 4)}, s{S_LOC} offen
L_ctl_nolead:
  s_mov_b64 exec, -1
""")
    if o.glead:
        a(f"""
  s_cmp_eq_i32 s{x}, {-o.glead}
  s_cbranch_scc0 L_ctl_nobase
  buffer_load_dword v{VG0}, v{VZ}, {sr(SW, 4)}, s{S_REPV} offen{o.gaux}
L_ctl_nobase:
""")
    a(f"""
  buffer_load_dword v{VCT}, v{VCA}, {sr(SW, 4)}, s{S_LOC} offen sc1
  s_cmp_lt_u32 s{S_I}, {o.cstart}
  s_cbranch_scc1 L_ctl_ret
  v_cmp_ne_u32 vcc, 0, v{t}
  v_readlane_b32 s{g}, v{t}, 32
  v_add_u32_dpp v{t}, v{t}, v{t} row_shr:1 row_mask:0xf bank_mask:0xf bound_ctrl:1
  s_nop 1
  v_add_u32_dpp v{t}, v{t}, v{t} row_shr:2 row_mask:0xf bank_mask:0xf bound_ctrl:1
  s_nop 1
  v_add_u32_dpp v{t}, v{t}, v{t} row_shr:4 row_mask:0xf bank_mask:0xf bound_ctrl:1
  s_nop 1
  v_add_u32_dpp v{t}, v{t}, v{t} row_shr:8 row_mask:0xf bank_mask:0xf bound_ctrl:1
  s_cmp_eq_u32 vcc_lo, -1
  s_cbranch_scc0 L_ctl_end
  v_readlane_b32 s{x}, v{t}, 15
  v_readlane_b32 s{e}, v{t}, 31
  s_max_i32 s{g}, s{g}, -7
  s_min_i32 s{g}, s{g}, 7
  s_add_u32 s{x}, s{x}, s{e}
  s_lshl_b32 s{e}, s{S_I}, 5
  s_sub_i32 s{e}, s{x}, s{e}
  s_add_i32 s{e}, s{e}, {32 - o.bias}
  s_max_i32 s{e}, s{e}, -128
  s_min_i32 s{e}, s{e}, 128
""")
    if o.ki or o.kig:
        a(f"""
  s_mul_i32 s{x}, s{e}, {o.ki}
  s_mul_i32 s{x + 3}, s{g}, {o.kig}
  s_cmp_lt_u32 s{S_I}, {o.istart}
  s_cmov_b32 s{x + 3}, 0
  s_add_i32 s{S_INT}, s{S_INT}, s{x}
  s_add_i32 s{S_INT}, s{S_INT}, s{x + 3}
  s_max_i32 s{S_INT}, s{S_INT}, {-o.imax}
  s_min_i32 s{S_INT}, s{S_INT}, {o.imax}
""")
    a(f"""
  s_mul_i32 s{e}, s{e}, {o.kp}
  s_mul_i32 s{x}, s{S_I}, {o.kslope}
  s_sub_i32 s{x}, {o.kpg1 or o.kpg}, s{x}
  s_max_i32 s{x}, s{x}, {o.kpg}
  s_min_i32 s{x}, s{x}, {o.kmax}
  s_mul_i32 s{g}, s{g}, s{x}
  s_add_i32 s{e}, s{e}, s{g}
""")
    if o.ki or o.kig:
        a(f"  s_add_i32 s{e}, s{e}, s{S_INT}")
    if o.sd:
        a(f"""
  s_add_i32 s{e}, s{e}, {int(o.w0 * 512)}
  s_add_i32 s{e}, s{e}, s{S_REM}
  s_and_b32 s{S_REM}, s{e}, 511
""")
    else:
        a(f"  s_add_i32 s{e}, s{e}, {int(o.w0 * 512 + 256)}")
    a(f"""
  s_ashr_i32 s{e}, s{e}, 9
  s_max_i32 s{e}, s{e}, 0
  s_min_i32 s{e}, s{e}, {nw - 1}
""")
    if o.stamp:
        a(f"  s_add_u32 s{S_WSUM}, s{S_WSUM}, s{e}")
    a(f"""
  v_mov_b32 v{t}, s{e}
  v_mov_b32 v{t + 2}, {LDS_WIN}
  ds_write_b32 v{t + 2}, v{t}
  s_waitcnt lgkmcnt(0)
L_ctl_end:
  s_cmp_lt_u32 s{S_I}, {o.cend}
  s_cselect_b32 s{S_CTL}, s{S_CTL}, 0
  s_branch L_ctl_ret
""")


def build(o):
    a = Asm()
    a(HEADER)
    label = f"{NAME}_kernel"
    a(f"; @launch grid=(256,1,1) block=(320,1,1) lds={LDS_BYTES}")
    a('.amdgcn_target "amdgcn-amd-amdhsa--gfx950"')
    a(f"""
.text
.globl {label}
{".p2align 12" if o.align else ""}
.p2align 8
.type {label},@function
{label}:
  s_load_dwordx8 s[{S_ARG}:{S_ARG + 7}], s[0:1], 0
  s_load_dwordx4 s[{S_ARG + 8}:{S_ARG + 11}], s[0:1], 32
  s_cmp_ge_u32 s2, 256
  s_cbranch_scc1 L_end
""")
    if o.skew:
        a(f"""
  s_memrealtime s[{S_TS}:{S_TS + 1}]
  s_getreg_b32 s{S_T}, hwreg(HW_REG_XCC_ID, 0, 4)
  s_lshl_b32 s{S_T}, s{S_T}, 2
  s_add_u32 s{S_T}, s{S_T}, 0xb00000
  s_waitcnt lgkmcnt(0)
  s_load_dword s{S_T + 1}, s[{S_ARG + 10}:{S_ARG + 11}], s{S_T}
  s_waitcnt lgkmcnt(0)
  s_min_u32 s{S_T + 1}, s{S_T + 1}, 1000
  s_add_u32 s{S_T + 1}, s{S_T + 1}, s{S_TS}
L_skew:
  s_memrealtime s[{S_T + 2}:{S_T + 3}]
  s_waitcnt lgkmcnt(0)
  s_sub_u32 s{S_T + 2}, s{S_T + 2}, s{S_T + 1}
  s_cmp_lt_i32 s{S_T + 2}, 0
  s_cbranch_scc1 L_skew
""")
    stamp(a, o, 0)
    a(f"  v_readfirstlane_b32 s{S_WAVE}, v0")
    if o.map == 0:
        a(f"""
  s_and_b32 s{S_T}, s2, 7
  s_lshr_b32 s{S_T + 1}, s2, 4
  s_lshl_b32 s{S_T + 1}, s{S_T + 1}, 3
  s_or_b32 s{S_PAIR}, s{S_T}, s{S_T + 1}
  s_bfe_u32 s{S_HALF}, s2, 0x10003
""")
    else:
        a(f"""
  s_lshr_b32 s{S_PAIR}, s2, 1
  s_and_b32 s{S_HALF}, s2, 1
""")
    a(f"""
  s_lshr_b32 s{S_WAVE}, s{S_WAVE}, 6
  s_cmp_eq_u32 s{S_WAVE}, 0
""")
    if o.cpf:
        a(f"""
  s_cbranch_scc1 L_loader
  s_cmp_lg_u32 s{S_WAVE}, 4
  s_cbranch_scc1 L_compute
  s_getpc_b64 s[{S_T + 2}:{S_T + 3}]
L_pc:
  s_lshr_b32 s{S_T}, s2, 3
  s_lshl_b32 s{S_T}, s{S_T}, {8 + o.cpf}
  v_and_b32 v1, {(2 << o.cpf) - 1}, v0
  v_lshl_add_u32 v1, v1, 7, s{S_T}
  v_min_u32 v1, L_code_end-L_pc-4, v1
  v_mov_b32 v3, s{S_T + 3}
  v_add_co_u32 v2, vcc, s{S_T + 2}, v1
  s_nop 1
  v_addc_co_u32 v3, vcc, 0, v3, vcc
  global_load_dword v{VOUT}, v[2:3], off
  s_branch L_compute
L_loader:
""")
    else:
        a("  s_cbranch_scc0 L_compute")
    loader(a, o)
    if o.align:
        a(".p2align 12")
    prologue(a, o)
    if o.touch:
        a(f"  s_cmp_eq_u32 s{S_WAVE}, 2")
        a("  s_cbranch_scc1 L_touch0")
    a("  s_branch L_loop")
    controller(a, o)
    hooks(a, o)
    mainloop(a, o)
    epilogue(a, o)
    a(f"""
L_code_end:
.section .rodata,"a"
.p2align 6
.amdhsa_kernel {label}
  .amdhsa_next_free_vgpr {NVGPR}
  .amdhsa_next_free_sgpr {NSGPR}
  .amdhsa_accum_offset {NVGPR}
  .amdhsa_group_segment_fixed_size 0
  .amdhsa_kernarg_size 48
  .amdhsa_user_sgpr_count 2
  .amdhsa_user_sgpr_kernarg_segment_ptr 1
  .amdhsa_system_sgpr_workgroup_id_x 1
.end_amdhsa_kernel
""")
    return a.text()


if __name__ == "__main__":
    ap = argparse.ArgumentParser()
    ap.add_argument("-o", default="cdna_kernels/" + NAME + ".s")
    ap.add_argument("--nq", type=int, default=8)
    ap.add_argument("--run", type=int, default=0)
    ap.add_argument("--tu", type=int, default=2)
    ap.add_argument("--wins", default="17,18,19,20,21,22,23,24,26,28")
    ap.add_argument("--winit", type=int, default=21)
    ap.add_argument("--wtail", type=int, default=21)
    ap.add_argument("--w0", type=float, default=3.75)
    ap.add_argument("--kp", type=int, default=40)
    ap.add_argument("--kpg", type=int, default=140)
    ap.add_argument("--bias", type=int, default=16)
    ap.add_argument("--kpg1", type=int, default=0)
    ap.add_argument("--kslope", type=int, default=0)
    ap.add_argument("--kmax", type=int, default=300)
    ap.add_argument("--ki", type=int, default=0)
    ap.add_argument("--kig", type=int, default=0)
    ap.add_argument("--istart", type=int, default=12)
    ap.add_argument("--imax", type=int, default=1024)
    ap.add_argument("--sd", type=int, default=1)
    ap.add_argument("--lfirst", type=int, default=0)
    ap.add_argument("--gfirst", type=int, default=1)
    ap.add_argument("--gstep", type=int, default=1)
    ap.add_argument("--glast", type=int, default=25)
    ap.add_argument("--cstart", type=int, default=2)
    ap.add_argument("--cend", type=int, default=-1)
    ap.add_argument("--hello", type=int, default=1)
    ap.add_argument("--check", type=int, default=19)
    ap.add_argument("--sent", type=int, default=24)
    ap.add_argument("--rdy", type=int, default=27)
    ap.add_argument("--prepos", type=int, default=0)
    ap.add_argument("--epre", type=int, default=0)
    ap.add_argument("--box", type=int, default=1)
    ap.add_argument("--fetch", default="e")
    ap.add_argument("--nprek", type=int, default=8)
    ap.add_argument("--cpf", type=int, default=1)
    ap.add_argument("--bits", default="12,13,14,8,9,10,11")
    ap.add_argument("--split", type=int, default=15)
    ap.add_argument("--rsel", default="")
    ap.add_argument("--aux", default="nt")
    ap.add_argument("--qaux", default="")
    ap.add_argument("--qplan", default="4")
    ap.add_argument("--x", default="")
    ap.add_argument("--diag", default="")
    ap.add_argument("--clk", action="store_true")
    ap.add_argument("--trace", action="store_true")
    ap.add_argument("--align", type=int, default=1)
    ap.add_argument("--touch", type=int, default=1)
    ap.add_argument("--dgain", type=int, default=3)
    ap.add_argument("--gaux", default="")
    ap.add_argument("--glead", type=int, default=4)
    ap.add_argument("--oaux", default="")
    ap.add_argument("--paux", default="sc1")
    ap.add_argument("--stamp", action="store_true")
    ap.add_argument("--skew", action="store_true")
    ap.add_argument("--lstamp", action="store_true")
    ap.add_argument("--sstamp", action="store_true")
    ap.add_argument("--st", default="0,8,16")
    ap.add_argument("--estamp", type=int, default=0)
    ap.add_argument("--map", type=int, default=0)
    ap.add_argument("--force", default="")
    o = ap.parse_args()
    o.wins = [int(x) for x in o.wins.split(",")]
    o.st = [int(x) for x in o.st.split(",")]
    o.bits = [int(x) for x in o.bits.split(",")]
    rest = [b for b in range(8, 20) if b not in o.bits and b != o.split]
    assert rest == list(range(rest[0], rest[0] + 4))
    o.ustride = 1 << rest[0]
    o.rsel = [int(x) for x in o.rsel.split(",")] if o.rsel else []
    o.ntouch = 0
    o.boxstep = 2048 if o.box else 64
    o.run = o.run or o.nq
    o.stamp = o.stamp or bool(o.diag)
    assert o.tu <= 2 and o.sent >= 24 and o.rdy + 1 <= 30 - o.tu
    if o.cend < 0:
        o.cend = 29 - o.tu
    fx = lambda s: (" " + s.replace(",", " ")) if s else ""
    o.aux, o.qaux, o.oaux, o.paux, o.gaux = fx(o.aux), fx(o.qaux), fx(o.oaux), fx(o.paux), fx(o.gaux)
    open(o.o, "w").write(build(o))
```

```python
import argparse
import math
import struct

NAME = "standalone__gqa_softmax__sampling"

HEADER = """; Kernarg layout for this problem (48 bytes, ptrs only, base s[0:1]):
"""


class Asm:
    def __init__(self):
        self.lines = []

    def __call__(self, s):
        if isinstance(s, (list, tuple)):
            for x in s:
                self(x)
            return
        for ln in s.strip("\n").split("\n"):
            if ln.strip():
                self.lines.append(ln)

    def text(self):
        return "\n".join(self.lines) + "\n"


class LdsTracker:
    def __init__(self, a):
        self.a, self.issued, self.done = a, 0, 0

    def need(self, n):
        assert n <= self.issued
        if n > self.done:
            self.a(f"  s_waitcnt lgkmcnt({self.issued - n})")
            self.done = n

    def issue(self, line):
        if self.issued - self.done >= 15:
            self.need(self.issued - 11)
        self.a(line)
        self.issued += 1


def vr(a, n=1):
    return f"v{a}" if n == 1 else f"v[{a}:{a + n - 1}]"


def sr(a, n):
    return f"s[{a}:{a + n - 1}]"


def f32hex(x):
    return "0x%08x" % struct.unpack("<I", struct.pack("<f", x))[0]


VQ = 4
VO = 20
VS = 52
VF = 84
VP = 148
VAL = (212, 214, 213, 215, 0, 1, 2, 3)
VKA = 216
VVA = 220
VM = 228
VL = 229
VT = 230
VPL = 239
VML = 240
VRDY = 241
VLANE = 242
VHS = 243
VZ = 244
VCT = 245
VCB = 246
VCA = 247
VFL = 248
VBOX = 252
VG0 = 253
VAT = 254
VOUT = 255
NVGPR = 256
VDA = 4
VDB = 8
VDT = 24

SA = 4
S_BB = 8
SQ = 12
SW = 16
S_WAVE = 20
S_I = 21
S_OFFA = 22
S_OFFB = 23
S_DL = 24
S_RD = 25
S_C = 26
S_PAIR = 40
S_ARG = 28
S_HALF = 41
S_T = 42
S_TS = 48
SD = 60
S_HOOK = 64
S_BLK = 65
S_KEEP = 66
S_SEND = 67
S_MODE = 68
S_OUT = 69
S_SH = 70
S_CTL = 71
S_REP = 72
S_REPV = 73
S_PL = 74
S_WSUM = 75
S_DW = 76
S_ID = 77
S_LOC = 78
S_SLOT = 79
S_MLO = 80
S_MLP = 81
S_FLO = 82
S_FLP = 83
S_INT = 86
S_REM = 87
S_BG = 92
S_MSK = 84
S_NMSK = 85
NSGPR = 96

UNIT = 32768
NS = 3
LDS_P = UNIT * NS
LDS_MODE = LDS_P + 3 * 16384
LDS_WIN = LDS_MODE + 4
LDS_BYTES = LDS_MODE + 64
BIAS = 4096

WS_DUMP = 0x0
WS_DML = 0x400000
WS_BLK = 0x500000
WS_REP = 0x600000
WS_LOC = 0x700000
REP_STRIDE = 4352
WS_STAMP = 0xC00000
WS_SIZE = 0x1000000
SPIN = 0x40000


def stamp(a, o, idx, wait=False):
    if o.stamp:
        op = "s_memtime" if o.clk and idx in (4, 5) else "s_memrealtime"
        a(f"  {op} s[{S_TS + 2 * idx}:{S_TS + 2 * idx + 1}]")
        if wait:
            a("  s_waitcnt lgkmcnt(0)")


def lbarrier(a, o, slot=None):
    if not o.lstamp:
        a("  s_barrier")
        return
    a("""
  s_memtime s[88:89]
  s_barrier
  s_memtime s[90:91]
  s_waitcnt lgkmcnt(0)
  s_sub_u32 s88, s90, s88
""")
    if slot is not None:
        a(f"  s_mov_b32 s{S_TS + 2 + slot}, s88")
    else:
        a(f"  s_add_u32 s{S_TS + 2}, s{S_TS + 2}, s88")


def sstamp(a, o, k):
    if o.sstamp:
        a(f"  s_memrealtime s[{86 + 2 * k}:{87 + 2 * k}]")


def touch(a, o, last=False):
    if o.touch:
        a(f"L_touch{o.ntouch}:")
        a(f"  s_branch {'L_loop' if last else f'L_touch{o.ntouch + 1}'}")
        o.ntouch += 1


def add_imm(a, reg, inc):
    a(f"  s_addk_i32 {reg}, {inc}" if -32768 <= inc < 32768 else f"  s_add_u32 {reg}, {reg}, {inc}")


def spread(x, bits):
    return sum(((x >> i) & 1) << b for i, b in enumerate(bits))


def masked_inc(a, off):
    a(f"  s_or_b32 s{off}, s{off}, s{S_NMSK}")
    a(f"  s_add_u32 s{off}, s{off}, 1")
    a(f"  s_and_b32 s{off}, s{off}, s{S_MSK}")


def unit_body(a, o, w, barrier_at, first=False, mid=None):
    for g in range(8):
        if mid is not None and g == 7:
            a(mid)
        for p in range(4):
            n = 4 * g + p
            if first and n == min(w, 31):
                sstamp(a, o, 1)
                loader_late_setup(a, o)
                sstamp(a, o, 2)
            if not first or n >= w:
                a(f"  s_waitcnt vmcnt({w - 1})")
                if first and n == w:
                    sstamp(a, o, 3)
            elif p == 0:
                a("  s_nop 0")
            a(f"  buffer_load_dwordx4 v{VDA + p}, {sr(SA, 4)}, s{S_OFFA} offen offset:{1024 * p}{o.aux} lds")
            if n == barrier_at:
                lbarrier(a, o)
        if o.rsel and g & 1:
            masked_inc(a, S_OFFA)
        else:
            nxt = spread(g + 1, o.bits[4:7]) if g < 7 else o.ustride
            add_imm(a, f"s{S_OFFA}", nxt - spread(g, o.bits[4:7]))
        a("  s_addk_i32 m0, 4096")


def dispatch(a, lo, hi):
    if lo == hi:
        a(f"  s_branch L_ld_v{lo}")
        return
    mid = (lo + hi + 1) // 2
    a(f"  s_cmp_ge_u32 s{S_T}, {mid}")
    if mid == hi:
        a(f"  s_cbranch_scc1 L_ld_v{mid}")
        dispatch(a, lo, mid - 1)
        return
    a(f"  s_cbranch_scc1 L_dsp_{mid}_{hi}")
    dispatch(a, lo, mid - 1)
    a(f"L_dsp_{mid}_{hi}:")
    dispatch(a, mid, hi)


def loader_late_setup(a, o):
    b = o.bits
    pconst = [spread(p, b[2:4]) - 1024 * p for p in range(4)]
    a(f"""
  s_add_u32 s{S_BB}, s{S_ARG + 4}, s{S_T}
  s_addc_u32 s{S_BB + 1}, s{S_ARG + 5}, s{S_T + 2}
  v_lshlrev_b32 v12, 1, v3
  v_xor_b32 v12, v2, v12
  v_lshl_add_u32 v{VDB}, v12, 4, v1
  v_xor_b32 v13, 8, v12
  v_lshl_add_u32 v{VDB + 1}, v13, 4, v1
  v_add_u32 v{VDB + 2}, {pconst[2]}, v{VDB}
  v_add_u32 v{VDB + 3}, {pconst[3]}, v{VDB + 1}
  v_add_u32 v{VDB + 1}, {pconst[1]}, v{VDB + 1}
  v_mov_b32 v12, {LDS_WIN}
  s_mov_b32 s{S_I}, 1
  s_mov_b32 s{SQ}, s{S_ARG + 6}
  s_mov_b32 s{SQ + 1}, s{S_ARG + 7}
  s_mov_b32 s{SQ + 2}, 0x200000
  s_mov_b32 s{SQ + 3}, 0x20000
  s_lshl_b32 s{S_KEEP}, s{S_PAIR}, 14
  s_lshl_b32 s{S_T + 3}, s{S_HALF}, 7
  s_or_b32 s{S_KEEP}, s{S_KEEP}, s{S_T + 3}
  v_lshlrev_b32 v14, 8, v0
  v_and_b32 v18, 7, v0
  v_lshlrev_b32 v19, 1, v3
  v_xor_b32 v18, v18, v19
  v_lshl_add_u32 v18, v18, 4, s{S_T + 1}
  v_bfe_u32 v19, v0, 3, 1
  v_lshl_add_u32 v18, v19, {b[0]}, v18
  v_bfe_u32 v19, v0, 4, 1
  v_lshl_add_u32 v18, v19, {b[1]}, v18
  v_lshrrev_b32 v19, 5, v0
  v_lshl_add_u32 v18, v19, {b[2]}, v18
  v_add_u32 v{VDT + 4}, s{S_T + 3}, v18
""")
    for p in range(1, 4):
        a(f"  v_add_u32 v{VDT + 4 + p}, {spread(p, b[3:5]) - 1024 * p}, v{VDT + 4}")
    for p in range(4):
        a(f"  v_xor_b32 v{VDT + p}, 128, v{VDT + 4 + p}")
    if o.lstamp:
        a(f"  s_mov_b32 s{S_TS + 2}, 0")


def loader(a, o):
    wins, b = o.wins, o.bits
    multi = len(wins) > 1
    nfull = 32 - o.tu
    a(f"""
  s_setprio 3
  v_and_b32 v2, 15, v0
  v_lshrrev_b32 v3, 4, v0
  s_lshl_b32 s{S_T + 1}, s{S_HALF}, {o.split}
  s_addk_i32 s{S_T + 1}, {BIAS}
""")
    if b[1] == b[0] + 1:
        a(f"  v_lshl_add_u32 v1, v3, {b[0]}, s{S_T + 1}")
    else:
        a(f"""
  v_and_b32 v1, 1, v3
  v_lshl_add_u32 v1, v1, {b[0]}, s{S_T + 1}
  v_lshrrev_b32 v12, 5, v0
  v_lshl_add_u32 v1, v12, {b[1]}, v1
""")
    a("  v_xor_b32 v12, v2, v3")
    for p in range(4):
        c = spread(p, b[2:4]) - 1024 * p
        if p:
            a(f"  v_xor_b32 v13, {4 * p}, v12")
        a(f"  v_lshl_add_u32 v{VDA + p}, v{13 if p else 12}, 4, v1")
        if c:
            a(f"  v_add_u32 v{VDA + p}, {c}, v{VDA + p}")
    a(f"""
  s_mov_b32 s{SA + 2}, {0x100000 + BIAS}
  s_mov_b32 s{SA + 3}, 0x20000
  s_mov_b32 m0, 0
""")
    if o.rsel:
        assert b[6] == b[5] + 1
        mask = (3 << b[5]) | (15 * o.ustride)
        a(f"  s_mov_b32 s{S_MSK}, {hex(mask)}")
        a(f"  s_not_b32 s{S_NMSK}, s{S_MSK}")
        for k, sh in enumerate(o.rsel):
            a(f"  s_lshr_b32 s{S_OFFA if k == 0 else S_OFFB}, s{S_PAIR}, {sh}")
            if k:
                a(f"  s_add_u32 s{S_OFFA}, s{S_OFFA}, s{S_OFFB}")
        a(f"  s_and_b32 s{S_OFFA}, s{S_OFFA}, 3")
        a(f"  s_lshl_b32 s{S_OFFA}, s{S_OFFA}, {b[5]}")
    else:
        a(f"  s_mov_b32 s{S_OFFA}, 0")
    a(f"""
  s_mov_b32 s{S_OFFB}, s{S_OFFA}
  s_lshl_b32 s{S_T}, s{S_PAIR}, 20
  s_sub_u32 s{S_T}, s{S_T}, {BIAS}
  s_subb_u32 s{S_T + 2}, 0, 0
  s_waitcnt lgkmcnt(0)
  s_add_u32 s{SA}, s{S_ARG + 2}, s{S_T}
  s_addc_u32 s{SA + 1}, s{S_ARG + 3}, s{S_T + 2}
""")
    first = wins.index(o.winit)
    sstamp(a, o, 0)
    unit_body(a, o, o.winit, None, first=True)
    sstamp(a, o, 4)
    order = sorted(range(len(wins)), key=lambda i: (abs(i - first), i))

    def swap_block():
        a(f"""
L_ld_swap:
  s_mov_b64 s[{S_T + 4}:{S_T + 5}], s[{SA}:{SA + 1}]
  s_mov_b64 s[{SA}:{SA + 1}], s[{S_BB}:{S_BB + 1}]
  s_mov_b64 s[{S_BB}:{S_BB + 1}], s[{S_T + 4}:{S_T + 5}]
  s_mov_b32 s{S_T}, s{S_OFFA}
  s_mov_b32 s{S_OFFA}, s{S_OFFB}
  s_mov_b32 s{S_OFFB}, s{S_T}
""")
        for p in range(4):
            a(f"  v_swap_b32 v{VDA + p}, v{VDB + p}")
        if multi:
            a(f"""
  s_waitcnt lgkmcnt(0)
  v_readfirstlane_b32 s{S_T}, v13
L_ld_dispatch:
""")
        dispatch(a, 0, len(wins) - 1)

    for pos, vi in enumerate(order):
        w = wins[vi]
        if pos == 4 and o.align:
            a(".p2align 12")
        if pos >= 2 and pos % 2 == 0:
            touch(a, o)
        a(f"L_ld_v{vi}:")
        rd = "  ds_read_b32 v13, v12"
        early = w - 1 < 28
        unit_body(a, o, w, w - 1, mid=rd if multi and early else None)
        if multi and not early:
            a(rd)
        a(f"""
  s_cmp_ge_u32 m0, {UNIT * NS}
  s_cselect_b32 m0, 0, m0
  s_add_u32 s{S_I}, s{S_I}, 1
  s_and_b32 s{S_T}, s{S_I}, {o.run - 1}
  s_cbranch_scc0 L_ld_swap
  s_cmp_eq_u32 s{S_I}, {nfull}
  s_cbranch_scc1 L_ld_tail
""")
        if multi:
            a(f"""
  s_waitcnt lgkmcnt(0)
  v_readfirstlane_b32 s{S_T}, v13
  s_cmp_eq_u32 s{S_T}, {vi}
  s_cbranch_scc1 L_ld_v{vi}
  s_branch L_ld_dispatch
""")
        else:
            a(f"  s_branch L_ld_v{vi}")
        if pos == 0:
            swap_block()
    touch(a, o, last=True)
    w = o.wtail
    npre = 0 if o.epre else 1
    total = 32 * o.tu
    preread = f"""
  buffer_load_dword v16, v14, {sr(SQ, 4)}, s{S_KEEP} offen{o.paux}
"""
    if o.epre:
        preread = ""
    assert o.prepos <= w - 1
    marks = [0] + list(range(16, total, 16)) + [total - 8, total]
    a(f"""
L_ld_tail:
  s_mov_b32 s{S_OFFB}, s{S_OFFA}
""")
    slot = lambda k: max(1, k + 6 - len(marks))
    wn = lambda n: w if n < total - o.wlast[0] else o.wlast[1]
    nxtm = 0
    for g in range(total // 4):
        off = S_OFFA if g < total // 8 else S_OFFB
        for p in range(4):
            n = 4 * g + p
            a(f"  s_waitcnt vmcnt({wn(n) - 1})")
            a(f"  buffer_load_dwordx4 v{VDT + p + (0 if off == S_OFFA else 4)}, {sr(SA, 4)}, s{off} offen offset:{1024 * p}{o.aux} lds")
            if n - (wn(n) - 1) >= marks[nxtm]:
                assert nxtm > 0 or n < 32
                lbarrier(a, o, slot(nxtm))
                nxtm += 1
        if (g + 1) % (total // 8) and o.rsel:
            masked_inc(a, off)
        elif (g + 1) % (total // 8):
            nxt = spread((g & 3) + 1, b[5:7]) if g & 3 < 3 else o.ustride
            add_imm(a, f"s{off}", nxt - spread(g & 3, b[5:7]))
        if g + 1 < total // 4:
            a("  s_addk_i32 m0, 4096")
    a(preread)
    for k in range(nxtm, len(marks)):
        a(f"  s_waitcnt vmcnt({total - marks[k] + npre})")
        lbarrier(a, o, slot(k))
    if o.sstamp:
        for k in range(5):
            a(f"  s_mov_b32 s{S_TS + 2 + k}, s{86 + 2 * k}")
    if o.lstamp or o.sstamp:
        a(f"  s_mov_b32 s{SW}, s{S_ARG + 10}\n  s_mov_b32 s{SW + 1}, s{S_ARG + 11}\n  s_mov_b32 s{SW + 2}, {WS_SIZE}\n  s_mov_b32 s{SW + 3}, 0x20000")
        a(f"  s_lshl_b32 s{S_T}, s2, 5")
        a(f"  s_add_u32 s{S_T}, s{S_T}, {WS_STAMP + 32768}")
        for k in range(8):
            a(f"  v_mov_b32 v{32 + k}, s{S_TS + k}")
        a("  v_mov_b32 v40, 0")
        a(f"  buffer_store_dwordx4 v[32:35], v40, {sr(SW, 4)}, s{S_T} offen")
        a(f"  buffer_store_dwordx4 v[36:39], v40, {sr(SW, 4)}, s{S_T} offen offset:16")
    a("  s_endpgm")


def mfma(d, x, y, c):
    return f"  v_mfma_f32_16x16x32_bf16 {vr(d, 4)}, {vr(x, 4)}, {vr(y, 4)}, {'0' if c is None else vr(c, 4)}"


def scale_o(lo, n, al):
    return [f"  v_pk_mul_f32 {vr(r, 2)}, {vr(r, 2)}, {vr(al, 2)} op_sel_hi:[1,0]" for r in range(lo, lo + n, 2)]


def fma_o(lo, n, al, add):
    return [f"  v_pk_fma_f32 {vr(lo + r, 2)}, {vr(lo + r, 2)}, {vr(al, 2)}, {vr(add + r, 2)} op_sel_hi:[1,0,1]" for r in range(0, n, 2)]


def xlane_ops(op, reg, t0, t1):
    return [
        f"  v_mov_b32 v{t0}, v{reg}",
        f"  v_mov_b32 v{t1}, v{reg}",
        "  s_nop 1",
        f"  v_permlane32_swap_b32 v{t0}, v{t1}",
        f"  {op} v{t0}, v{t0}, v{t1}",
        f"  v_mov_b32 v{t1}, v{t0}",
        "  s_nop 1",
        f"  v_permlane16_swap_b32 v{t0}, v{t1}",
        f"  {op} v{reg}, v{t0}, v{t1}",
    ]


def shift_p():
    return [f"  v_mov_b64 {vr(VP + r, 2)}, {vr(VP + 16 + r, 2)}" for r in range(0, 48, 2)]


def shift_al():
    return [f"  v_mov_b32 v{VAL[k]}, v{VAL[k + 1]}" for k in range(7)]


def copy16(dst, src):
    return [f"  v_mov_b64 {vr(dst + r, 2)}, {vr(src + r, 2)}" for r in range(0, 16, 2)]


def next_slot():
    return [
        f"  s_add_u32 s{S_RD}, s{S_RD}, 1",
        f"  s_cmp_eq_u32 s{S_RD}, {NS}",
        f"  s_cselect_b32 s{S_RD}, 0, s{S_RD}",
        f"  s_mov_b32 s{S_DL}, {UNIT}",
        f"  s_cmov_b32 s{S_DL}, {-(NS - 1) * UNIT}",
    ]


def adv(r):
    return f"  v_add_u32 v{r}, s{S_DL}, v{r}"


def weight_ops(m2, l2, wa, wb):
    return [
        f"  v_max_f32 v{wb + 1}, v{VM}, v{m2}",
        f"  v_sub_f32 v{wa}, v{VM}, v{wb + 1}",
        f"  v_sub_f32 v{wb}, v{m2}, v{wb + 1}",
        f"  v_exp_f32 v{wa}, v{wa}",
        f"  v_exp_f32 v{wb}, v{wb}",
        f"  v_mul_f32 v{wa + 1}, v{VL}, v{wa}",
        f"  v_mul_f32 v{wb + 1}, v{l2}, v{wb}",
        f"  v_add_f32 v{wa + 1}, v{wa + 1}, v{wb + 1}",
        f"  v_rcp_f32 v{wa + 1}, v{wa + 1}",
        "  s_nop 0",
        f"  v_mul_f32 v{wa}, v{wa}, v{wa + 1}",
        f"  v_mul_f32 v{wb}, v{wb}, v{wa + 1}",
    ]


def merge_half(a, o, own, pk, w_oth, tmp, dst, soff):
    for m in range(2):
        for h in range(4):
            a(f"  v_lshlrev_b32 v{tmp + 2 * h}, 16, v{pk + 4 * m + h}")
            a(f"  v_and_b32 v{tmp + 2 * h + 1}, 0xffff0000, v{pk + 4 * m + h}")
        a(fma_o(tmp, 8, w_oth, own + 8 * m))
        d = dst + 4 * m
        for h in range(4):
            a(f"  v_cvt_pk_bf16_f32 v{d + h}, v{tmp + 2 * h}, v{tmp + 2 * h + 1}")
            if h & 1:
                a(f"  ds_write_b64 v{VVA + 2 * m + (h >> 1)}, {vr(d + h - 1, 2)}")
    for m in range(2):
        a(f"  ds_read_b128 {vr(tmp + 4 * m, 4)}, v{VOUT} offset:{1024 * m}")
    for m in range(2):
        a(f"  s_waitcnt lgkmcnt({1 - m})")
        a(f"  buffer_store_dwordx4 {vr(tmp + 4 * m, 4)}, v{VBOX}, {sr(SQ, 4)}, s{soff} offen offset:{2048 * m}{o.oaux}")


def prologue(a, o):
    c = (128 ** -0.5) * math.log2(math.e)
    multi = len(o.wins) > 1
    a(f"""
L_compute:
  s_sub_u32 s{S_WAVE}, s{S_WAVE}, 1
  v_and_b32 v{VLANE}, 63, v0
  v_and_b32 v2, 15, v0
  v_bfe_u32 v3, v0, 4, 2
  s_mov_b32 s{SQ + 2}, 0x200000
  s_mov_b32 s{SQ + 3}, 0x20000
  s_mov_b32 s{SW + 2}, {WS_SIZE}
  s_mov_b32 s{SW + 3}, 0x20000
  s_mov_b32 s{SD + 2}, 256
  s_mov_b32 s{SD + 3}, 0x20000
  s_lshl_b32 s{S_T}, s{S_PAIR}, 2
  s_add_u32 s{S_T}, s{S_T}, s{S_WAVE}
  s_lshl_b32 s{S_OUT}, s{S_T}, 12
  s_lshl_b32 s{S_BLK}, s{S_T}, 9
  s_add_u32 s{S_BLK}, s{S_BLK}, {WS_BLK}
  s_lshl_b32 s{S_T}, s{S_HALF}, 7
  s_add_u32 s{S_KEEP}, s{S_OUT}, s{S_T}
  s_xor_b32 s{S_SEND}, s{S_KEEP}, 128
  v_lshlrev_b32 v{VT}, 8, v2
  v_xor_b32 v{VT + 1}, v2, v3
  v_lshlrev_b32 v{VT + 2}, 8, v3
  v_lshl_add_u32 v{VT + 4}, v{VT + 1}, 4, v{VT + 2}
  v_xor_b32 v{VT + 5}, 64, v{VT + 4}
  v_xor_b32 v{VT + 6}, 128, v{VT + 4}
  v_xor_b32 v{VT + 7}, 192, v{VT + 4}
  s_lshl_b32 s{S_PL}, s{S_WAVE}, 12
  s_add_u32 s{S_PL}, s{S_PL}, {LDS_P}
  s_mov_b32 m0, s{S_PL}
  v_bfe_u32 v{VBOX}, v0, 3, 3
  v_lshlrev_b32 v{VBOX}, 8, v{VBOX}
  v_and_b32 v1, 7, v0
  v_lshl_add_u32 v{VBOX}, v1, 4, v{VBOX}
  v_mov_b32 v{VZ}, 0
  v_min_u32 v{VCA}, 32, v{VLANE}
  v_lshlrev_b32 v{VCA}, 2, v{VCA}
  s_getreg_b32 s{S_ID}, hwreg(HW_REG_XCC_ID, 0, 4)
  s_mul_i32 s{S_LOC}, s{S_ID}, {REP_STRIDE}
  s_add_u32 s{S_LOC}, s{S_LOC}, {WS_LOC}
  s_or_b32 s{S_ID}, s{S_ID}, 16
  s_lshr_b32 s{S_SLOT}, s2, 3
  s_mul_i32 s{S_REPV}, s{S_SLOT}, {REP_STRIDE}
  s_add_u32 s{S_REPV}, s{S_REPV}, {WS_REP}
  s_mul_i32 s{S_REP}, s{S_SLOT}, {o.gstep}
  s_add_u32 s{S_REP}, s{S_REP}, {o.gfirst}
  s_cmp_le_u32 s{S_REP}, {o.glast}
  s_cselect_b32 s{S_REP}, s{S_REP}, 64
  s_cmp_eq_u32 s{S_WAVE}, 1
  s_cselect_b32 s{S_CTL}, {1 if multi else 0}, 0
  s_waitcnt lgkmcnt(0)
  s_mov_b32 s{SQ}, s{S_ARG}
  s_mov_b32 s{SQ + 1}, s{S_ARG + 1}
  s_mov_b32 s{SW}, s{S_ARG + 10}
  s_mov_b32 s{SW + 1}, s{S_ARG + 11}
  s_mov_b32 s{SD}, s{S_ARG + 8}
  s_mov_b32 s{SD + 1}, s{S_ARG + 9}
""")
    for p in range(4):
        a(f"  buffer_load_dwordx4 v{VT + 4 + p}, {sr(SQ, 4)}, s{S_OUT} offen offset:{1024 * p}{o.qaux} lds")
    a(f"""
  {"; " if "f" in o.x else ""}buffer_load_dwordx4 {vr(VFL, 4)}, v{VZ}, {sr(SW, 4)}, s{S_BLK} offen offset:256 sc1
  s_cmp_eq_u32 s{S_CTL}, 0
  s_cbranch_scc1 L_nobase
  {"; " if "l" in o.x else ""}buffer_load_dword v{VCB}, v{VCA}, {sr(SW, 4)}, s{S_LOC} offen sc1
  s_cmp_ge_u32 s{S_REP}, {o.glead if o.glead else 99}
  s_cbranch_scc1 L_nobase
  buffer_load_dword v{VG0}, v{VZ}, {sr(SW, 4)}, s{S_REPV} offen{o.gaux}
L_nobase:
  v_mov_b32 v{VT + 3}, {LDS_WIN}
  v_mov_b32 v{VT + 2}, {o.wins.index(o.winit)}
  ds_write_b32 v{VT + 3}, v{VT + 2}
  s_and_b32 s{S_SH}, s{S_PAIR}, 3
  s_lshl_b32 s{S_SH}, s{S_SH}, 3
  s_and_b32 s{S_DW}, s{S_PAIR}, 0x7c
""")
    for s in range(4):
        a(f"  v_xor_b32 v{VT + 3}, {4 * s}, v{VT + 1}")
        a(f"  v_lshl_add_u32 v{VKA + s}, v{VT + 3}, 4, v{VT}")
    a(f"""
  s_lshl_b32 s{S_T}, s{S_HALF}, 3
  s_xor_b32 s{S_T}, s{S_T}, 8
  v_bfe_u32 v{VT}, v0, 2, 4
  v_and_b32 v{VT + 1}, 7, v{VT}
  v_lshlrev_b32 v{VT + 1}, 1, v{VT + 1}
  v_xor_b32 v{VT + 1}, s{S_T}, v{VT + 1}
  v_lshlrev_b32 v{VT}, 8, v{VT}
  v_and_b32 v{VT + 3}, 3, v0
  v_lshl_add_u32 v{VT}, v{VT + 3}, 3, v{VT}
""")
    for j in range(8):
        a(f"  v_xor_b32 v{VT + 3}, {2 * j}, v{VT + 1}")
        a(f"  v_lshl_add_u32 v{VVA + j}, v{VT + 3}, 4, v{VT}")
    for r in range(0, 32, 2):
        a(f"  v_mov_b64 {vr(VO + r, 2)}, 0")
    a(f"""
  v_mov_b32 v{VM}, 0xff800000
  v_mov_b32 v{VL}, 0
  v_mov_b32 v{VCT}, 0
  v_lshlrev_b32 v{VML}, 3, v2
  v_lshl_add_u32 v{VPL}, v{VLANE}, 4, s{S_PL}
  s_mov_b32 s{S_C}, {f32hex(c)}
  s_mov_b32 s{S_C + 1}, s{S_C}
  s_mov_b32 s{S_RD}, 0
  s_mov_b32 s{S_INT}, 0
  s_mov_b32 s{S_BG}, 0
  s_lshl_b32 s{S_REM}, s{S_SLOT}, 4
  s_mov_b32 s{S_I}, 0
  s_cmp_eq_u32 s{S_WAVE}, 0
  s_cselect_b32 s{S_HOOK}, {o.hello}, {o.epre or o.sent}
  s_lshl_b32 s{S_T}, s{S_HALF}, 7
  s_add_u32 s{S_MLO}, s{S_BLK}, s{S_T}
  s_xor_b32 s{S_MLP}, s{S_MLO}, 128
  s_lshl_b32 s{S_T}, s{S_HALF}, 2
  s_add_u32 s{S_FLO}, s{S_BLK}, s{S_T}
  s_xor_b32 s{S_FLP}, s{S_FLO}, 4
""")
    for s in range(4):
        a(f"  v_add_u32 v{VT + 4 + s}, s{S_PL}, v{VKA + s}")
    a("  s_waitcnt vmcnt(0)")
    for s in range(4):
        a(f"  ds_read_b128 {vr(VQ + 4 * s, 4)}, v{VT + 4 + s}")
    a(f"  s_mov_b32 s{SQ}, s{S_ARG + 6}")
    a(f"  s_mov_b32 s{SQ + 1}, s{S_ARG + 7}")
    if o.stamp:
        a(f"  s_mov_b32 s{S_WSUM}, 0")
    a("  s_waitcnt lgkmcnt(0)")


def k_body(a, o):
    t0, t1, mx = VT, VT + 1, VT + 2
    al = VAL[7]
    pnew = VF
    lds = LdsTracker(a)
    reads = [f"  ds_read_b128 {vr(VF + 4 * (n % 16), 4)}, v{VKA + n % 4} offset:{4096 * (n // 4)}" for n in range(32)]
    fill = shift_al() + next_slot()
    for n in range(o.nprek):
        lds.issue(reads[n])
        if n >= 1:
            for _ in range(2):
                if fill:
                    a(fill.pop(0))
    a(fill)
    pend = reads[o.nprek:]
    mxs = [f"  v_max3_f32 v{mx}, v{VS}, v{VS + 1}, v{VS + 2}"]
    mxs += [f"  v_max3_f32 v{mx}, v{mx}, v{VS + r}, v{VS + r + 1}" for r in range(3, 31, 2)]
    k = 0
    pads = [adv(VVA + j) for j in range(8)]
    for n in range(32):
        t, s = divmod(n, 4)
        if s == 0:
            lds.need(n + 4)
        a(mfma(VS + 4 * t, VF + 4 * (n % 16), VQ + 4 * s, None if s == 0 else VS + 4 * t))
        if pend:
            lds.issue(pend.pop(0))
        elif pads:
            a(pads.pop(0))
        if t >= 2 and s in (1, 3) and 2 * k + 2 < 4 * (t - 1):
            a(mxs[k]); k += 1
    a(pads)
    a([adv(VKA + s) for s in range(4)])
    while 2 * k + 2 < 28:
        a(mxs[k]); k += 1
    a("  s_nop 2")
    a(mxs[k:])
    a(f"""
  v_max_f32 v{t0}, v{mx}, v{VS + 31}
  v_max_f32 v{t1}, v{mx}, v{VS + 31}
  s_nop 1
  v_permlane32_swap_b32 v{t0}, v{t1}
  v_max_f32 v{mx}, v{t0}, v{t1}
  v_max_f32 v{t1}, v{t0}, v{t1}
  s_nop 1
  v_permlane16_swap_b32 v{mx}, v{t1}
  v_max_f32 v{mx}, v{mx}, v{t1}
  v_mul_f32 v{mx}, s{S_C}, v{mx}
  v_max_f32 v{mx}, v{mx}, v{VM}
  v_sub_f32 v{al}, v{VM}, v{mx}
  v_mov_b32 v{VM}, v{mx}
  v_exp_f32 v{al}, v{al}
""")
    for r in range(0, 32, 2):
        a(f"  v_pk_fma_f32 {vr(VS + r, 2)}, {vr(VS + r, 2)}, s[{S_C}:{S_C + 1}], {vr(mx, 2)} op_sel_hi:[1,1,0] neg_lo:[0,0,1] neg_hi:[0,0,1]")
    for r in range(32):
        a(f"  v_exp_f32 v{VS + r}, v{VS + r}")
    for r in range(16):
        a(f"  v_cvt_pk_bf16_f32 v{pnew + r}, v{VS + 2 * r}, v{VS + 2 * r + 1}")
    for step in (16, 8, 4, 2):
        for r in range(0, step, 2):
            a(f"  v_pk_add_f32 {vr(VS + r, 2)}, {vr(VS + r, 2)}, {vr(VS + r + step, 2)}")
    a(f"  v_add_f32 v{VS}, v{VS}, v{VS + 1}")
    a(f"  v_fma_f32 v{VL}, v{VL}, v{al}, v{VS}")
    a(f"""
  s_and_b32 s{S_T}, s{S_I}, 7
  s_add_u32 s{S_I}, s{S_I}, 1
  s_cmp_ge_u32 s{S_T}, 4
  s_cbranch_scc1 L_park2
""")
    a(shift_p() + copy16(VP + 48, pnew))
    a(f"""
  s_branch L_loop
L_park2:
  s_cmp_eq_u32 s{S_T}, 7
  s_cbranch_scc1 L_park3
""")
    for k in range(4):
        a(f"  ds_write_b128 v{VPL}, {vr(pnew + 4 * k, 4)} offset:{1024 * k}")
    a(f"""
  v_add_u32 v{VPL}, 16384, v{VPL}
  s_waitcnt lgkmcnt(0)
  s_branch L_loop
L_park3:
  v_subrev_u32 v{VPL}, {3 * 16384}, v{VPL}
""")
    a(copy16(VS, pnew))
    a("  s_branch L_loop")


def pv_block(a, items, fill=(), head=(), valu=(), per=0):
    lds = LdsTracker(a)
    reads = [f"  ds_read_b64_tr_b16 {vr(VF + 4 * (n % 16) + 2 * t, 2)}, v{ad} offset:{off + t * step}"
             for n, (ad, off, step, _, _) in enumerate(items) for t in range(2)]
    fill, valu = list(fill), list(valu)
    for n, r in enumerate(reads[:12]):
        lds.issue(r)
        if n >= 2:
            for _ in range(2):
                if fill:
                    a(fill.pop(0))
    a(fill)
    a(head)
    pend = reads[12:]
    for n, (_, _, _, acc, p) in enumerate(items):
        if len(items) <= 16 or n % 2 == 0:
            lds.need(min(len(reads), 2 * (n + 1) if len(items) <= 16 else 2 * (n + 2)))
        a(mfma(acc, VF + 4 * (n % 16), p, acc))
        for _ in range(2):
            if pend:
                lds.issue(pend.pop(0))
        for _ in range(per):
            if valu:
                a(valu.pop(0))
    a(valu)


def v_body(a, o):
    items = [(VVA + j, 8192 * kb, 4096, VO + 4 * j, VP + 4 * kb) for kb in range(4) for j in range(8)]
    pv_block(a, items, fill=scale_o(VO, 32, VAL[0]) + next_slot())
    a([adv(VKA + s) for s in range(4)] + [adv(VVA + j) for j in range(8)])
    a(shift_al() + shift_p())
    a(f"""
  s_and_b32 s{S_T}, s{S_I}, 7
  s_add_u32 s{S_I}, s{S_I}, 1
  s_cmp_gt_u32 s{S_T}, 3
  s_cbranch_scc1 L_refilled
  s_cmp_eq_u32 s{S_T}, 3
  s_cbranch_scc1 L_refill2
""")
    for k in range(4):
        a(f"  ds_read_b128 {vr(VP + 48 + 4 * k, 4)}, v{VPL} offset:{1024 * k}")
    a(f"""
  v_add_u32 v{VPL}, 16384, v{VPL}
  s_waitcnt lgkmcnt(0)
  s_branch L_loop
L_refill2:
  v_subrev_u32 v{VPL}, {3 * 16384}, v{VPL}
""")
    a(copy16(VP + 48, VS))
    a("L_refilled:")


def cycle_probe(a, o, tag):
    if o.estamp == 4:
        a(f"""
  s_memtime s[90:91]
  s_waitcnt lgkmcnt(0)
  s_sub_u32 s{S_TS + (6 if tag == "k" else 8)}, s90, s88
""")


def mainloop(a, o):
    a(f"""
L_loop:
  s_cmp_lg_u32 s{S_CTL}, 0
  s_barrier
  s_waitcnt vmcnt(0)
  s_cbranch_scc1 L_ctl
L_ctl_ret:
  s_cmp_eq_u32 s{S_I}, s{S_HOOK}
  s_cbranch_scc1 L_hook
L_hook_ret:
""")
    if o.stamp and not o.estamp:
        for idx, it in ((3, o.st[0]), (4, o.st[1]), (5, o.st[2])):
            a(f"  s_cmp_lg_u32 s{S_I}, {it}")
            a(f"  s_cbranch_scc1 L_nostamp{idx}")
            stamp(a, o, idx, True)
            a(f"L_nostamp{idx}:")
    if o.trace:
        a(f"""
  s_cmp_lg_u32 s{S_WAVE}, 2
  s_cbranch_scc1 L_notrace
  s_memrealtime s[88:89]
  s_mov_b32 m0, s{S_I}
  s_waitcnt lgkmcnt(0)
  v_writelane_b32 v{VAT}, s88, m0
L_notrace:
""")
    if o.estamp == 4:
        a("  s_memtime s[88:89]")
        a("  s_waitcnt lgkmcnt(0)")
    a(f"""
  s_bitcmp1_b32 s{S_I}, {o.run.bit_length() - 1}
  s_cbranch_scc1 L_vbody
""")
    k_body(a, o)
    a("L_vbody:")
    v_body(a, o)
    a(f"""
  s_cmp_lt_u32 s{S_I}, {32 - o.tu}
  s_cbranch_scc1 L_loop
""")


def epilogue(a, o):
    m2, l2, mm = VQ, VQ + 1, VT + 2
    wa, wb = VQ + 2, VQ + 4
    PK, B2, tmp, dst = VS, VS + 8, VS + 16, VS + 24
    snd = VQ + 8
    fetch = f"""
  buffer_load_dwordx4 {vr(PK, 4)}, v{VBOX}, {sr(SQ, 4)}, s{S_KEEP} offen sc1
  buffer_load_dwordx4 {vr(PK + 4, 4)}, v{VBOX}, {sr(SQ, 4)}, s{S_KEEP} offen offset:{o.boxstep} sc1
"""

    def part(q, u, acc, kbs):
        return [(VKA + jj, 16384 * q + 4096 * kb, 2048, acc + 4 * jj, VP + 16 * u + 4 * kb) for kb in kbs for jj in range(4)]

    a(f"""
  v_bfe_u32 v{VT + 4}, v{VLANE}, 3, 2
  v_lshlrev_b32 v{VT + 4}, 1, v{VT + 4}
  v_lshrrev_b32 v{VT + 3}, 2, v{VLANE}
  v_lshlrev_b32 v{VT + 3}, 7, v{VT + 3}
  v_and_b32 v{VT + 5}, 3, v{VLANE}
  v_lshl_add_u32 v{VT + 3}, v{VT + 5}, 3, v{VT + 3}
""")
    base = ((32 - o.tu) % NS) * UNIT
    if base:
        a(f"  v_add_u32 v{VT + 3}, {base}, v{VT + 3}")
    for jj in range(4):
        a(f"  v_xor_b32 v{VT + 5}, {2 * jj}, v{VT + 4}")
        a(f"  v_lshl_add_u32 v{VKA + jj}, v{VT + 5}, 4, v{VT + 3}")
    a(scale_o(VO, 32, VAL[0]))
    a(f"""
  v_lshrrev_b32 v{VT + 3}, 3, v{VLANE}
  v_and_b32 v{VT + 4}, 7, v{VLANE}
  v_xor_b32 v{VT + 5}, v{VT + 3}, v{VT + 4}
  v_lshl_add_u32 v{VOUT}, v{VT + 3}, 7, s{S_PL}
  v_lshl_add_u32 v{VOUT}, v{VT + 5}, 4, v{VOUT}
  v_lshrrev_b32 v{VT + 3}, 5, v{VLANE}
  v_xor_b32 v{VT + 3}, v{VT + 3}, v{VT + 4}
  v_lshl_add_u32 v{VVA}, v{VML}, 4, s{S_PL}
  v_lshl_add_u32 v{VVA}, v{VT + 3}, 4, v{VVA}
  v_bfe_u32 v{VT + 3}, v{VLANE}, 4, 1
  v_lshl_add_u32 v{VVA}, v{VT + 3}, 3, v{VVA}
  v_xor_b32 v{VVA + 1}, 32, v{VVA}
  v_xor_b32 v{VVA + 2}, 64, v{VVA}
  v_xor_b32 v{VVA + 3}, 96, v{VVA}
  s_mov_b32 s{S_I}, {SPIN}
  s_cmp_lg_u32 s{S_MODE}, 0
""")
    for u in range(o.tu):
        a("  s_barrier")
        pv_block(a, part(u, u, VO, range(4)))
        if u + 1 < o.tu:
            a("  s_nop 2")
            a(scale_o(VO, 16, VAL[u + 1]))
    a("  s_nop 1")
    a("  s_cbranch_scc1 L_nosend")
    for m in range(2):
        for r in range(4):
            a(f"  v_cvt_pk_bf16_f32 v{snd + 4 * m + r}, v{VO + 8 * m + 2 * r}, v{VO + 8 * m + 2 * r + 1}")
        for r in range(4):
            a(f"  v_min_u32 v{snd + 4 * m + r}, -2, v{snd + 4 * m + r}")
        a(f"  buffer_store_dwordx4 {vr(snd + 4 * m, 4)}, v{VBOX}, {sr(SQ, 4)}, s{S_SEND} offen offset:{o.boxstep * m}")
    a("L_nosend:")
    if o.estamp == 1:
        stamp(a, o, 3, True)
    for u in range(o.tu - 1):
        a("  s_barrier")
        pv_block(a, part(o.tu + u, u, VO + 16, range(4)))
        a("  s_nop 2")
        a(scale_o(VO + 16, 16, VAL[u + 1]))
    last = o.tu - 1
    a(f"""
  v_cmp_ne_u32 vcc, v{VFL + 1}, v{VRDY}
  s_cbranch_vccz L_notready
L_ready:
""")
    a(weight_ops(m2, l2, wa, wb))
    a("  s_barrier")
    pv_block(a, part(o.tu + last, last, VO + 16, (0, 1)))
    if o.fetch == "d":
        a(fetch)
    if o.estamp == 1:
        stamp(a, o, 4, True)
    a(f"  s_cmp_lg_u32 s{S_MODE}, 0")
    a("  s_barrier")
    stamp(a, o, 1)
    if o.fetch == "e":
        a(fetch)
    pv_block(a, part(o.tu + last, last, VO + 16, (2, 3)))
    a("  s_cbranch_scc1 L_generic")
    a("  s_nop 1")
    a(scale_o(VO + 16, 16, wa))
    a(f"""
L_check:
  s_waitcnt vmcnt(0)
  v_max3_u32 v{mm}, v{PK}, v{PK + 1}, v{PK + 2}
  v_max3_u32 v{mm + 1}, v{PK + 3}, v{PK + 4}, v{PK + 5}
  v_max3_u32 v{mm}, v{mm}, v{PK + 6}, v{PK + 7}
  v_max_u32 v{mm}, v{mm}, v{mm + 1}
  v_cmp_eq_u32 vcc, -1, v{mm}
  s_cbranch_vccnz L_retry
""")
    if o.estamp == 1:
        stamp(a, o, 5)
    merge_half(a, o, VO + 16, PK, wb, tmp, dst, S_KEEP)
    a("L_done:")
    if o.stamp:
        a("  s_waitcnt vmcnt(0)")
        stamp(a, o, 2, True)
        a(f"""
  s_lshl_b32 s{S_T}, s2, 2
  s_add_u32 s{S_T}, s{S_T}, s{S_WAVE}
  s_lshl_b32 s{S_T}, s{S_T}, 5
  s_add_u32 s{S_T}, s{S_T}, {WS_STAMP}
  v_mov_b32 v4, s{S_TS}
  v_mov_b32 v5, s{S_TS + 2}
  v_mov_b32 v6, s{S_TS + 4}
  s_and_b32 s{S_T + 1}, s{S_ID}, 15
  s_lshl_b32 s{S_T + 2}, s{S_MODE}, 4
  s_or_b32 s{S_T + 1}, s{S_T + 1}, s{S_T + 2}
  v_mov_b32 v7, s{S_T + 1}
  buffer_store_dwordx4 v[4:7], v{VZ}, {sr(SW, 4)}, s{S_T} offen
  v_mov_b32 v12, s{S_TS + 6}
  v_mov_b32 v13, s{S_TS + 8}
  v_mov_b32 v14, s{S_TS + 10}
  v_mov_b32 v15, s{S_WSUM}
  buffer_store_dwordx4 v[12:15], v{VZ}, {sr(SW, 4)}, s{S_T} offen offset:16
""")
    if o.trace:
        a(f"""
  s_cmp_lg_u32 s{S_WAVE}, 2
  s_cbranch_scc1 L_end
  v_writelane_b32 v{VAT}, s{S_TS + 2}, 31
  v_writelane_b32 v{VAT}, s{S_TS}, 30
  s_lshl_b32 s{S_T}, s2, 7
  s_add_u32 s{S_T}, s{S_T}, {WS_STAMP + 32768}
  v_lshlrev_b32 v4, 2, v{VLANE}
  s_mov_b64 exec, 0xffffffff
  buffer_store_dword v{VAT}, v4, {sr(SW, 4)}, s{S_T} offen
""")
    if o.diag:
        diag(a, o)
    a("""
L_end:
  s_endpgm
L_retry:
""")
    a(fetch)
    a(f"""
  s_sub_u32 s{S_I}, s{S_I}, 1
  s_cbranch_scc0 L_check
  s_endpgm
L_notready:
  s_cmp_lg_u32 s{S_MODE}, 0
  s_cbranch_scc1 L_ready
  buffer_load_dword v{VRDY}, v{VZ}, {sr(SW, 4)}, s{S_FLP} offen offset:256 sc1
  buffer_load_dword v{VT + 3}, v{VZ}, {sr(SD, 4)}, s{S_DW} offen sc1
  s_sub_u32 s{S_I}, s{S_I}, 1
  s_cbranch_scc1 L_end
  s_waitcnt vmcnt(0)
  v_cmp_ne_u32 vcc, v{VFL + 1}, v{VRDY}
  s_cbranch_vccnz L_readylate
  v_bfe_u32 v{VT + 3}, v{VT + 3}, s{S_SH}, 1
  v_cmp_ne_u32 vcc, 0, v{VT + 3}
  s_cbranch_vccz L_notready
  s_mov_b32 s{S_MODE}, 2
  s_branch L_ready
L_readylate:
  buffer_load_dwordx2 {vr(m2, 2)}, v{VML}, {sr(SW, 4)}, s{S_MLP} offen sc1
  s_waitcnt vmcnt(0)
  s_branch L_ready
""")
    a(f"""
L_generic:
  s_waitcnt vmcnt(0)
  s_lshl_b32 s{S_T}, s{S_PAIR}, 2
  s_add_u32 s{S_T}, s{S_T}, s{S_WAVE}
  s_lshl_b32 s{S_T + 1}, s{S_T}, 13
  s_add_u32 s{S_T + 3}, s{S_T + 1}, 4096
  s_lshl_b32 s{S_T + 2}, s{S_T}, 9
  s_add_u32 s{S_T + 2}, s{S_T + 2}, {WS_DML}
  s_lshl_b32 s{S_T + 4}, 2, s{S_SH}
  v_lshlrev_b32 v{VT + 8}, 4, v{VLANE}
  v_lshlrev_b32 v{VT + 3}, 3, v{VLANE}
  s_cmp_eq_u32 s{S_MODE}, 1
  s_cbranch_scc0 L_second
  buffer_store_dwordx2 {vr(VM, 2)}, v{VT + 3}, {sr(SW, 4)}, s{S_T + 2} offen sc1
""")
    for j in range(8):
        so = S_T + 1 if j < 4 else S_T + 3
        a(f"  buffer_store_dwordx4 {vr(VO + 4 * j, 4)}, v{VT + 8}, {sr(SW, 4)}, s{so} offen offset:{1024 * (j & 3)} sc1")
    a(f"""
  s_waitcnt vmcnt(0)
  s_barrier
  s_cmp_eq_u32 s{S_WAVE}, 0
  s_cbranch_scc0 L_done
  v_mov_b32 v{VT}, s{S_T + 4}
  s_mov_b64 exec, 1
  buffer_atomic_or v{VT}, v{VZ}, {sr(SD, 4)}, s{S_DW} offen sc1
  s_mov_b64 exec, -1
  s_branch L_done
L_second:
  buffer_load_dword v{VT}, v{VZ}, {sr(SD, 4)}, s{S_DW} offen sc1
  s_sub_u32 s{S_I}, s{S_I}, 1
  s_cbranch_scc1 L_end
  s_waitcnt vmcnt(0)
  v_and_b32 v{VT}, s{S_T + 4}, v{VT}
  v_cmp_ne_u32 vcc, 0, v{VT}
  s_cbranch_vccz L_second
  buffer_load_dwordx2 {vr(m2, 2)}, v{VT + 3}, {sr(SW, 4)}, s{S_T + 2} offen sc1
""")
    for j in range(8):
        so = S_T + 1 if j < 4 else S_T + 3
        a(f"  buffer_load_dwordx4 {vr(VF + 4 * j, 4)}, v{VT + 8}, {sr(SW, 4)}, s{so} offen offset:{1024 * (j & 3)} sc1")
    a("  s_waitcnt vmcnt(0)")
    a(weight_ops(m2, l2, wa, wb))
    for r in range(8):
        a(f"  v_cvt_pk_bf16_f32 v{PK + r}, v{VF + 2 * r}, v{VF + 2 * r + 1}")
        a(f"  v_cvt_pk_bf16_f32 v{B2 + r}, v{VO + 2 * r}, v{VO + 2 * r + 1}")
    a(scale_o(VO + 16, 16, wa) + scale_o(VF + 16, 16, wb))
    merge_half(a, o, VO + 16, PK, wb, tmp, dst, S_KEEP)
    merge_half(a, o, VF + 16, B2, wa, snd, dst, S_SEND)
    a("  s_branch L_done")


def diag(a, o):
    ts = lambda i: S_TS + 2 * i
    kind, idx, ref = (o.diag.split(":") + ["0"])[:3]
    idx, ref = int(idx), int(ref)
    T = S_T
    a(f"""
  s_add_u32 s{T + 1}, s{ts(0)}, 8000
L_dg0:
  s_sleep 8
  s_memrealtime s[{T + 2}:{T + 3}]
  s_waitcnt lgkmcnt(0)
  s_sub_u32 s{T + 2}, s{T + 2}, s{T + 1}
  s_cmp_lt_i32 s{T + 2}, 0
  s_cbranch_scc1 L_dg0
  s_mov_b64 exec, 1
  s_not_b32 s{T}, s{ts(0)}
  v_mov_b32 v4, s{T}
  buffer_atomic_umax v4, v{VZ}, {sr(SD, 4)}, 0 offen offset:244 sc1
  v_mov_b32 v5, s{ts(idx)}
  s_sub_u32 s{T}, s{ts(idx)}, s{ts(ref)}
  v_mov_b32 v6, s{T}
  buffer_atomic_umax v5, v{VZ}, {sr(SD, 4)}, 0 offen offset:248 sc1
  buffer_atomic_add v{6 if kind == "rel" else 5}, v{VZ}, {sr(SD, 4)}, 0 offen offset:252 sc1
  s_or_b32 s{T}, s2, s{S_WAVE}
  s_cmp_lg_u32 s{T}, 0
  s_cbranch_scc1 L_end
  s_add_u32 s{T + 1}, s{ts(0)}, 19000
L_dg1:
  s_memrealtime s[{T + 2}:{T + 3}]
  s_waitcnt lgkmcnt(0)
  s_sub_u32 s{T + 2}, s{T + 2}, s{T + 1}
  s_cmp_lt_i32 s{T + 2}, 0
  s_cbranch_scc1 L_dg1
  buffer_load_dword v4, v{VZ}, {sr(SD, 4)}, 0 offen offset:244 sc1
  buffer_load_dword v5, v{VZ}, {sr(SD, 4)}, 0 offen offset:{248 if kind == "max" else 252} sc1
  s_waitcnt vmcnt(0)
  v_readfirstlane_b32 s{T}, v4
  v_readfirstlane_b32 s{T + 1}, v5
  s_not_b32 s{T}, s{T}
""")
    if kind == "zero":
        a(f"  s_mov_b32 s{T + 1}, 0")
    elif kind == "max":
        a(f"  s_sub_u32 s{T + 1}, s{T + 1}, s{T}")
    elif kind == "rel":
        a(f"  s_lshr_b32 s{T + 1}, s{T + 1}, {10 - o.dgain}")
    else:
        a(f"  s_lshl_b32 s{T + 2}, s{T}, 10")
        a(f"  s_sub_u32 s{T + 1}, s{T + 1}, s{T + 2}")
        a(f"  s_lshr_b32 s{T + 1}, s{T + 1}, 10")
    a(f"""
  s_min_u32 s{T + 1}, s{T + 1}, 30000
  s_add_u32 s{T + 1}, s{T + 1}, 20000
  s_sub_u32 s{T + 2}, s{ts(0)}, s{T}
  s_min_u32 s{T + 2}, s{T + 2}, 1000
  s_sub_u32 s{T}, s{ts(0)}, s{T + 2}
  s_add_u32 s{T + 1}, s{T + 1}, s{T}
L_dg2:
  s_memrealtime s[{T + 2}:{T + 3}]
  s_waitcnt lgkmcnt(0)
  s_sub_u32 s{T + 2}, s{T + 2}, s{T + 1}
  s_cmp_lt_i32 s{T + 2}, 0
  s_cbranch_scc1 L_dg2
""")


def hooks(a, o):
    b = S_T
    a(f"""
L_hook:
  s_cmp_ge_u32 s{S_I}, {o.sent}
  s_cbranch_scc1 L_hook4
""")
    if o.epre:
        a(f"""
  s_cmp_eq_u32 s{S_I}, {o.epre}
  s_cbranch_scc0 L_hook1
  buffer_load_dword v{VOUT}, v{VBOX}, {sr(SQ, 4)}, s{S_SEND} offen{o.paux}
  s_mov_b32 s{S_HOOK}, {o.sent}
  s_branch L_hook_ret
L_hook1:
""")
    a(f"""
  s_mov_b64 exec, 1
  s_cmp_eq_u32 s{S_I}, {o.hello}
  s_cbranch_scc0 L_hook2
""")
    if o.force == "late":
        a(f"""
  s_cmp_eq_u32 s{S_HALF}, 0
  s_cbranch_scc1 L_nodelay
  s_lshl_b32 s{b + 1}, 1, s{S_SH}
  s_mov_b32 s{b + 2}, {SPIN}
L_delay:
  buffer_load_dword v{VT}, v{VZ}, {sr(SD, 4)}, s{S_DW} offen sc1
  s_sub_u32 s{b + 2}, s{b + 2}, 1
  s_cbranch_scc1 L_nodelay
  s_waitcnt vmcnt(0)
  v_and_b32 v{VT}, s{b + 1}, v{VT}
  v_cmp_ne_u32 vcc, 0, v{VT}
  s_cbranch_vccz L_delay
L_nodelay:
""")
    a(f"""
  s_cmp_eq_u32 s{S_HALF}, 0
  s_cbranch_scc1 L_hook_noswap
  v_swap_b32 v{VFL + 2}, v{VFL + 3}
L_hook_noswap:
  v_add_u32 v{VFL + 2}, s{S_ID}, v{VFL + 2}
  buffer_store_dword v{VFL + 2}, v{VZ}, {sr(SW, 4)}, s{S_FLO} offen offset:264
  s_mov_b32 s{S_HOOK}, {o.check}
  s_branch L_hook_out
L_hook2:
  s_cmp_eq_u32 s{S_I}, {o.check}
  s_cbranch_scc0 L_hook3
  buffer_load_dword v{VHS}, v{VZ}, {sr(SW, 4)}, s{S_FLP} offen offset:264 sc1
  s_mov_b32 s{S_HOOK}, {o.check + 1}
  s_branch L_hook_out
L_hook3:
  v_sub_u32 v{VHS}, v{VHS}, v{VFL + 3}
  v_cmp_eq_u32 vcc, s{S_ID}, v{VHS}
  v_mov_b32 v{VHS}, 0
  s_cbranch_vccnz L_hook_mode
  s_lshl_b32 s{b}, 1, s{S_SH}
  v_mov_b32 v{VHS}, s{b}
  buffer_atomic_or v{VHS}, v{VZ}, {sr(SD, 4)}, s{S_DW} offen sc0 sc1
  s_waitcnt vmcnt(0)
  v_bfe_u32 v{VHS}, v{VHS}, s{S_SH}, 1
  v_add_u32 v{VHS}, 1, v{VHS}
L_hook_mode:
  v_mov_b32 v{VT}, {LDS_MODE}
  ds_write_b32 v{VT}, v{VHS}
  s_mov_b32 s{S_HOOK}, {o.epre or o.sent}
  s_waitcnt lgkmcnt(0)
L_hook_out:
  s_mov_b64 exec, -1
  s_branch L_hook_ret
L_hook4:
  s_cmp_eq_u32 s{S_I}, {o.sent}
  s_cbranch_scc0 L_hook5
  v_mov_b32 v{VT}, {LDS_MODE}
  ds_read_b32 v{VHS}, v{VT}
  s_cmp_eq_u32 s{S_HALF}, 0
  s_cbranch_scc1 L_hook_noswap2
  v_swap_b32 v{VFL}, v{VFL + 1}
L_hook_noswap2:
  v_add_u32 v{VFL}, 1, v{VFL}
  v_mov_b32 v{VRDY}, v{VFL + 1}
  v_mov_b64 {vr(VT + 4, 2)}, -1
  v_mov_b64 {vr(VT + 6, 2)}, -1
""")
    a(xlane_ops("v_add_f32", VL, VT, VT + 1))
    a(f"""
  s_waitcnt lgkmcnt(0)
  v_readfirstlane_b32 s{S_MODE}, v{VHS}
  s_cmp_lg_u32 s{S_MODE}, 0
  s_cbranch_scc1 L_hook_ret
  buffer_store_dwordx4 {vr(VT + 4, 4)}, v{VBOX}, {sr(SQ, 4)}, s{S_SEND} offen
  buffer_store_dwordx4 {vr(VT + 4, 4)}, v{VBOX}, {sr(SQ, 4)}, s{S_SEND} offen offset:{o.boxstep}
  buffer_store_dwordx2 {vr(VM, 2)}, v{VML}, {sr(SW, 4)}, s{S_MLO} offen
  s_mov_b32 s{S_HOOK}, {o.sent + 1}
  s_branch L_hook_ret
L_hook5:
  s_cmp_eq_u32 s{S_I}, {o.sent + 1}
  s_cbranch_scc0 L_hook6
  buffer_store_dword v{VFL}, v{VZ}, {sr(SW, 4)}, s{S_FLO} offen offset:256
  s_mov_b32 s{S_HOOK}, {o.rdy if o.force != "nordy" else 99}
  s_branch L_hook_ret
L_hook6:
  s_cmp_eq_u32 s{S_I}, {o.rdy}
  s_cbranch_scc0 L_hook7
  buffer_load_dword v{VRDY}, v{VZ}, {sr(SW, 4)}, s{S_FLP} offen offset:256 sc1
  s_mov_b32 s{S_HOOK}, {o.rdy + 1}
  s_branch L_hook_ret
L_hook7:
  buffer_load_dwordx2 {vr(VQ, 2)}, v{VML}, {sr(SW, 4)}, s{S_MLP} offen sc1
  s_branch L_hook_ret
""")


def controller(a, o):
    nw = len(o.wins)
    x, e, g = S_T, S_T + 1, S_T + 2
    t = VT
    a(f"""
L_ctl:
  v_sub_u32 v{t}, v{VCT}, v{VCB}
  s_add_u32 s{x}, s{S_I}, 1
  v_add_u32 v{t + 1}, s{x}, v{VCB}
""")
    if o.lfirst:
        a(f"  s_cmp_lt_u32 s{S_I}, {o.lfirst}")
        a("  s_cbranch_scc1 L_ctl_nopub")
    a(f"""
  s_lshl_b64 exec, 1, s{S_SLOT}
  buffer_store_dword v{t + 1}, v{VCA}, {sr(SW, 4)}, s{S_LOC} offen
L_ctl_nopub:
  s_sub_u32 s{x}, s{S_I}, s{S_REP}
  s_cmp_eq_u32 s{x}, 0
  s_cbranch_scc0 L_ctl_nolead
  s_lshl_b64 exec, 1, 32
  v_mov_b32 v{VAT}, 1
  buffer_atomic_add v{VAT}, v{VZ}, {sr(SW, 4)}, s{S_REPV} offen sc0 sc1
L_ctl_nolead:
  s_mov_b64 exec, -1
""")
    if o.glead:
        a(f"""
  s_cmp_eq_i32 s{x}, {-o.glead}
  s_cbranch_scc0 L_ctl_nobase
  buffer_load_dword v{VG0}, v{VZ}, {sr(SW, 4)}, s{S_REPV} offen{o.gaux}
L_ctl_nobase:
""")
    a(f"""
  buffer_load_dword v{VCT}, v{VCA}, {sr(SW, 4)}, s{S_LOC} offen sc1
  s_cmp_lt_u32 s{S_I}, {o.cstart}
  s_cbranch_scc1 L_ctl_ret
  v_cmp_ne_u32 vcc, 0, v{t}
  v_readlane_b32 s{g}, v{t}, 32
  v_add_u32_dpp v{t}, v{t}, v{t} row_shr:1 row_mask:0xf bank_mask:0xf bound_ctrl:1
  s_nop 1
  v_add_u32_dpp v{t}, v{t}, v{t} row_shr:2 row_mask:0xf bank_mask:0xf bound_ctrl:1
  s_nop 1
  v_add_u32_dpp v{t}, v{t}, v{t} row_shr:4 row_mask:0xf bank_mask:0xf bound_ctrl:1
  s_nop 1
  v_add_u32_dpp v{t}, v{t}, v{t} row_shr:8 row_mask:0xf bank_mask:0xf bound_ctrl:1
  s_cmp_eq_u32 vcc_lo, -1
  s_cbranch_scc0 L_ctl_end
  v_readlane_b32 s{x}, v{t}, 15
  v_readlane_b32 s{e}, v{t}, 31
  s_max_i32 s{g}, s{g}, {-o.gclip}
  s_min_i32 s{g}, s{g}, {o.gclip}
  s_add_u32 s{x}, s{x}, s{e}
  s_lshl_b32 s{e}, s{S_I}, 5
  s_sub_i32 s{e}, s{x}, s{e}
  s_add_i32 s{e}, s{e}, {32 - o.bias}
  s_max_i32 s{e}, s{e}, -128
  s_min_i32 s{e}, s{e}, 128
  s_sub_u32 s{x}, s{S_I}, s{S_REP}
  s_cmp_eq_u32 s{x}, 1
  s_cbranch_scc0 L_ctl_norank
  s_mul_i32 s{x}, s{e}, {o.gcorr}
  s_add_i32 s{x}, s{x}, {7 * 16}
  s_lshl_b64 exec, 1, 32
  v_sub_u32 v{VAT}, v{VAT}, v{VG0}
  v_lshl_add_u32 v{VAT}, v{VAT}, 5, v{VCB}
  v_subrev_u32 v{VAT}, s{x}, v{VAT}
  buffer_store_dword v{VAT}, v{VCA}, {sr(SW, 4)}, s{S_LOC} offen
  s_mov_b64 exec, -1
L_ctl_norank:
""")
    for reg, src, (thr, step) in ((S_INT, e, o.bl), (S_BG, g, o.bg)):
        if step:
            a(f"""
  s_add_i32 s{x}, s{reg}, {step}
  s_ashr_i32 s{reg}, s{reg}, {o.bdec}
  s_cmp_ge_i32 s{src}, {thr}
  s_cselect_b32 s{reg}, s{x}, s{reg}
""")
    a(f"""
  s_mul_i32 s{e}, s{e}, {o.kp}
  s_mul_i32 s{g}, s{g}, {o.kpg}
  s_ashr_i32 s{g}, s{g}, 4
  s_add_i32 s{e}, s{e}, s{g}
""")
    for reg, (thr, step) in ((S_INT, o.bl), (S_BG, o.bg)):
        if step:
            a(f"  s_add_i32 s{e}, s{e}, s{reg}")
    if o.wsw != [0, 0]:
        a(f"""
  s_and_b32 s{x}, s{S_I}, 7
  s_mov_b32 s{g}, 0
  s_cmp_eq_u32 s{x}, 5
  s_cmovk_i32 s{g}, {o.wsw[0]}
  s_cmp_eq_u32 s{x}, 6
  s_cmovk_i32 s{g}, {o.wsw[1]}
  s_add_i32 s{e}, s{e}, s{g}
""")
    if o.sd:
        a(f"""
  s_add_i32 s{e}, s{e}, {int(o.w0 * 512)}
  s_add_i32 s{e}, s{e}, s{S_REM}
  s_and_b32 s{S_REM}, s{e}, 511
""")
    else:
        a(f"  s_add_i32 s{e}, s{e}, {int(o.w0 * 512 + 256)}")
    a(f"""
  s_ashr_i32 s{e}, s{e}, 9
  s_max_i32 s{e}, s{e}, 0
  s_min_i32 s{e}, s{e}, {nw - 1}
""")
    if o.stamp:
        a(f"  s_add_u32 s{S_WSUM}, s{S_WSUM}, s{e}")
    a(f"""
  v_mov_b32 v{t}, s{e}
  v_mov_b32 v{t + 2}, {LDS_WIN}
  ds_write_b32 v{t + 2}, v{t}
  s_waitcnt lgkmcnt(0)
L_ctl_end:
  s_cmp_lt_u32 s{S_I}, {o.cend}
  s_cselect_b32 s{S_CTL}, s{S_CTL}, 0
  s_branch L_ctl_ret
""")


def build(o):
    a = Asm()
    a(HEADER)
    label = f"{NAME}_kernel"
    a(f"; @launch grid=(256,1,1) block=(320,1,1) lds={LDS_BYTES}")
    a('.amdgcn_target "amdgcn-amd-amdhsa--gfx950"')
    a(f"""
.text
.globl {label}
{".p2align 12" if o.align else ""}
.p2align 8
.type {label},@function
{label}:
  s_load_dwordx8 s[{S_ARG}:{S_ARG + 7}], s[0:1], 0
  s_load_dwordx4 s[{S_ARG + 8}:{S_ARG + 11}], s[0:1], 32
  s_cmp_ge_u32 s2, 256
  s_cbranch_scc1 L_end
""")
    if o.skew:
        a(f"""
  s_memrealtime s[{S_TS}:{S_TS + 1}]
  s_getreg_b32 s{S_T}, hwreg(HW_REG_XCC_ID, 0, 4)
  s_lshl_b32 s{S_T}, s{S_T}, 2
  s_add_u32 s{S_T}, s{S_T}, 0xb00000
  s_waitcnt lgkmcnt(0)
  s_load_dword s{S_T + 1}, s[{S_ARG + 10}:{S_ARG + 11}], s{S_T}
  s_waitcnt lgkmcnt(0)
  s_min_u32 s{S_T + 1}, s{S_T + 1}, 1000
  s_add_u32 s{S_T + 1}, s{S_T + 1}, s{S_TS}
L_skew:
  s_memrealtime s[{S_T + 2}:{S_T + 3}]
  s_waitcnt lgkmcnt(0)
  s_sub_u32 s{S_T + 2}, s{S_T + 2}, s{S_T + 1}
  s_cmp_lt_i32 s{S_T + 2}, 0
  s_cbranch_scc1 L_skew
""")
    stamp(a, o, 0)
    a(f"  v_readfirstlane_b32 s{S_WAVE}, v0")
    if o.map == 0:
        a(f"""
  s_and_b32 s{S_T}, s2, 7
  s_lshr_b32 s{S_T + 1}, s2, 4
  s_lshl_b32 s{S_T + 1}, s{S_T + 1}, 3
  s_or_b32 s{S_PAIR}, s{S_T}, s{S_T + 1}
  s_bfe_u32 s{S_HALF}, s2, 0x10003
""")
    else:
        a(f"""
  s_lshr_b32 s{S_PAIR}, s2, 1
  s_and_b32 s{S_HALF}, s2, 1
""")
    a(f"""
  s_lshr_b32 s{S_WAVE}, s{S_WAVE}, 6
  s_cmp_eq_u32 s{S_WAVE}, 0
""")
    if o.cpf:
        a(f"""
  s_cbranch_scc1 L_loader
  s_cmp_lg_u32 s{S_WAVE}, 4
  s_cbranch_scc1 L_compute
  s_getpc_b64 s[{S_T + 2}:{S_T + 3}]
L_pc:
  s_lshr_b32 s{S_T}, s2, 3
  s_lshl_b32 s{S_T}, s{S_T}, {8 + o.cpf}
  v_and_b32 v1, {(2 << o.cpf) - 1}, v0
  v_lshl_add_u32 v1, v1, 7, s{S_T}
  v_min_u32 v1, L_code_end-L_pc-4, v1
  v_mov_b32 v3, s{S_T + 3}
  v_add_co_u32 v2, vcc, s{S_T + 2}, v1
  s_nop 1
  v_addc_co_u32 v3, vcc, 0, v3, vcc
  global_load_dword v{VOUT}, v[2:3], off
  s_branch L_compute
L_loader:
""")
    else:
        a("  s_cbranch_scc0 L_compute")
    loader(a, o)
    if o.align:
        a(".p2align 12")
    prologue(a, o)
    if o.touch:
        a(f"  s_cmp_eq_u32 s{S_WAVE}, 2")
        a("  s_cbranch_scc1 L_touch0")
    a("  s_branch L_loop")
    controller(a, o)
    hooks(a, o)
    mainloop(a, o)
    epilogue(a, o)
    a(f"""
L_code_end:
.section .rodata,"a"
.p2align 6
.amdhsa_kernel {label}
  .amdhsa_next_free_vgpr {NVGPR}
  .amdhsa_next_free_sgpr {NSGPR}
  .amdhsa_accum_offset {NVGPR}
  .amdhsa_group_segment_fixed_size 0
  .amdhsa_kernarg_size 48
  .amdhsa_user_sgpr_count 2
  .amdhsa_user_sgpr_kernarg_segment_ptr 1
  .amdhsa_system_sgpr_workgroup_id_x 1
.end_amdhsa_kernel
""")
    return a.text()


if __name__ == "__main__":
    ap = argparse.ArgumentParser()
    ap.add_argument("-o", default="cdna_kernels/" + NAME + ".s")
    ap.add_argument("--nq", type=int, default=8)
    ap.add_argument("--run", type=int, default=0)
    ap.add_argument("--tu", type=int, default=2)
    ap.add_argument("--wins", default="17,18,19,20,21,22,23,24,26,28")
    ap.add_argument("--winit", type=int, default=21)
    ap.add_argument("--wtail", type=int, default=21)
    ap.add_argument("--w0", type=float, default=3.75)
    ap.add_argument("--kp", type=int, default=40)
    ap.add_argument("--kpg", type=int, default=160)
    ap.add_argument("--bias", type=int, default=16)
    ap.add_argument("--kpg1", type=int, default=0)
    ap.add_argument("--kslope", type=int, default=0)
    ap.add_argument("--kmax", type=int, default=300)
    ap.add_argument("--ki", type=int, default=0)
    ap.add_argument("--kig", type=int, default=0)
    ap.add_argument("--istart", type=int, default=12)
    ap.add_argument("--imax", type=int, default=1024)
    ap.add_argument("--gcorr", type=int, default=5)
    ap.add_argument("--gclip", type=int, default=160)
    ap.add_argument("--wsw", default="0,0")
    ap.add_argument("--bl", default="0,0")
    ap.add_argument("--bg", default="0,0")
    ap.add_argument("--bdec", type=int, default=31)
    ap.add_argument("--sd", type=int, default=1)
    ap.add_argument("--lfirst", type=int, default=0)
    ap.add_argument("--gfirst", type=int, default=1)
    ap.add_argument("--gstep", type=int, default=1)
    ap.add_argument("--glast", type=int, default=25)
    ap.add_argument("--cstart", type=int, default=2)
    ap.add_argument("--cend", type=int, default=-1)
    ap.add_argument("--hello", type=int, default=9)
    ap.add_argument("--check", type=int, default=20)
    ap.add_argument("--sent", type=int, default=24)
    ap.add_argument("--rdy", type=int, default=27)
    ap.add_argument("--prepos", type=int, default=0)
    ap.add_argument("--wlast", default="0,0")
    ap.add_argument("--epre", type=int, default=0)
    ap.add_argument("--box", type=int, default=1)
    ap.add_argument("--fetch", default="e")
    ap.add_argument("--nprek", type=int, default=8)
    ap.add_argument("--cpf", type=int, default=1)
    ap.add_argument("--bits", default="12,13,14,8,9,10,11")
    ap.add_argument("--split", type=int, default=15)
    ap.add_argument("--rsel", default="")
    ap.add_argument("--aux", default="nt")
    ap.add_argument("--qaux", default="nt")
    ap.add_argument("--qplan", default="4")
    ap.add_argument("--x", default="")
    ap.add_argument("--diag", default="")
    ap.add_argument("--clk", action="store_true")
    ap.add_argument("--trace", action="store_true")
    ap.add_argument("--align", type=int, default=1)
    ap.add_argument("--touch", type=int, default=0)
    ap.add_argument("--dgain", type=int, default=3)
    ap.add_argument("--gaux", default="")
    ap.add_argument("--glead", type=int, default=4)
    ap.add_argument("--oaux", default="")
    ap.add_argument("--paux", default="nt")
    ap.add_argument("--stamp", action="store_true")
    ap.add_argument("--skew", action="store_true")
    ap.add_argument("--lstamp", action="store_true")
    ap.add_argument("--sstamp", action="store_true")
    ap.add_argument("--st", default="0,8,16")
    ap.add_argument("--estamp", type=int, default=0)
    ap.add_argument("--map", type=int, default=0)
    ap.add_argument("--force", default="")
    o = ap.parse_args()
    o.wins = [int(x) for x in o.wins.split(",")]
    o.st = [int(x) for x in o.st.split(",")]
    o.bits = [int(x) for x in o.bits.split(",")]
    rest = [b for b in range(8, 20) if b not in o.bits and b != o.split]
    assert rest == list(range(rest[0], rest[0] + 4))
    o.ustride = 1 << rest[0]
    o.rsel = [int(x) for x in o.rsel.split(",")] if o.rsel else []
    o.ntouch = 0
    o.bl = [int(x) for x in o.bl.split(',')]
    o.bg = [int(x) for x in o.bg.split(',')]
    o.wsw = [int(float(x) * 512) for x in o.wsw.split(',')]
    o.wlast = [int(x) for x in o.wlast.split(',')]
    o.boxstep = 2048 if o.box else 64
    o.run = o.run or o.nq
    o.stamp = o.stamp or bool(o.diag)
    assert o.tu <= 2 and o.sent >= 24 and o.rdy + 1 <= 30 - o.tu
    if o.cend < 0:
        o.cend = 29 - o.tu
    fx = lambda s: (" " + s.replace(",", " ")) if s else ""
    o.aux, o.qaux, o.oaux, o.paux, o.gaux = fx(o.aux), fx(o.qaux), fx(o.oaux), fx(o.paux), fx(o.gaux)
    open(o.o, "w").write(build(o))
```

```python
import argparse
import math
import struct

NAME = "standalone__gqa_softmax__sampling"

HEADER = """; Kernarg layout for this problem (48 bytes, ptrs only, base s[0:1]):
"""


class Asm:
    def __init__(self):
        self.lines = []

    def __call__(self, s):
        if isinstance(s, (list, tuple)):
            for x in s:
                self(x)
            return
        for ln in s.strip("\n").split("\n"):
            if ln.strip():
                self.lines.append(ln)

    def text(self):
        return "\n".join(self.lines) + "\n"


class LdsTracker:
    def __init__(self, a):
        self.a, self.issued, self.done = a, 0, 0

    def need(self, n):
        assert n <= self.issued
        if n > self.done:
            self.a(f"  s_waitcnt lgkmcnt({self.issued - n})")
            self.done = n

    def issue(self, line):
        if self.issued - self.done >= 15:
            self.need(self.issued - 11)
        self.a(line)
        self.issued += 1


def vr(a, n=1):
    return f"v{a}" if n == 1 else f"v[{a}:{a + n - 1}]"


def sr(a, n):
    return f"s[{a}:{a + n - 1}]"


def f32hex(x):
    return "0x%08x" % struct.unpack("<I", struct.pack("<f", x))[0]


VQ = 4
VO = 20
VS = 52
VF = 84
VP = 148
VAL = (212, 214)
VAA = 213
VKA = 216
VVA = 220
VM = 228
VL = 229
VT = 230
VPL = 239
VML = 240
VRDY = 241
VLANE = 242
VHS = 243
VZ = 244
VCT = 245
VCB = 246
VCA = 247
VFL = 248
VBOX = 252
VG0 = 253
VAT = 254
VOUT = 255
NVGPR = 256
VDA = 4
VDB = 8
VDT = 24

SA = 4
S_BB = 8
SQ = 12
SW = 16
S_WAVE = 20
S_I = 21
S_OFFA = 22
S_OFFB = 23
S_DL = 24
S_RD = 25
S_C = 26
S_PAIR = 40
S_ARG = 28
S_HALF = 41
S_T = 42
S_TS = 48
SD = 60
S_HOOK = 64
S_BLK = 65
S_KEEP = 66
S_SEND = 67
S_MODE = 68
S_OUT = 69
S_SH = 70
S_CTL = 71
S_REP = 72
S_REPV = 73
S_PL = 74
S_WSUM = 75
S_DW = 76
S_ID = 77
S_LOC = 78
S_SLOT = 79
S_MLO = 80
S_MLP = 81
S_FLO = 82
S_FLP = 83
S_INT = 86
S_REM = 87
S_BG = 92
S_MSK = 84
S_NMSK = 85
NSGPR = 96

UNIT = 32768
NS = 3
LDS_P = UNIT * NS
LDS_AL = LDS_P + 3 * 16384
LDS_MODE = LDS_AL + 4096
LDS_WIN = LDS_MODE + 4
LDS_BYTES = LDS_MODE + 64
BIAS = 4096

WS_DUMP = 0x0
WS_DML = 0x400000
WS_BLK = 0x500000
WS_REP = 0x600000
WS_LOC = 0x700000
REP_STRIDE = 4352
WS_STAMP = 0xC00000
WS_SIZE = 0x1000000
SPIN = 0x40000


def stamp(a, o, idx, wait=False):
    if o.stamp:
        op = "s_memtime" if o.clk and idx in (4, 5) else "s_memrealtime"
        a(f"  {op} s[{S_TS + 2 * idx}:{S_TS + 2 * idx + 1}]")
        if wait:
            a("  s_waitcnt lgkmcnt(0)")


def lbarrier(a, o, slot=None):
    if not o.lstamp:
        a("  s_barrier")
        return
    a("""
  s_memtime s[88:89]
  s_barrier
  s_memtime s[90:91]
  s_waitcnt lgkmcnt(0)
  s_sub_u32 s88, s90, s88
""")
    if slot is not None:
        a(f"  s_mov_b32 s{S_TS + 2 + slot}, s88")
    else:
        a(f"  s_add_u32 s{S_TS + 2}, s{S_TS + 2}, s88")


def sstamp(a, o, k):
    if o.sstamp:
        a(f"  s_memrealtime s[{86 + 2 * k}:{87 + 2 * k}]")


def touch(a, o, last=False):
    if o.touch:
        n = o.ntouch
        a(f"L_touch{n}:")
        a(f"  s_branch {f'L_touch{n + 3}' if n + 3 < o.touch else 'L_storage'}")
        o.ntouch += 1
        assert not last or o.ntouch == o.touch


def add_imm(a, reg, inc):
    a(f"  s_addk_i32 {reg}, {inc}" if -32768 <= inc < 32768 else f"  s_add_u32 {reg}, {reg}, {inc}")


def spread(x, bits):
    return sum(((x >> i) & 1) << b for i, b in enumerate(bits))


def masked_inc(a, off):
    a(f"  s_or_b32 s{off}, s{off}, s{S_NMSK}")
    a(f"  s_add_u32 s{off}, s{off}, 1")
    a(f"  s_and_b32 s{off}, s{off}, s{S_MSK}")


def unit_body(a, o, w, barrier_at, first=False, mid=None):
    for g in range(8):
        if mid is not None and g == 7:
            a(mid)
        for p in range(4):
            n = 4 * g + p
            if first and n == min(w, 31):
                sstamp(a, o, 1)
                loader_late_setup(a, o)
                sstamp(a, o, 2)
            if not first or n >= w:
                a(f"  s_waitcnt vmcnt({w - 1})")
                if first and n == w:
                    sstamp(a, o, 3)
            elif p == 0:
                a("  s_nop 0")
            a(f"  buffer_load_dwordx4 v{VDA + p}, {sr(SA, 4)}, s{S_OFFA} offen offset:{1024 * p}{o.aux} lds")
            if n == barrier_at:
                lbarrier(a, o)
        if o.rsel and g & 1:
            masked_inc(a, S_OFFA)
        else:
            nxt = spread(g + 1, o.bits[4:7]) if g < 7 else o.ustride
            add_imm(a, f"s{S_OFFA}", nxt - spread(g, o.bits[4:7]))
        a("  s_addk_i32 m0, 4096")


def dispatch(a, lo, hi):
    if lo == hi:
        a(f"  s_branch L_ld_v{lo}")
        return
    mid = (lo + hi + 1) // 2
    a(f"  s_cmp_ge_u32 s{S_T}, {mid}")
    if mid == hi:
        a(f"  s_cbranch_scc1 L_ld_v{mid}")
        dispatch(a, lo, mid - 1)
        return
    a(f"  s_cbranch_scc1 L_dsp_{mid}_{hi}")
    dispatch(a, lo, mid - 1)
    a(f"L_dsp_{mid}_{hi}:")
    dispatch(a, mid, hi)


def loader_late_setup(a, o):
    b = o.bits
    pconst = [spread(p, b[2:4]) - 1024 * p for p in range(4)]
    a(f"""
  s_add_u32 s{S_BB}, s{S_ARG + 4}, s{S_T}
  s_addc_u32 s{S_BB + 1}, s{S_ARG + 5}, s{S_T + 2}
  v_lshlrev_b32 v12, 1, v3
  v_xor_b32 v12, v2, v12
  v_lshl_add_u32 v{VDB}, v12, 4, v1
  v_xor_b32 v13, 8, v12
  v_lshl_add_u32 v{VDB + 1}, v13, 4, v1
  v_add_u32 v{VDB + 2}, {pconst[2]}, v{VDB}
  v_add_u32 v{VDB + 3}, {pconst[3]}, v{VDB + 1}
  v_add_u32 v{VDB + 1}, {pconst[1]}, v{VDB + 1}
  v_mov_b32 v12, {LDS_WIN}
  s_mov_b32 s{S_I}, 1
  s_mov_b32 s{SQ}, s{S_ARG + 6}
  s_mov_b32 s{SQ + 1}, s{S_ARG + 7}
  s_mov_b32 s{SQ + 2}, 0x200000
  s_mov_b32 s{SQ + 3}, 0x20000
  s_lshl_b32 s{S_KEEP}, s{S_PAIR}, 14
  s_lshl_b32 s{S_T + 3}, s{S_HALF}, 7
  s_or_b32 s{S_KEEP}, s{S_KEEP}, s{S_T + 3}
  v_lshlrev_b32 v14, 8, v0
  v_and_b32 v18, 7, v0
  v_lshlrev_b32 v19, 1, v3
  v_xor_b32 v18, v18, v19
  v_lshl_add_u32 v18, v18, 4, s{S_T + 1}
  v_bfe_u32 v19, v0, 3, 1
  v_lshl_add_u32 v18, v19, {b[0]}, v18
  v_bfe_u32 v19, v0, 4, 1
  v_lshl_add_u32 v18, v19, {b[1]}, v18
  v_lshrrev_b32 v19, 5, v0
  v_lshl_add_u32 v18, v19, {b[2]}, v18
  v_add_u32 v{VDT + 4}, s{S_T + 3}, v18
""")
    for p in range(1, 4):
        a(f"  v_add_u32 v{VDT + 4 + p}, {spread(p, b[3:5]) - 1024 * p}, v{VDT + 4}")
    for p in range(4):
        a(f"  v_xor_b32 v{VDT + p}, 128, v{VDT + 4 + p}")
    if o.lstamp:
        a(f"  s_mov_b32 s{S_TS + 2}, 0")


def loader(a, o):
    wins, b = o.wins, o.bits
    multi = len(wins) > 1
    nfull = 32 - o.tu
    a(f"""
  s_setprio 3
  v_and_b32 v2, 15, v0
  v_lshrrev_b32 v3, 4, v0
  s_lshl_b32 s{S_T + 1}, s{S_HALF}, {o.split}
  s_addk_i32 s{S_T + 1}, {BIAS}
""")
    if b[1] == b[0] + 1:
        a(f"  v_lshl_add_u32 v1, v3, {b[0]}, s{S_T + 1}")
    else:
        a(f"""
  v_and_b32 v1, 1, v3
  v_lshl_add_u32 v1, v1, {b[0]}, s{S_T + 1}
  v_lshrrev_b32 v12, 5, v0
  v_lshl_add_u32 v1, v12, {b[1]}, v1
""")
    a("  v_xor_b32 v12, v2, v3")
    for p in range(4):
        c = spread(p, b[2:4]) - 1024 * p
        if p:
            a(f"  v_xor_b32 v13, {4 * p}, v12")
        a(f"  v_lshl_add_u32 v{VDA + p}, v{13 if p else 12}, 4, v1")
        if c:
            a(f"  v_add_u32 v{VDA + p}, {c}, v{VDA + p}")
    a(f"""
  s_mov_b32 s{SA + 2}, {0x100000 + BIAS}
  s_mov_b32 s{SA + 3}, 0x20000
  s_mov_b32 m0, 0
""")
    if o.rsel:
        assert b[6] == b[5] + 1
        mask = (3 << b[5]) | (15 * o.ustride)
        a(f"  s_mov_b32 s{S_MSK}, {hex(mask)}")
        a(f"  s_not_b32 s{S_NMSK}, s{S_MSK}")
        for k, sh in enumerate(o.rsel):
            a(f"  s_lshr_b32 s{S_OFFA if k == 0 else S_OFFB}, s{S_PAIR}, {sh}")
            if k:
                a(f"  s_add_u32 s{S_OFFA}, s{S_OFFA}, s{S_OFFB}")
        a(f"  s_and_b32 s{S_OFFA}, s{S_OFFA}, 3")
        a(f"  s_lshl_b32 s{S_OFFA}, s{S_OFFA}, {b[5]}")
    else:
        a(f"  s_mov_b32 s{S_OFFA}, 0")
    a(f"""
  s_mov_b32 s{S_OFFB}, s{S_OFFA}
  s_lshl_b32 s{S_T}, s{S_PAIR}, 20
  s_sub_u32 s{S_T}, s{S_T}, {BIAS}
  s_subb_u32 s{S_T + 2}, 0, 0
  s_waitcnt lgkmcnt(0)
  s_add_u32 s{SA}, s{S_ARG + 2}, s{S_T}
  s_addc_u32 s{SA + 1}, s{S_ARG + 3}, s{S_T + 2}
""")
    first = wins.index(o.winit)
    sstamp(a, o, 0)
    unit_body(a, o, o.winit, None, first=True)
    sstamp(a, o, 4)
    order = sorted(range(len(wins)), key=lambda i: (abs(i - first), i))

    def swap_block():
        a(f"""
L_ld_swap:
  s_mov_b64 s[{S_T + 4}:{S_T + 5}], s[{SA}:{SA + 1}]
  s_mov_b64 s[{SA}:{SA + 1}], s[{S_BB}:{S_BB + 1}]
  s_mov_b64 s[{S_BB}:{S_BB + 1}], s[{S_T + 4}:{S_T + 5}]
  s_mov_b32 s{S_T}, s{S_OFFA}
  s_mov_b32 s{S_OFFA}, s{S_OFFB}
  s_mov_b32 s{S_OFFB}, s{S_T}
""")
        for p in range(4):
            a(f"  v_swap_b32 v{VDA + p}, v{VDB + p}")
        if multi:
            a(f"""
  s_waitcnt lgkmcnt(0)
  v_readfirstlane_b32 s{S_T}, v13
L_ld_dispatch:
""")
        dispatch(a, 0, len(wins) - 1)

    for pos, vi in enumerate(order):
        w = wins[vi]
        if pos == o.p0 and o.align:
            a(".p2align 12")
        if pos == 2 or (pos >= o.p0 and (pos - o.p0) % 2 == 0):
            touch(a, o)
        a(f"L_ld_v{vi}:")
        rd = "  ds_read_b32 v13, v12"
        early = w - 1 < 28
        unit_body(a, o, w, w - 1, mid=rd if multi and early else None)
        if multi and not early:
            a(rd)
        a(f"""
  s_cmp_ge_u32 m0, {UNIT * NS}
  s_cselect_b32 m0, 0, m0
  s_add_u32 s{S_I}, s{S_I}, 1
  s_and_b32 s{S_T}, s{S_I}, {o.run - 1}
  s_cbranch_scc0 L_ld_swap
  s_cmp_eq_u32 s{S_I}, {nfull}
  s_cbranch_scc1 L_ld_tail
""")
        if multi:
            a(f"""
  s_waitcnt lgkmcnt(0)
  v_readfirstlane_b32 s{S_T}, v13
  s_cmp_eq_u32 s{S_T}, {vi}
  s_cbranch_scc1 L_ld_v{vi}
  s_branch L_ld_dispatch
""")
        else:
            a(f"  s_branch L_ld_v{vi}")
        if pos == 0:
            swap_block()
    touch(a, o, last=not o.touch2)
    w = o.wtail
    npre = 0 if o.epre else 1
    total = 32 * o.tu
    preread = f"""
  buffer_load_dword v16, v14, {sr(SQ, 4)}, s{S_KEEP} offen{o.paux}
"""
    if o.epre:
        preread = ""
    assert o.prepos <= w - 1
    marks = [0] + list(range(16, total, 16)) + [total - 8, total]
    a(f"""
L_ld_tail:
  s_mov_b32 s{S_OFFB}, s{S_OFFA}
""")
    slot = lambda k: max(1, k + 6 - len(marks))
    wn = lambda n: w if n < total - o.wlast[0] else o.wlast[1]
    nxtm = 0
    for g in range(total // 4):
        off = S_OFFA if g < total // 8 else S_OFFB
        for p in range(4):
            n = 4 * g + p
            a(f"  s_waitcnt vmcnt({wn(n) - 1})")
            a(f"  buffer_load_dwordx4 v{VDT + p + (0 if off == S_OFFA else 4)}, {sr(SA, 4)}, s{off} offen offset:{1024 * p}{o.aux} lds")
            if n - (wn(n) - 1) >= marks[nxtm]:
                assert nxtm > 0 or n < 32
                lbarrier(a, o, slot(nxtm))
                nxtm += 1
        if (g + 1) % (total // 8) and o.rsel:
            masked_inc(a, off)
        elif (g + 1) % (total // 8):
            nxt = spread((g & 3) + 1, b[5:7]) if g & 3 < 3 else o.ustride
            add_imm(a, f"s{off}", nxt - spread(g & 3, b[5:7]))
        if g + 1 < total // 4:
            a("  s_addk_i32 m0, 4096")
    a(preread)
    for k in range(nxtm, len(marks)):
        a(f"  s_waitcnt vmcnt({total - marks[k] + npre})")
        lbarrier(a, o, slot(k))
    if o.sstamp:
        for k in range(5):
            a(f"  s_mov_b32 s{S_TS + 2 + k}, s{86 + 2 * k}")
    if o.lstamp or o.sstamp:
        a(f"  s_mov_b32 s{SW}, s{S_ARG + 10}\n  s_mov_b32 s{SW + 1}, s{S_ARG + 11}\n  s_mov_b32 s{SW + 2}, {WS_SIZE}\n  s_mov_b32 s{SW + 3}, 0x20000")
        a(f"  s_lshl_b32 s{S_T}, s2, 5")
        a(f"  s_add_u32 s{S_T}, s{S_T}, {WS_STAMP + 32768}")
        for k in range(8):
            a(f"  v_mov_b32 v{32 + k}, s{S_TS + k}")
        a("  v_mov_b32 v40, 0")
        a(f"  buffer_store_dwordx4 v[32:35], v40, {sr(SW, 4)}, s{S_T} offen")
        a(f"  buffer_store_dwordx4 v[36:39], v40, {sr(SW, 4)}, s{S_T} offen offset:16")
    a("  s_endpgm")


def mfma(d, x, y, c):
    return f"  v_mfma_f32_16x16x32_bf16 {vr(d, 4)}, {vr(x, 4)}, {vr(y, 4)}, {'0' if c is None else vr(c, 4)}"


def scale_o(lo, n, al):
    return [f"  v_pk_mul_f32 {vr(r, 2)}, {vr(r, 2)}, {vr(al, 2)} op_sel_hi:[1,0]" for r in range(lo, lo + n, 2)]


def fma_o(lo, n, al, add):
    return [f"  v_pk_fma_f32 {vr(lo + r, 2)}, {vr(lo + r, 2)}, {vr(al, 2)}, {vr(add + r, 2)} op_sel_hi:[1,0,1]" for r in range(0, n, 2)]


def xlane_ops(op, reg, t0, t1):
    return [
        f"  v_mov_b32 v{t0}, v{reg}",
        f"  v_mov_b32 v{t1}, v{reg}",
        "  s_nop 1",
        f"  v_permlane32_swap_b32 v{t0}, v{t1}",
        f"  {op} v{t0}, v{t0}, v{t1}",
        f"  v_mov_b32 v{t1}, v{t0}",
        "  s_nop 1",
        f"  v_permlane16_swap_b32 v{t0}, v{t1}",
        f"  {op} v{reg}, v{t0}, v{t1}",
    ]


def shift_p():
    return [f"  v_mov_b64 {vr(VP + r, 2)}, {vr(VP + 16 + r, 2)}" for r in range(0, 48, 2)]


def copy16(dst, src):
    return [f"  v_mov_b64 {vr(dst + r, 2)}, {vr(src + r, 2)}" for r in range(0, 16, 2)]


def next_slot():
    return [
        f"  s_add_u32 s{S_RD}, s{S_RD}, 1",
        f"  s_cmp_eq_u32 s{S_RD}, {NS}",
        f"  s_cselect_b32 s{S_RD}, 0, s{S_RD}",
        f"  s_mov_b32 s{S_DL}, {UNIT}",
        f"  s_cmov_b32 s{S_DL}, {-(NS - 1) * UNIT}",
    ]


def adv(r):
    return f"  v_add_u32 v{r}, s{S_DL}, v{r}"


def weight_ops(m2, l2, wa, wb):
    return [
        f"  v_max_f32 v{wb + 1}, v{VM}, v{m2}",
        f"  v_sub_f32 v{wa}, v{VM}, v{wb + 1}",
        f"  v_sub_f32 v{wb}, v{m2}, v{wb + 1}",
        f"  v_exp_f32 v{wa}, v{wa}",
        f"  v_exp_f32 v{wb}, v{wb}",
        f"  v_mul_f32 v{wa + 1}, v{VL}, v{wa}",
        f"  v_mul_f32 v{wb + 1}, v{l2}, v{wb}",
        f"  v_add_f32 v{wa + 1}, v{wa + 1}, v{wb + 1}",
        f"  v_rcp_f32 v{wa + 1}, v{wa + 1}",
        "  s_nop 0",
        f"  v_mul_f32 v{wa}, v{wa}, v{wa + 1}",
        f"  v_mul_f32 v{wb}, v{wb}, v{wa + 1}",
    ]


def merge_half(a, o, own, pk, w_oth, tmp, dst, soff):
    for m in range(2):
        for h in range(4):
            a(f"  v_lshlrev_b32 v{tmp + 2 * h}, 16, v{pk + 4 * m + h}")
            a(f"  v_and_b32 v{tmp + 2 * h + 1}, 0xffff0000, v{pk + 4 * m + h}")
        a(fma_o(tmp, 8, w_oth, own + 8 * m))
        d = dst + 4 * m
        for h in range(4):
            a(f"  v_cvt_pk_bf16_f32 v{d + h}, v{tmp + 2 * h}, v{tmp + 2 * h + 1}")
            if h & 1:
                a(f"  ds_write_b64 v{VVA + 2 * m + (h >> 1)}, {vr(d + h - 1, 2)}")
    for m in range(2):
        a(f"  ds_read_b128 {vr(tmp + 4 * m, 4)}, v{VOUT} offset:{1024 * m}")
    for m in range(2):
        a(f"  s_waitcnt lgkmcnt({1 - m})")
        a(f"  buffer_store_dwordx4 {vr(tmp + 4 * m, 4)}, v{VBOX}, {sr(SQ, 4)}, s{soff} offen offset:{2048 * m}{o.oaux}")


def early_loads(a, o):
    multi = len(o.wins) > 1
    a(f"""
  s_sub_u32 s{S_WAVE}, s{S_WAVE}, 1
  v_and_b32 v{VLANE}, 63, v0
  v_and_b32 v2, 15, v0
  v_bfe_u32 v3, v0, 4, 2
  s_mov_b32 s{SQ + 2}, 0x200000
  s_mov_b32 s{SQ + 3}, 0x20000
  s_mov_b32 s{SW + 2}, {WS_SIZE}
  s_mov_b32 s{SW + 3}, 0x20000
  s_lshl_b32 s{S_T}, s{S_PAIR}, 2
  s_add_u32 s{S_T}, s{S_T}, s{S_WAVE}
  s_lshl_b32 s{S_OUT}, s{S_T}, 12
  s_lshl_b32 s{S_BLK}, s{S_T}, 9
  s_add_u32 s{S_BLK}, s{S_BLK}, {WS_BLK}
  s_lshl_b32 s{S_T}, s{S_HALF}, 7
  s_add_u32 s{S_MLO}, s{S_BLK}, s{S_T}
  s_xor_b32 s{S_MLP}, s{S_MLO}, 128
  v_xor_b32 v{VT + 1}, v2, v3
  v_lshlrev_b32 v{VT + 2}, 8, v3
  v_lshl_add_u32 v{VT + 4}, v{VT + 1}, 4, v{VT + 2}
  v_xor_b32 v{VT + 5}, 64, v{VT + 4}
  v_xor_b32 v{VT + 6}, 128, v{VT + 4}
  v_xor_b32 v{VT + 7}, 192, v{VT + 4}
  s_lshl_b32 s{S_PL}, s{S_WAVE}, 12
  s_add_u32 s{S_PL}, s{S_PL}, {LDS_P}
  s_mov_b32 m0, s{S_PL}
  v_mov_b32 v{VZ}, 0
  v_min_u32 v{VCA}, 32, v{VLANE}
  v_lshlrev_b32 v{VCA}, 2, v{VCA}
  s_getreg_b32 s{S_ID}, hwreg(HW_REG_XCC_ID, 0, 4)
  s_mul_i32 s{S_LOC}, s{S_ID}, {REP_STRIDE}
  s_add_u32 s{S_LOC}, s{S_LOC}, {WS_LOC}
  s_lshr_b32 s{S_SLOT}, s2, 3
  s_mul_i32 s{S_REPV}, s{S_SLOT}, {REP_STRIDE}
  s_add_u32 s{S_REPV}, s{S_REPV}, {WS_REP}
  s_cmp_eq_u32 s{S_WAVE}, 1
  s_cselect_b32 s{S_CTL}, {1 if multi else 0}, 0
  s_waitcnt lgkmcnt(0)
  s_mov_b64 s[{SW}:{SW + 1}], s[{S_ARG + 10}:{S_ARG + 11}]
  s_mov_b64 s[{SQ}:{SQ + 1}], s[{S_ARG}:{S_ARG + 1}]
""")
    small = f"""
  buffer_load_dwordx4 {vr(VFL, 4)}, v{VZ}, {sr(SW, 4)}, s{S_BLK} offen offset:256 sc1
  buffer_load_dword v{VOUT}, v{VZ}, {sr(SW, 4)}, s{S_MLP} offen sc1
  s_cbranch_scc0 L_nobase
  buffer_load_dword v{VCB}, v{VCA}, {sr(SW, 4)}, s{S_LOC} offen sc1
  buffer_load_dword v{VG0}, v{VZ}, {sr(SW, 4)}, s{S_REPV} offen{o.gaux}
L_nobase:
"""
    q = [f"  buffer_load_dwordx4 v{VT + 4 + p}, {sr(SQ, 4)}, s{S_OUT} offen offset:{1024 * p}{o.qaux} lds" for p in range(4)]
    a(small)
    a(q)


def prologue(a, o):
    c = (128 ** -0.5) * math.log2(math.e)
    a("L_compute:")
    if not o.early:
        early_loads(a, o)
    a(f"""
  s_mov_b32 s{SD + 2}, 256
  s_mov_b32 s{SD + 3}, 0x20000
  s_mov_b32 s{SD}, s{S_ARG + 8}
  s_mov_b32 s{SD + 1}, s{S_ARG + 9}
  s_add_u32 s{S_KEEP}, s{S_OUT}, s{S_T}
  s_xor_b32 s{S_SEND}, s{S_KEEP}, 128
  v_lshlrev_b32 v{VT}, 8, v2
  v_bfe_u32 v{VBOX}, v0, 3, 3
  v_lshlrev_b32 v{VBOX}, 8, v{VBOX}
  v_and_b32 v1, 7, v0
  v_lshl_add_u32 v{VBOX}, v1, 4, v{VBOX}
  s_or_b32 s{S_ID}, s{S_ID}, 16
  s_mul_i32 s{S_REP}, s{S_SLOT}, {o.gstep}
  s_add_u32 s{S_REP}, s{S_REP}, {o.gfirst}
  s_cmp_le_u32 s{S_REP}, {o.glast}
  s_cselect_b32 s{S_REP}, s{S_REP}, 64
  v_mov_b32 v{VT + 3}, {LDS_WIN}
  v_mov_b32 v{VT + 2}, {o.wins.index(o.winit)}
  ds_write_b32 v{VT + 3}, v{VT + 2}
  s_and_b32 s{S_SH}, s{S_PAIR}, 3
  s_lshl_b32 s{S_SH}, s{S_SH}, 3
  s_and_b32 s{S_DW}, s{S_PAIR}, 0x7c
""")
    for s in range(4):
        a(f"  v_xor_b32 v{VT + 3}, {4 * s}, v{VT + 1}")
        a(f"  v_lshl_add_u32 v{VKA + s}, v{VT + 3}, 4, v{VT}")
    a(f"""
  s_lshl_b32 s{S_T}, s{S_HALF}, 3
  s_xor_b32 s{S_T}, s{S_T}, 8
  v_bfe_u32 v{VT}, v0, 2, 4
  v_and_b32 v{VT + 1}, 7, v{VT}
  v_lshlrev_b32 v{VT + 1}, 1, v{VT + 1}
  v_xor_b32 v{VT + 1}, s{S_T}, v{VT + 1}
  v_lshlrev_b32 v{VT}, 8, v{VT}
  v_and_b32 v{VT + 3}, 3, v0
  v_lshl_add_u32 v{VT}, v{VT + 3}, 3, v{VT}
""")
    for j in range(8):
        a(f"  v_xor_b32 v{VT + 3}, {2 * j}, v{VT + 1}")
        a(f"  v_lshl_add_u32 v{VVA + j}, v{VT + 3}, 4, v{VT}")
    for r in range(0, 32, 2):
        a(f"  v_mov_b64 {vr(VO + r, 2)}, 0")
    a(f"""
  v_mov_b32 v{VM}, 0xff800000
  v_mov_b32 v{VL}, 0
  v_mov_b32 v{VCT}, 0
  v_lshlrev_b32 v{VML}, 3, v2
  v_lshl_add_u32 v{VPL}, v{VLANE}, 4, s{S_PL}
  s_lshl_b32 s{S_T}, s{S_WAVE}, 10
  s_add_u32 s{S_T}, s{S_T}, {LDS_AL}
  v_lshl_add_u32 v{VAA}, v2, 2, s{S_T}
  s_mov_b32 s{S_C}, {f32hex(c)}
  s_mov_b32 s{S_C + 1}, s{S_C}
  s_mov_b32 s{S_RD}, 0
  s_mov_b32 s{S_INT}, 0
  s_mov_b32 s{S_BG}, 0
  s_lshl_b32 s{S_REM}, s{S_SLOT}, 4
  s_mov_b32 s{S_I}, 0
  s_cmp_eq_u32 s{S_WAVE}, 0
  s_cselect_b32 s{S_HOOK}, {o.hello}, {o.epre or o.sent}
  s_lshl_b32 s{S_T}, s{S_HALF}, 2
  s_add_u32 s{S_FLO}, s{S_BLK}, s{S_T}
  s_xor_b32 s{S_FLP}, s{S_FLO}, 4
""")
    for s in range(4):
        a(f"  v_add_u32 v{VT + 4 + s}, s{S_PL}, v{VKA + s}")
    a("  s_waitcnt vmcnt(0)")
    for s in range(4):
        a(f"  ds_read_b128 {vr(VQ + 4 * s, 4)}, v{VT + 4 + s}")
    a(f"  s_mov_b32 s{SQ}, s{S_ARG + 6}")
    a(f"  s_mov_b32 s{SQ + 1}, s{S_ARG + 7}")
    if o.stamp:
        a(f"  s_mov_b32 s{S_WSUM}, 0")
    a("  s_waitcnt lgkmcnt(0)")


def k_body(a, o):
    t0, t1, mx = VT, VT + 1, VT + 2
    al = VAL[0]
    pnew = VF
    lds = LdsTracker(a)
    reads = [f"  ds_read_b128 {vr(VF + 4 * (n % 16), 4)}, v{VKA + n % 4} offset:{4096 * (n // 4)}" for n in range(32)]
    fill = next_slot()
    for n in range(o.nprek):
        lds.issue(reads[n])
        if n >= 1:
            for _ in range(2):
                if fill:
                    a(fill.pop(0))
    a(fill)
    pend = reads[o.nprek:]
    mxs = [f"  v_max3_f32 v{mx}, v{VS}, v{VS + 1}, v{VS + 2}"]
    mxs += [f"  v_max3_f32 v{mx}, v{mx}, v{VS + r}, v{VS + r + 1}" for r in range(3, 31, 2)]
    k = 0
    pads = [adv(VVA + j) for j in range(8)]
    for n in range(32):
        t, s = divmod(n, 4)
        if s == 0:
            lds.need(n + 4)
        a(mfma(VS + 4 * t, VF + 4 * (n % 16), VQ + 4 * s, None if s == 0 else VS + 4 * t))
        if pend:
            lds.issue(pend.pop(0))
        elif pads:
            a(pads.pop(0))
        if t >= 2 and s in (1, 3) and 2 * k + 2 < 4 * (t - 1):
            a(mxs[k]); k += 1
    a(pads)
    a([adv(VKA + s) for s in range(4)])
    while 2 * k + 2 < 28:
        a(mxs[k]); k += 1
    a("  s_nop 2")
    a(mxs[k:])
    a(f"""
  v_max_f32 v{t0}, v{mx}, v{VS + 31}
  v_max_f32 v{t1}, v{mx}, v{VS + 31}
  s_nop 1
  v_permlane32_swap_b32 v{t0}, v{t1}
  v_max_f32 v{mx}, v{t0}, v{t1}
  v_max_f32 v{t1}, v{t0}, v{t1}
  s_nop 1
  v_permlane16_swap_b32 v{mx}, v{t1}
  v_max_f32 v{mx}, v{mx}, v{t1}
  v_mul_f32 v{mx}, s{S_C}, v{mx}
  v_max_f32 v{mx}, v{mx}, v{VM}
  v_sub_f32 v{al}, v{VM}, v{mx}
  v_mov_b32 v{VM}, v{mx}
  v_exp_f32 v{al}, v{al}
""")
    for r in range(0, 32, 2):
        a(f"  v_pk_fma_f32 {vr(VS + r, 2)}, {vr(VS + r, 2)}, s[{S_C}:{S_C + 1}], {vr(mx, 2)} op_sel_hi:[1,1,0] neg_lo:[0,0,1] neg_hi:[0,0,1]")
    for r in range(32):
        a(f"  v_exp_f32 v{VS + r}, v{VS + r}")
    for r in range(16):
        a(f"  v_cvt_pk_bf16_f32 v{pnew + r}, v{VS + 2 * r}, v{VS + 2 * r + 1}")
    for step in (16, 8, 4, 2):
        for r in range(0, step, 2):
            a(f"  v_pk_add_f32 {vr(VS + r, 2)}, {vr(VS + r, 2)}, {vr(VS + r + step, 2)}")
    a(f"  v_add_f32 v{VS}, v{VS}, v{VS + 1}")
    a(f"  v_fma_f32 v{VL}, v{VL}, v{al}, v{VS}")
    a(f"""
  ds_write_b32 v{VAA}, v{al}
  v_add_u32 v{VAA}, 64, v{VAA}
  s_add_u32 s{S_I}, s{S_I}, 1
  s_cmp_gt_u32 s{S_I}, 4
  s_cbranch_scc1 L_park2
""")
    a(shift_p() + copy16(VP + 48, pnew))
    a(f"""
  s_waitcnt lgkmcnt(0)
  s_branch L_loop
L_park2:
  s_cmp_eq_u32 s{S_I}, 16
  s_cbranch_scc1 L_park3
  s_and_b32 s{S_T}, s{S_I}, 1
  s_add_u32 s{S_T}, s{S_T}, 1
  s_cmp_eq_u32 s{S_I}, 5
  s_cmov_b32 s{S_T}, 0
  s_lshl_b32 s{S_T}, s{S_T}, 14
  v_add_u32 v{VT}, s{S_T}, v{VPL}
""")
    for k in range(4):
        a(f"  ds_write_b128 v{VT}, {vr(pnew + 4 * k, 4)} offset:{1024 * k}")
    a(f"""
  s_waitcnt lgkmcnt(0)
  s_branch L_loop
L_park3:
  v_subrev_u32 v{VAA}, 1024, v{VAA}
  ds_read_b32 v{VAL[0]}, v{VAA}
""")
    a(copy16(VS, pnew))
    a("  s_waitcnt lgkmcnt(0)")
    a("  s_branch L_loop")


def pv_block(a, items, fill=(), head=(), valu=(), per=0):
    lds = LdsTracker(a)
    reads = [f"  ds_read_b64_tr_b16 {vr(VF + 4 * (n % 16) + 2 * t, 2)}, v{ad} offset:{off + t * step}"
             for n, (ad, off, step, _, _) in enumerate(items) for t in range(2)]
    fill, valu = list(fill), list(valu)
    for n, r in enumerate(reads[:12]):
        lds.issue(r)
        if n >= 2:
            for _ in range(2):
                if fill:
                    a(fill.pop(0))
    a(fill)
    a(head)
    pend = reads[12:]
    for n, (_, _, _, acc, p) in enumerate(items):
        if len(items) <= 16 or n % 2 == 0:
            lds.need(min(len(reads), 2 * (n + 1) if len(items) <= 16 else 2 * (n + 2)))
        a(mfma(acc, VF + 4 * (n % 16), p, acc))
        for _ in range(2):
            if pend:
                lds.issue(pend.pop(0))
        for _ in range(per):
            if valu:
                a(valu.pop(0))
    a(valu)


def v_body(a, o):
    items = [(VVA + j, 8192 * kb, 4096, VO + 4 * j, VP + 4 * kb) for kb in range(4) for j in range(8)]
    pv_block(a, items, fill=scale_o(VO, 32, VAL[0]) + next_slot())
    a([adv(VKA + s) for s in range(4)] + [adv(VVA + j) for j in range(8)])
    a(f"  ds_read_b32 v{VAL[0]}, v{VAA} offset:64")
    a(f"  ds_read_b32 v{VAL[1]}, v{VAA} offset:128")
    a(f"  v_add_u32 v{VAA}, 64, v{VAA}")
    a(shift_p())
    a(f"""
  s_add_u32 s{S_I}, s{S_I}, 1
  s_cmp_ge_u32 s{S_I}, 28
  s_cbranch_scc1 L_refill2
  s_and_b32 s{S_T}, s{S_I}, 1
  s_xor_b32 s{S_T}, s{S_T}, 1
  s_cmp_eq_u32 s{S_I}, 27
  s_cmov_b32 s{S_T}, 2
  s_lshl_b32 s{S_T}, s{S_T}, 14
  v_add_u32 v{VT}, s{S_T}, v{VPL}
""")
    for k in range(4):
        a(f"  ds_read_b128 {vr(VP + 48 + 4 * k, 4)}, v{VT} offset:{1024 * k}")
    a(f"""
  s_waitcnt lgkmcnt(0)
  s_branch L_loop
""")
    if o.touch2:
        touch(a, o, last=True)
    a("L_refill2:")
    a(copy16(VP + 48, VS))
    a("  s_waitcnt lgkmcnt(0)")


def storage(a, o):
    def bars(tag):
        a(f"""
L_st_{tag}:
  s_barrier
  s_sub_u32 s{S_I}, s{S_I}, 1
  s_cbranch_scc0 L_st_{tag}
""")
    a(f"""
L_storage:
  v_and_b32 v1, 63, v0
  v_lshlrev_b32 v1, 4, v1
  s_and_b32 s{S_T}, s{S_WAVE}, 1
  s_lshl_b32 s{S_T}, s{S_T}, 14
  s_sub_u32 s{S_T + 1}, {LDS_P + 32768}, s{S_T}
  v_add_u32 v2, s{S_T + 1}, v1
  s_add_u32 s{S_T + 1}, s{S_T}, {LDS_P + 16384}
  v_add_u32 v3, s{S_T + 1}, v1
  s_add_u32 s{S_T + 1}, s{S_T}, {LDS_P}
  v_add_u32 v4, s{S_T + 1}, v1
  s_sub_u32 s{S_T + 1}, {LDS_P + 16384}, s{S_T}
  v_add_u32 v5, s{S_T + 1}, v1
  s_add_u32 s{S_I}, s{S_WAVE}, 1
""")
    for n in range(3):
        bars(f"k{n}")
        lds = LdsTracker(a)
        for k in range(16):
            lds.issue(f"  ds_read_b128 {vr(8 + 64 * n + 4 * k, 4)}, v{2 + (n & 1)} offset:{1024 * k}")
        a(f"  s_mov_b32 s{S_I}, {2 if n < 2 else 3}")
        a("  s_waitcnt lgkmcnt(0)")
    for n in range(3):
        bars(f"v{n}")
        lds = LdsTracker(a)
        for k in range(16):
            lds.issue(f"  ds_write_b128 v{4 + (n & 1)}, {vr(8 + 64 * n + 4 * k, 4)} offset:{1024 * k}")
        a(f"  s_mov_b32 s{S_I}, 2")
        a("  s_waitcnt lgkmcnt(0)")
    a("  s_endpgm")


def cycle_probe(a, o, tag):
    if o.estamp == 4:
        a(f"""
  s_memtime s[90:91]
  s_waitcnt lgkmcnt(0)
  s_sub_u32 s{S_TS + (6 if tag == "k" else 8)}, s90, s88
""")


def mainloop(a, o):
    a(f"""
L_loop:
  s_cmp_lg_u32 s{S_CTL}, 0
  s_barrier
  s_waitcnt vmcnt(0)
  s_cbranch_scc1 L_ctl
L_ctl_ret:
  s_cmp_eq_u32 s{S_I}, s{S_HOOK}
  s_cbranch_scc1 L_hook
L_hook_ret:
""")
    if o.stamp and not o.estamp:
        for idx, it in ((3, o.st[0]), (4, o.st[1]), (5, o.st[2])):
            a(f"  s_cmp_lg_u32 s{S_I}, {it}")
            a(f"  s_cbranch_scc1 L_nostamp{idx}")
            stamp(a, o, idx, True)
            a(f"L_nostamp{idx}:")
    if o.trace:
        a(f"""
  s_cmp_lg_u32 s{S_WAVE}, 2
  s_cbranch_scc1 L_notrace
  s_memrealtime s[88:89]
  s_mov_b32 m0, s{S_I}
  s_waitcnt lgkmcnt(0)
  v_writelane_b32 v{VAT}, s88, m0
L_notrace:
""")
    if o.estamp == 4:
        a("  s_memtime s[88:89]")
        a("  s_waitcnt lgkmcnt(0)")
    a(f"""
  s_bitcmp1_b32 s{S_I}, {o.run.bit_length() - 1}
  s_cbranch_scc1 L_vbody
""")
    k_body(a, o)
    if o.touch2:
        touch(a, o)
    a("L_vbody:")
    v_body(a, o)
    a(f"""
  s_cmp_lt_u32 s{S_I}, {32 - o.tu}
  s_cbranch_scc1 L_loop
""")


def epilogue(a, o):
    m2, l2, mm = VQ, VQ + 1, VT + 2
    wa, wb = VQ + 2, VQ + 4
    PK, B2, tmp, dst = VS, VS + 8, VS + 16, VS + 24
    snd = VQ + 8
    fetch = f"""
  buffer_load_dwordx4 {vr(PK, 4)}, v{VBOX}, {sr(SQ, 4)}, s{S_KEEP} offen sc1
  buffer_load_dwordx4 {vr(PK + 4, 4)}, v{VBOX}, {sr(SQ, 4)}, s{S_KEEP} offen offset:{o.boxstep} sc1
"""

    def part(q, u, acc, kbs):
        return [(VKA + jj, 16384 * q + 4096 * kb, 2048, acc + 4 * jj, VP + 16 * u + 4 * kb) for kb in kbs for jj in range(4)]

    a(f"""
  v_bfe_u32 v{VT + 4}, v{VLANE}, 3, 2
  v_lshlrev_b32 v{VT + 4}, 1, v{VT + 4}
  v_lshrrev_b32 v{VT + 3}, 2, v{VLANE}
  v_lshlrev_b32 v{VT + 3}, 7, v{VT + 3}
  v_and_b32 v{VT + 5}, 3, v{VLANE}
  v_lshl_add_u32 v{VT + 3}, v{VT + 5}, 3, v{VT + 3}
""")
    base = ((32 - o.tu) % NS) * UNIT
    if base:
        a(f"  v_add_u32 v{VT + 3}, {base}, v{VT + 3}")
    for jj in range(4):
        a(f"  v_xor_b32 v{VT + 5}, {2 * jj}, v{VT + 4}")
        a(f"  v_lshl_add_u32 v{VKA + jj}, v{VT + 5}, 4, v{VT + 3}")
    a(scale_o(VO, 32, VAL[0]))
    a(f"""
  v_lshrrev_b32 v{VT + 3}, 3, v{VLANE}
  v_and_b32 v{VT + 4}, 7, v{VLANE}
  v_xor_b32 v{VT + 5}, v{VT + 3}, v{VT + 4}
  v_lshl_add_u32 v{VOUT}, v{VT + 3}, 7, s{S_PL}
  v_lshl_add_u32 v{VOUT}, v{VT + 5}, 4, v{VOUT}
  v_lshrrev_b32 v{VT + 3}, 5, v{VLANE}
  v_xor_b32 v{VT + 3}, v{VT + 3}, v{VT + 4}
  v_lshl_add_u32 v{VVA}, v{VML}, 4, s{S_PL}
  v_lshl_add_u32 v{VVA}, v{VT + 3}, 4, v{VVA}
  v_bfe_u32 v{VT + 3}, v{VLANE}, 4, 1
  v_lshl_add_u32 v{VVA}, v{VT + 3}, 3, v{VVA}
  v_xor_b32 v{VVA + 1}, 32, v{VVA}
  v_xor_b32 v{VVA + 2}, 64, v{VVA}
  v_xor_b32 v{VVA + 3}, 96, v{VVA}
  s_mov_b32 s{S_I}, {SPIN}
  s_cmp_lg_u32 s{S_MODE}, 0
""")
    for u in range(o.tu):
        a("  s_barrier")
        pv_block(a, part(u, u, VO, range(4)))
        if u + 1 < o.tu:
            a("  s_nop 2")
            a(scale_o(VO, 16, VAL[u + 1]))
    a("  s_nop 1")
    a("  s_cbranch_scc1 L_nosend")
    for m in range(2):
        for r in range(4):
            a(f"  v_cvt_pk_bf16_f32 v{snd + 4 * m + r}, v{VO + 8 * m + 2 * r}, v{VO + 8 * m + 2 * r + 1}")
        for r in range(4):
            a(f"  v_min_u32 v{snd + 4 * m + r}, -2, v{snd + 4 * m + r}")
        a(f"  buffer_store_dwordx4 {vr(snd + 4 * m, 4)}, v{VBOX}, {sr(SQ, 4)}, s{S_SEND} offen offset:{o.boxstep * m}")
    a("L_nosend:")
    if o.estamp == 1:
        stamp(a, o, 3, True)
    for u in range(o.tu - 1):
        a("  s_barrier")
        pv_block(a, part(o.tu + u, u, VO + 16, range(4)))
        a("  s_nop 2")
        a(scale_o(VO + 16, 16, VAL[u + 1]))
    last = o.tu - 1
    a(f"""
  v_cmp_ne_u32 vcc, v{VFL + 1}, v{VRDY}
  s_cbranch_vccz L_notready
L_ready:
""")
    a(weight_ops(m2, l2, wa, wb))
    a("  s_barrier")
    pv_block(a, part(o.tu + last, last, VO + 16, (0, 1)))
    if o.fetch == "d":
        a(fetch)
    if o.estamp == 1:
        stamp(a, o, 4, True)
    a(f"  s_cmp_lg_u32 s{S_MODE}, 0")
    a("  s_barrier")
    stamp(a, o, 1)
    if o.fetch == "e":
        a(fetch)
    pv_block(a, part(o.tu + last, last, VO + 16, (2, 3)))
    a("  s_cbranch_scc1 L_generic")
    a("  s_nop 1")
    a(scale_o(VO + 16, 16, wa))
    a(f"""
L_check:
  s_waitcnt vmcnt(0)
  v_max3_u32 v{mm}, v{PK}, v{PK + 1}, v{PK + 2}
  v_max3_u32 v{mm + 1}, v{PK + 3}, v{PK + 4}, v{PK + 5}
  v_max3_u32 v{mm}, v{mm}, v{PK + 6}, v{PK + 7}
  v_max_u32 v{mm}, v{mm}, v{mm + 1}
  v_cmp_eq_u32 vcc, -1, v{mm}
  s_cbranch_vccnz L_retry
""")
    if o.estamp == 1:
        stamp(a, o, 5)
    merge_half(a, o, VO + 16, PK, wb, tmp, dst, S_KEEP)
    a("L_done:")
    if o.stamp:
        a("  s_waitcnt vmcnt(0)")
        stamp(a, o, 2, True)
        a(f"""
  s_lshl_b32 s{S_T}, s2, 2
  s_add_u32 s{S_T}, s{S_T}, s{S_WAVE}
  s_lshl_b32 s{S_T}, s{S_T}, 5
  s_add_u32 s{S_T}, s{S_T}, {WS_STAMP}
  v_mov_b32 v4, s{S_TS}
  v_mov_b32 v5, s{S_TS + 2}
  v_mov_b32 v6, s{S_TS + 4}
  s_and_b32 s{S_T + 1}, s{S_ID}, 15
  s_lshl_b32 s{S_T + 2}, s{S_MODE}, 4
  s_or_b32 s{S_T + 1}, s{S_T + 1}, s{S_T + 2}
  v_mov_b32 v7, s{S_T + 1}
  buffer_store_dwordx4 v[4:7], v{VZ}, {sr(SW, 4)}, s{S_T} offen
  v_mov_b32 v12, s{S_TS + 6}
  v_mov_b32 v13, s{S_TS + 8}
  v_mov_b32 v14, s{S_TS + 10}
  v_mov_b32 v15, s{S_WSUM}
  buffer_store_dwordx4 v[12:15], v{VZ}, {sr(SW, 4)}, s{S_T} offen offset:16
""")
    if o.trace:
        a(f"""
  s_cmp_lg_u32 s{S_WAVE}, 2
  s_cbranch_scc1 L_end
  v_writelane_b32 v{VAT}, s{S_TS + 2}, 31
  v_writelane_b32 v{VAT}, s{S_TS}, 30
  s_lshl_b32 s{S_T}, s2, 7
  s_add_u32 s{S_T}, s{S_T}, {WS_STAMP + 32768}
  v_lshlrev_b32 v4, 2, v{VLANE}
  s_mov_b64 exec, 0xffffffff
  buffer_store_dword v{VAT}, v4, {sr(SW, 4)}, s{S_T} offen
""")
    if o.diag:
        diag(a, o)
    a("""
L_end:
  s_endpgm
L_retry:
""")
    a(fetch)
    a(f"""
  s_sub_u32 s{S_I}, s{S_I}, 1
  s_cbranch_scc0 L_check
  s_endpgm
L_notready:
  s_cmp_lg_u32 s{S_MODE}, 0
  s_cbranch_scc1 L_ready
  buffer_load_dword v{VRDY}, v{VZ}, {sr(SW, 4)}, s{S_FLP} offen offset:256 sc1
  buffer_load_dword v{VT + 3}, v{VZ}, {sr(SD, 4)}, s{S_DW} offen sc1
  s_sub_u32 s{S_I}, s{S_I}, 1
  s_cbranch_scc1 L_end
  s_waitcnt vmcnt(0)
  v_cmp_ne_u32 vcc, v{VFL + 1}, v{VRDY}
  s_cbranch_vccnz L_readylate
  v_bfe_u32 v{VT + 3}, v{VT + 3}, s{S_SH}, 1
  v_cmp_ne_u32 vcc, 0, v{VT + 3}
  s_cbranch_vccz L_notready
  s_mov_b32 s{S_MODE}, 2
  s_branch L_ready
L_readylate:
  buffer_load_dwordx2 {vr(m2, 2)}, v{VML}, {sr(SW, 4)}, s{S_MLP} offen sc1
  s_waitcnt vmcnt(0)
  s_branch L_ready
""")
    a(f"""
L_generic:
  s_waitcnt vmcnt(0)
  s_lshl_b32 s{S_T}, s{S_PAIR}, 2
  s_add_u32 s{S_T}, s{S_T}, s{S_WAVE}
  s_lshl_b32 s{S_T + 1}, s{S_T}, 13
  s_add_u32 s{S_T + 3}, s{S_T + 1}, 4096
  s_lshl_b32 s{S_T + 2}, s{S_T}, 9
  s_add_u32 s{S_T + 2}, s{S_T + 2}, {WS_DML}
  s_lshl_b32 s{S_T + 4}, 2, s{S_SH}
  v_lshlrev_b32 v{VT + 8}, 4, v{VLANE}
  v_lshlrev_b32 v{VT + 3}, 3, v{VLANE}
  s_cmp_eq_u32 s{S_MODE}, 1
  s_cbranch_scc0 L_second
  buffer_store_dwordx2 {vr(VM, 2)}, v{VT + 3}, {sr(SW, 4)}, s{S_T + 2} offen sc1
""")
    for j in range(8):
        so = S_T + 1 if j < 4 else S_T + 3
        a(f"  buffer_store_dwordx4 {vr(VO + 4 * j, 4)}, v{VT + 8}, {sr(SW, 4)}, s{so} offen offset:{1024 * (j & 3)} sc1")
    a(f"""
  s_waitcnt vmcnt(0)
  s_barrier
  s_cmp_eq_u32 s{S_WAVE}, 0
  s_cbranch_scc0 L_done
  v_mov_b32 v{VT}, s{S_T + 4}
  s_mov_b64 exec, 1
  buffer_atomic_or v{VT}, v{VZ}, {sr(SD, 4)}, s{S_DW} offen sc1
  s_mov_b64 exec, -1
  s_branch L_done
L_second:
  buffer_load_dword v{VT}, v{VZ}, {sr(SD, 4)}, s{S_DW} offen sc1
  s_sub_u32 s{S_I}, s{S_I}, 1
  s_cbranch_scc1 L_end
  s_waitcnt vmcnt(0)
  v_and_b32 v{VT}, s{S_T + 4}, v{VT}
  v_cmp_ne_u32 vcc, 0, v{VT}
  s_cbranch_vccz L_second
  buffer_load_dwordx2 {vr(m2, 2)}, v{VT + 3}, {sr(SW, 4)}, s{S_T + 2} offen sc1
""")
    for j in range(8):
        so = S_T + 1 if j < 4 else S_T + 3
        a(f"  buffer_load_dwordx4 {vr(VF + 4 * j, 4)}, v{VT + 8}, {sr(SW, 4)}, s{so} offen offset:{1024 * (j & 3)} sc1")
    a("  s_waitcnt vmcnt(0)")
    a(weight_ops(m2, l2, wa, wb))
    for r in range(8):
        a(f"  v_cvt_pk_bf16_f32 v{PK + r}, v{VF + 2 * r}, v{VF + 2 * r + 1}")
        a(f"  v_cvt_pk_bf16_f32 v{B2 + r}, v{VO + 2 * r}, v{VO + 2 * r + 1}")
    a(scale_o(VO + 16, 16, wa) + scale_o(VF + 16, 16, wb))
    merge_half(a, o, VO + 16, PK, wb, tmp, dst, S_KEEP)
    merge_half(a, o, VF + 16, B2, wa, snd, dst, S_SEND)
    a("  s_branch L_done")


def diag(a, o):
    ts = lambda i: S_TS + 2 * i
    kind, idx, ref = (o.diag.split(":") + ["0"])[:3]
    idx, ref = int(idx), int(ref)
    T = S_T
    a(f"""
  s_add_u32 s{T + 1}, s{ts(0)}, 8000
L_dg0:
  s_sleep 8
  s_memrealtime s[{T + 2}:{T + 3}]
  s_waitcnt lgkmcnt(0)
  s_sub_u32 s{T + 2}, s{T + 2}, s{T + 1}
  s_cmp_lt_i32 s{T + 2}, 0
  s_cbranch_scc1 L_dg0
  s_mov_b64 exec, 1
  s_not_b32 s{T}, s{ts(0)}
  v_mov_b32 v4, s{T}
  buffer_atomic_umax v4, v{VZ}, {sr(SD, 4)}, 0 offen offset:244 sc1
  v_mov_b32 v5, s{ts(idx)}
  s_sub_u32 s{T}, s{ts(idx)}, s{ts(ref)}
  v_mov_b32 v6, s{T}
  buffer_atomic_umax v5, v{VZ}, {sr(SD, 4)}, 0 offen offset:248 sc1
  buffer_atomic_add v{6 if kind == "rel" else 5}, v{VZ}, {sr(SD, 4)}, 0 offen offset:252 sc1
  s_or_b32 s{T}, s2, s{S_WAVE}
  s_cmp_lg_u32 s{T}, 0
  s_cbranch_scc1 L_end
  s_add_u32 s{T + 1}, s{ts(0)}, 19000
L_dg1:
  s_memrealtime s[{T + 2}:{T + 3}]
  s_waitcnt lgkmcnt(0)
  s_sub_u32 s{T + 2}, s{T + 2}, s{T + 1}
  s_cmp_lt_i32 s{T + 2}, 0
  s_cbranch_scc1 L_dg1
  buffer_load_dword v4, v{VZ}, {sr(SD, 4)}, 0 offen offset:244 sc1
  buffer_load_dword v5, v{VZ}, {sr(SD, 4)}, 0 offen offset:{248 if kind == "max" else 252} sc1
  s_waitcnt vmcnt(0)
  v_readfirstlane_b32 s{T}, v4
  v_readfirstlane_b32 s{T + 1}, v5
  s_not_b32 s{T}, s{T}
""")
    if kind == "zero":
        a(f"  s_mov_b32 s{T + 1}, 0")
    elif kind == "max":
        a(f"  s_sub_u32 s{T + 1}, s{T + 1}, s{T}")
    elif kind == "rel":
        a(f"  s_lshr_b32 s{T + 1}, s{T + 1}, {10 - o.dgain}")
    else:
        a(f"  s_lshl_b32 s{T + 2}, s{T}, 10")
        a(f"  s_sub_u32 s{T + 1}, s{T + 1}, s{T + 2}")
        a(f"  s_lshr_b32 s{T + 1}, s{T + 1}, 10")
    a(f"""
  s_min_u32 s{T + 1}, s{T + 1}, 30000
  s_add_u32 s{T + 1}, s{T + 1}, 20000
  s_sub_u32 s{T + 2}, s{ts(0)}, s{T}
  s_min_u32 s{T + 2}, s{T + 2}, 1000
  s_sub_u32 s{T}, s{ts(0)}, s{T + 2}
  s_add_u32 s{T + 1}, s{T + 1}, s{T}
L_dg2:
  s_memrealtime s[{T + 2}:{T + 3}]
  s_waitcnt lgkmcnt(0)
  s_sub_u32 s{T + 2}, s{T + 2}, s{T + 1}
  s_cmp_lt_i32 s{T + 2}, 0
  s_cbranch_scc1 L_dg2
""")


def hooks(a, o):
    b = S_T
    a(f"""
L_hook:
  s_cmp_ge_u32 s{S_I}, {o.sent}
  s_cbranch_scc1 L_hook4
""")
    if o.epre:
        a(f"""
  s_cmp_eq_u32 s{S_I}, {o.epre}
  s_cbranch_scc0 L_hook1
  buffer_load_dword v{VOUT}, v{VBOX}, {sr(SQ, 4)}, s{S_SEND} offen{o.paux}
  s_mov_b32 s{S_HOOK}, {o.sent}
  s_branch L_hook_ret
L_hook1:
""")
    a(f"""
  s_mov_b64 exec, 1
  s_cmp_eq_u32 s{S_I}, {o.hello}
  s_cbranch_scc0 L_hook2
""")
    if o.force == "late":
        a(f"""
  s_cmp_eq_u32 s{S_HALF}, 0
  s_cbranch_scc1 L_nodelay
  s_lshl_b32 s{b + 1}, 1, s{S_SH}
  s_mov_b32 s{b + 2}, {SPIN}
L_delay:
  buffer_load_dword v{VT}, v{VZ}, {sr(SD, 4)}, s{S_DW} offen sc1
  s_sub_u32 s{b + 2}, s{b + 2}, 1
  s_cbranch_scc1 L_nodelay
  s_waitcnt vmcnt(0)
  v_and_b32 v{VT}, s{b + 1}, v{VT}
  v_cmp_ne_u32 vcc, 0, v{VT}
  s_cbranch_vccz L_delay
L_nodelay:
""")
    a(f"""
  s_cmp_eq_u32 s{S_HALF}, 0
  s_cbranch_scc1 L_hook_noswap
  v_swap_b32 v{VFL + 2}, v{VFL + 3}
L_hook_noswap:
  v_add_u32 v{VFL + 2}, s{S_ID}, v{VFL + 2}
  buffer_store_dword v{VFL + 2}, v{VZ}, {sr(SW, 4)}, s{S_FLO} offen offset:264
  s_mov_b32 s{S_HOOK}, {o.check}
  s_branch L_hook_out
L_hook2:
  s_cmp_eq_u32 s{S_I}, {o.check}
  s_cbranch_scc0 L_hook3
  buffer_load_dword v{VHS}, v{VZ}, {sr(SW, 4)}, s{S_FLP} offen offset:264 sc1
  s_mov_b32 s{S_HOOK}, {o.check + 1}
  s_branch L_hook_out
L_hook3:
  v_sub_u32 v{VHS}, v{VHS}, v{VFL + 3}
  v_cmp_eq_u32 vcc, s{S_ID}, v{VHS}
  v_mov_b32 v{VHS}, 0
  s_cbranch_vccnz L_hook_mode
  s_lshl_b32 s{b}, 1, s{S_SH}
  v_mov_b32 v{VHS}, s{b}
  buffer_atomic_or v{VHS}, v{VZ}, {sr(SD, 4)}, s{S_DW} offen sc0 sc1
  s_waitcnt vmcnt(0)
  v_bfe_u32 v{VHS}, v{VHS}, s{S_SH}, 1
  v_add_u32 v{VHS}, 1, v{VHS}
L_hook_mode:
  v_mov_b32 v{VT}, {LDS_MODE}
  ds_write_b32 v{VT}, v{VHS}
  s_mov_b32 s{S_HOOK}, {o.epre or o.sent}
  s_waitcnt lgkmcnt(0)
L_hook_out:
  s_mov_b64 exec, -1
  s_branch L_hook_ret
L_hook4:
  s_cmp_eq_u32 s{S_I}, {o.sent}
  s_cbranch_scc0 L_hook5
  v_mov_b32 v{VT}, {LDS_MODE}
  ds_read_b32 v{VHS}, v{VT}
  s_cmp_eq_u32 s{S_HALF}, 0
  s_cbranch_scc1 L_hook_noswap2
  v_swap_b32 v{VFL}, v{VFL + 1}
L_hook_noswap2:
  v_add_u32 v{VFL}, 1, v{VFL}
  v_mov_b32 v{VRDY}, v{VFL + 1}
  v_mov_b64 {vr(VT + 4, 2)}, -1
  v_mov_b64 {vr(VT + 6, 2)}, -1
""")
    a(xlane_ops("v_add_f32", VL, VT, VT + 1))
    a(f"""
  s_waitcnt lgkmcnt(0)
  v_readfirstlane_b32 s{S_MODE}, v{VHS}
  s_cmp_lg_u32 s{S_MODE}, 0
  s_cbranch_scc1 L_hook_ret
  buffer_store_dwordx4 {vr(VT + 4, 4)}, v{VBOX}, {sr(SQ, 4)}, s{S_SEND} offen
  buffer_store_dwordx4 {vr(VT + 4, 4)}, v{VBOX}, {sr(SQ, 4)}, s{S_SEND} offen offset:{o.boxstep}
  buffer_store_dwordx2 {vr(VM, 2)}, v{VML}, {sr(SW, 4)}, s{S_MLO} offen
  s_mov_b32 s{S_HOOK}, {o.sent + 1}
  s_branch L_hook_ret
L_hook5:
  s_cmp_eq_u32 s{S_I}, {o.sent + 1}
  s_cbranch_scc0 L_hook6
  buffer_store_dword v{VFL}, v{VZ}, {sr(SW, 4)}, s{S_FLO} offen offset:256
  s_mov_b32 s{S_HOOK}, {o.rdy if o.force != "nordy" else 99}
  s_branch L_hook_ret
L_hook6:
  s_cmp_eq_u32 s{S_I}, {o.rdy}
  s_cbranch_scc0 L_hook7
  buffer_load_dword v{VRDY}, v{VZ}, {sr(SW, 4)}, s{S_FLP} offen offset:256 sc1
  s_mov_b32 s{S_HOOK}, {o.rdy + 1}
  s_branch L_hook_ret
L_hook7:
  buffer_load_dwordx2 {vr(VQ, 2)}, v{VML}, {sr(SW, 4)}, s{S_MLP} offen sc1
  s_branch L_hook_ret
""")


def controller(a, o):
    nw = len(o.wins)
    x, e, g = S_T, S_T + 1, S_T + 2
    t = VT
    a(f"""
L_ctl:
  v_sub_u32 v{t}, v{VCT}, v{VCB}
  s_add_u32 s{x}, s{S_I}, 1
  v_add_u32 v{t + 1}, s{x}, v{VCB}
""")
    if o.lfirst:
        a(f"  s_cmp_lt_u32 s{S_I}, {o.lfirst}")
        a("  s_cbranch_scc1 L_ctl_nopub")
    a(f"""
  s_lshl_b64 exec, 1, s{S_SLOT}
  buffer_store_dword v{t + 1}, v{VCA}, {sr(SW, 4)}, s{S_LOC} offen
L_ctl_nopub:
  s_sub_u32 s{x}, s{S_I}, s{S_REP}
  s_cmp_eq_u32 s{x}, 0
  s_cbranch_scc0 L_ctl_nolead
  s_lshl_b64 exec, 1, 32
  v_mov_b32 v{VAT}, 1
  buffer_atomic_add v{VAT}, v{VZ}, {sr(SW, 4)}, s{S_REPV} offen sc0 sc1
L_ctl_nolead:
  s_mov_b64 exec, -1
""")
    if o.glead:
        a(f"""
  s_cmp_eq_i32 s{x}, {-o.glead}
  s_cbranch_scc0 L_ctl_nobase
  buffer_load_dword v{VG0}, v{VZ}, {sr(SW, 4)}, s{S_REPV} offen{o.gaux}
L_ctl_nobase:
""")
    a(f"""
  buffer_load_dword v{VCT}, v{VCA}, {sr(SW, 4)}, s{S_LOC} offen sc1
  s_cmp_lt_u32 s{S_I}, {o.cstart}
  s_cbranch_scc1 L_ctl_ret
  v_cmp_ne_u32 vcc, 0, v{t}
  v_readlane_b32 s{g}, v{t}, 32
  v_add_u32_dpp v{t}, v{t}, v{t} row_shr:1 row_mask:0xf bank_mask:0xf bound_ctrl:1
  s_nop 1
  v_add_u32_dpp v{t}, v{t}, v{t} row_shr:2 row_mask:0xf bank_mask:0xf bound_ctrl:1
  s_nop 1
  v_add_u32_dpp v{t}, v{t}, v{t} row_shr:4 row_mask:0xf bank_mask:0xf bound_ctrl:1
  s_nop 1
  v_add_u32_dpp v{t}, v{t}, v{t} row_shr:8 row_mask:0xf bank_mask:0xf bound_ctrl:1
  s_cmp_eq_u32 vcc_lo, -1
  s_cbranch_scc0 L_ctl_end
  v_readlane_b32 s{x}, v{t}, 15
  v_readlane_b32 s{e}, v{t}, 31
  s_max_i32 s{g}, s{g}, {-o.gclip}
  s_min_i32 s{g}, s{g}, {o.gclip}
  s_add_u32 s{x}, s{x}, s{e}
  s_lshl_b32 s{e}, s{S_I}, 5
  s_sub_i32 s{e}, s{x}, s{e}
  s_add_i32 s{e}, s{e}, {32 - o.bias}
  s_max_i32 s{e}, s{e}, -128
  s_min_i32 s{e}, s{e}, 128
  s_sub_u32 s{x}, s{S_I}, s{S_REP}
  s_cmp_eq_u32 s{x}, 1
  s_cbranch_scc0 L_ctl_norank
  s_mul_i32 s{x}, s{e}, {o.gcorr}
  s_add_i32 s{x}, s{x}, {7 * 16}
  s_lshl_b64 exec, 1, 32
  v_sub_u32 v{VAT}, v{VAT}, v{VG0}
  v_lshl_add_u32 v{VAT}, v{VAT}, 5, v{VCB}
  v_subrev_u32 v{VAT}, s{x}, v{VAT}
  buffer_store_dword v{VAT}, v{VCA}, {sr(SW, 4)}, s{S_LOC} offen
  s_mov_b64 exec, -1
L_ctl_norank:
""")
    for reg, src, (thr, step) in ((S_INT, e, o.bl), (S_BG, g, o.bg)):
        if step:
            a(f"""
  s_add_i32 s{x}, s{reg}, {step}
  s_ashr_i32 s{reg}, s{reg}, {o.bdec}
  s_cmp_ge_i32 s{src}, {thr}
  s_cselect_b32 s{reg}, s{x}, s{reg}
""")
    a(f"""
  s_mul_i32 s{e}, s{e}, {o.kp}
  s_mul_i32 s{g}, s{g}, {o.kpg}
  s_ashr_i32 s{g}, s{g}, 4
  s_add_i32 s{e}, s{e}, s{g}
""")
    for reg, (thr, step) in ((S_INT, o.bl), (S_BG, o.bg)):
        if step:
            a(f"  s_add_i32 s{e}, s{e}, s{reg}")
    if o.wsw != [0, 0]:
        a(f"""
  s_and_b32 s{x}, s{S_I}, 7
  s_mov_b32 s{g}, 0
  s_cmp_eq_u32 s{x}, 5
  s_cmovk_i32 s{g}, {o.wsw[0]}
  s_cmp_eq_u32 s{x}, 6
  s_cmovk_i32 s{g}, {o.wsw[1]}
  s_add_i32 s{e}, s{e}, s{g}
""")
    if o.sd:
        a(f"""
  s_add_i32 s{e}, s{e}, {int(o.w0 * 512)}
  s_add_i32 s{e}, s{e}, s{S_REM}
  s_and_b32 s{S_REM}, s{e}, 511
""")
    else:
        a(f"  s_add_i32 s{e}, s{e}, {int(o.w0 * 512 + 256)}")
    a(f"""
  s_ashr_i32 s{e}, s{e}, 9
  s_max_i32 s{e}, s{e}, 0
  s_min_i32 s{e}, s{e}, {nw - 1}
""")
    if o.stamp:
        a(f"  s_add_u32 s{S_WSUM}, s{S_WSUM}, s{e}")
    a(f"""
  v_mov_b32 v{t}, s{e}
  v_mov_b32 v{t + 2}, {LDS_WIN}
  ds_write_b32 v{t + 2}, v{t}
  s_waitcnt lgkmcnt(0)
L_ctl_end:
  s_cmp_lt_u32 s{S_I}, {o.cend}
  s_cselect_b32 s{S_CTL}, s{S_CTL}, 0
  s_branch L_ctl_ret
""")


def build(o):
    a = Asm()
    a(HEADER)
    label = f"{NAME}_kernel"
    a(f"; @launch grid=(256,1,1) block=(512,1,1) lds={LDS_BYTES}")
    a('.amdgcn_target "amdgcn-amd-amdhsa--gfx950"')
    a(f"""
.text
.globl {label}
{".p2align 12" if o.align else ""}
.p2align 8
.type {label},@function
{label}:
  s_load_dwordx8 s[{S_ARG}:{S_ARG + 7}], s[0:1], 0
  s_load_dwordx4 s[{S_ARG + 8}:{S_ARG + 11}], s[0:1], 32
  s_cmp_ge_u32 s2, 256
  s_cbranch_scc1 L_end
""")
    if o.skew:
        a(f"""
  s_memrealtime s[{S_TS}:{S_TS + 1}]
  s_getreg_b32 s{S_T}, hwreg(HW_REG_XCC_ID, 0, 4)
  s_lshl_b32 s{S_T}, s{S_T}, 2
  s_add_u32 s{S_T}, s{S_T}, 0xb00000
  s_waitcnt lgkmcnt(0)
  s_load_dword s{S_T + 1}, s[{S_ARG + 10}:{S_ARG + 11}], s{S_T}
  s_waitcnt lgkmcnt(0)
  s_min_u32 s{S_T + 1}, s{S_T + 1}, 1000
  s_add_u32 s{S_T + 1}, s{S_T + 1}, s{S_TS}
L_skew:
  s_memrealtime s[{S_T + 2}:{S_T + 3}]
  s_waitcnt lgkmcnt(0)
  s_sub_u32 s{S_T + 2}, s{S_T + 2}, s{S_T + 1}
  s_cmp_lt_i32 s{S_T + 2}, 0
  s_cbranch_scc1 L_skew
""")
    stamp(a, o, 0)
    a(f"  v_readfirstlane_b32 s{S_WAVE}, v0")
    if o.map == 0:
        a(f"""
  s_and_b32 s{S_T}, s2, 7
  s_lshr_b32 s{S_T + 1}, s2, 4
  s_lshl_b32 s{S_T + 1}, s{S_T + 1}, 3
  s_or_b32 s{S_PAIR}, s{S_T}, s{S_T + 1}
  s_bfe_u32 s{S_HALF}, s2, 0x10003
""")
    else:
        a(f"""
  s_lshr_b32 s{S_PAIR}, s2, 1
  s_and_b32 s{S_HALF}, s2, 1
""")
    a(f"""
  s_lshr_b32 s{S_WAVE}, s{S_WAVE}, 6
  s_cmp_eq_u32 s{S_WAVE}, 0
""")
    a(f"""
  s_cbranch_scc1 L_loader
  s_cmp_lt_u32 s{S_WAVE}, 5
  s_cbranch_scc1 {"L_early" if o.early else "L_compute"}
  s_cmp_eq_u32 s{S_WAVE}, 6
  s_cbranch_scc1 {"L_touch0" if o.touch else "L_storage"}
  s_cmp_eq_u32 s{S_WAVE}, 7
  s_cbranch_scc1 {"L_touch1" if o.touch else "L_storage"}
""")
    if o.cpf:
        a(f"""
  s_getpc_b64 s[{S_T + 2}:{S_T + 3}]
L_pc:
  s_lshr_b32 s{S_T}, s2, 3
  s_mul_i32 s{S_T}, s{S_T}, 640
  v_and_b32 v1, 7, v0
  v_min_u32 v1, 4, v1
  v_lshl_add_u32 v1, v1, 7, s{S_T}
  v_min_u32 v1, L_code_end-L_pc-4, v1
  v_mov_b32 v3, s{S_T + 3}
  v_add_co_u32 v2, vcc, s{S_T + 2}, v1
  s_nop 1
  v_addc_co_u32 v3, vcc, 0, v3, vcc
  global_load_dword v{VOUT}, v[2:3], off
""")
    a(f"""
  s_branch {"L_touch2" if o.touch else "L_storage"}
""")
    if o.early:
        a("L_early:")
        early_loads(a, o)
        a("  s_branch L_compute")
    a("L_loader:")
    loader(a, o)
    if o.align:
        a(".p2align 12")
    prologue(a, o)
    a("  s_branch L_loop")
    controller(a, o)
    hooks(a, o)
    mainloop(a, o)
    epilogue(a, o)
    storage(a, o)
    a(f"""
L_code_end:
.section .rodata,"a"
.p2align 6
.amdhsa_kernel {label}
  .amdhsa_next_free_vgpr {NVGPR}
  .amdhsa_next_free_sgpr {NSGPR}
  .amdhsa_accum_offset {NVGPR}
  .amdhsa_group_segment_fixed_size 0
  .amdhsa_kernarg_size 48
  .amdhsa_user_sgpr_count 2
  .amdhsa_user_sgpr_kernarg_segment_ptr 1
  .amdhsa_system_sgpr_workgroup_id_x 1
.end_amdhsa_kernel
""")
    return a.text()


if __name__ == "__main__":
    ap = argparse.ArgumentParser()
    ap.add_argument("-o", default="cdna_kernels/" + NAME + ".s")
    ap.add_argument("--nq", type=int, default=16)
    ap.add_argument("--run", type=int, default=0)
    ap.add_argument("--tu", type=int, default=2)
    ap.add_argument("--wins", default="17,18,19,20,21,22,23,24,26")
    ap.add_argument("--winit", type=int, default=21)
    ap.add_argument("--wtail", type=int, default=21)
    ap.add_argument("--w0", type=float, default=3.75)
    ap.add_argument("--kp", type=int, default=40)
    ap.add_argument("--kpg", type=int, default=130)
    ap.add_argument("--bias", type=int, default=16)
    ap.add_argument("--kpg1", type=int, default=0)
    ap.add_argument("--kslope", type=int, default=0)
    ap.add_argument("--kmax", type=int, default=300)
    ap.add_argument("--ki", type=int, default=0)
    ap.add_argument("--kig", type=int, default=0)
    ap.add_argument("--istart", type=int, default=12)
    ap.add_argument("--imax", type=int, default=1024)
    ap.add_argument("--gcorr", type=int, default=5)
    ap.add_argument("--gclip", type=int, default=160)
    ap.add_argument("--wsw", default="0,0")
    ap.add_argument("--bl", default="0,0")
    ap.add_argument("--bg", default="0,0")
    ap.add_argument("--bdec", type=int, default=31)
    ap.add_argument("--sd", type=int, default=1)
    ap.add_argument("--lfirst", type=int, default=0)
    ap.add_argument("--gfirst", type=int, default=1)
    ap.add_argument("--gstep", type=int, default=1)
    ap.add_argument("--glast", type=int, default=23)
    ap.add_argument("--cstart", type=int, default=2)
    ap.add_argument("--cend", type=int, default=-1)
    ap.add_argument("--hello", type=int, default=5)
    ap.add_argument("--check", type=int, default=13)
    ap.add_argument("--sent", type=int, default=17)
    ap.add_argument("--rdy", type=int, default=20)
    ap.add_argument("--prepos", type=int, default=0)
    ap.add_argument("--wlast", default="0,0")
    ap.add_argument("--epre", type=int, default=0)
    ap.add_argument("--box", type=int, default=1)
    ap.add_argument("--early", type=int, default=1)
    ap.add_argument("--p0", type=int, default=3)
    ap.add_argument("--touch2", type=int, default=0)
    ap.add_argument("--fetch", default="e")
    ap.add_argument("--nprek", type=int, default=8)
    ap.add_argument("--cpf", type=int, default=1)
    ap.add_argument("--bits", default="12,13,14,8,9,10,11")
    ap.add_argument("--split", type=int, default=15)
    ap.add_argument("--rsel", default="")
    ap.add_argument("--aux", default="nt")
    ap.add_argument("--qaux", default="nt")
    ap.add_argument("--qplan", default="4")
    ap.add_argument("--x", default="")
    ap.add_argument("--diag", default="")
    ap.add_argument("--clk", action="store_true")
    ap.add_argument("--trace", action="store_true")
    ap.add_argument("--align", type=int, default=1)
    ap.add_argument("--touch", type=int, default=5)
    ap.add_argument("--dgain", type=int, default=3)
    ap.add_argument("--gaux", default="")
    ap.add_argument("--glead", type=int, default=0)
    ap.add_argument("--oaux", default="")
    ap.add_argument("--paux", default="nt")
    ap.add_argument("--stamp", action="store_true")
    ap.add_argument("--skew", action="store_true")
    ap.add_argument("--lstamp", action="store_true")
    ap.add_argument("--sstamp", action="store_true")
    ap.add_argument("--st", default="0,8,16")
    ap.add_argument("--estamp", type=int, default=0)
    ap.add_argument("--map", type=int, default=0)
    ap.add_argument("--force", default="")
    o = ap.parse_args()
    o.wins = [int(x) for x in o.wins.split(",")]
    o.st = [int(x) for x in o.st.split(",")]
    o.bits = [int(x) for x in o.bits.split(",")]
    rest = [b for b in range(8, 20) if b not in o.bits and b != o.split]
    assert rest == list(range(rest[0], rest[0] + 4))
    o.ustride = 1 << rest[0]
    o.rsel = [int(x) for x in o.rsel.split(",")] if o.rsel else []
    o.ntouch = 0
    o.touch += 2 * o.touch2
    o.bl = [int(x) for x in o.bl.split(',')]
    o.bg = [int(x) for x in o.bg.split(',')]
    o.wsw = [int(float(x) * 512) for x in o.wsw.split(',')]
    o.wlast = [int(x) for x in o.wlast.split(',')]
    o.boxstep = 2048 if o.box else 64
    o.run = o.run or o.nq
    o.stamp = o.stamp or bool(o.diag)
    assert o.tu == 2 and o.sent >= 16 and o.rdy + 1 <= 30 - o.tu
    if o.cend < 0:
        o.cend = 29 - o.tu
    fx = lambda s: (" " + s.replace(",", " ")) if s else ""
    o.aux, o.qaux, o.oaux, o.paux, o.gaux = fx(o.aux), fx(o.qaux), fx(o.oaux), fx(o.paux), fx(o.gaux)
    open(o.o, "w").write(build(o))
```
